```python
import torch

def _softmax(x, axis=-1):
    return torch.softmax(x, dim=axis)
def _gelu(x):
    return torch.nn.functional.gelu(x, approximate="tanh")
def _silu(x):
    return torch.nn.functional.silu(x)
def _sigmoid(x):
    return torch.sigmoid(x)
def _layernorm(x, axis=-1, eps=1e-5):
    m = x.mean(dim=axis, keepdim=True)
    v = x.var(dim=axis, keepdim=True, unbiased=False)
    return (x - m) / torch.sqrt(v + eps)
def _scatter_add(tgt, idx, src, axis=0):
    return tgt.clone().index_add_(axis, idx, src)
def _segment_sum(src, seg, n):
    out = torch.zeros((n,) + src.shape[1:], dtype=src.dtype)
    return out.index_add_(0, seg, src)
def _pad(x, pw):
    flat = tuple(v for pair in reversed(pw) for v in pair)
    return torch.nn.functional.pad(x, flat)

kernel_name = 'gated_mix__ssm_conv_h3__ssm_conv_s4__prompt'

def setup_inputs():

    _w = (lambda a: (lambda t: t.to(torch.bfloat16) if t.is_floating_point() else t)(torch.as_tensor(a)))
    def _A_setup():
        B, S, D = 1, 2048, 512
        ks = 4
        return {
            "q": _w((lambda *s: torch.randn(*s, dtype=torch.bfloat16) * 0.05)(B, S, D)),
            "k": _w((lambda *s: torch.randn(*s, dtype=torch.bfloat16) * 0.4)(B, S, D)),
            "v": _w((lambda *s: torch.randn(*s, dtype=torch.bfloat16) * 0.2)(B, S, D)),
            "shift_k": _w((lambda *s: torch.randn(*s, dtype=torch.bfloat16) * 0.4)(D, ks) * 0.5),
            "ssm_k": _w((lambda *s: torch.randn(*s, dtype=torch.bfloat16) * 0.4)(D, S) * (1.0 / S ** 0.5)),
            "ssm_D": _w((lambda *s: torch.randn(*s, dtype=torch.bfloat16) * 0.2)(D)),
        }
    _A_in = _A_setup()

    def _B_setup():
        B, L, D, N = 1, 2048, 512, 128
        A_re = -(lambda _x: torch.exp(torch.as_tensor(_x)))((lambda *s: torch.randn(*s, dtype=torch.bfloat16) * 3.2)(D, N))
        A_im = torch.pi * (lambda *s: torch.randn(*s, dtype=torch.bfloat16) * 0.05)(D, N)
        B_re = (lambda *s: torch.randn(*s, dtype=torch.bfloat16) * 0.1)(D, N)
        B_im = (lambda *s: torch.randn(*s, dtype=torch.bfloat16) * 0.1)(D, N)
        C_re = (lambda *s: torch.randn(*s, dtype=torch.bfloat16) * 0.1)(D, N)
        C_im = (lambda *s: torch.randn(*s, dtype=torch.bfloat16) * 0.1)(D, N)
        log_dt = (lambda *s: torch.randn(*s, dtype=torch.bfloat16) * 0.05)(D) * 0.5 - 4.0
        Dskip = (lambda *s: torch.randn(*s, dtype=torch.bfloat16) * 0.05)(D)
        return {
            "u": _w((lambda *s: torch.randn(*s, dtype=torch.bfloat16) * 0.05)(B, L, D)),
            "A_re": _w(A_re),
            "A_im": _w(A_im),
            "B_re": _w(B_re),
            "B_im": _w(B_im),
            "C_re": _w(C_re),
            "C_im": _w(C_im),
            "log_dt": _w(log_dt),
            "Dskip": _w(Dskip),
        }
    _B_in = _B_setup()

    return {
        "A_q": _A_in["q"],
        "A_k": _A_in["k"],
        "A_v": _A_in["v"],
        "A_shift_k": _A_in["shift_k"],
        "A_ssm_k": _A_in["ssm_k"],
        "A_ssm_D": _A_in["ssm_D"],
        "B_u": _B_in["u"],
        "B_A_re": _B_in["A_re"],
        "B_A_im": _B_in["A_im"],
        "B_B_re": _B_in["B_re"],
        "B_B_im": _B_in["B_im"],
        "B_C_re": _B_in["C_re"],
        "B_C_im": _B_in["C_im"],
        "B_log_dt": _B_in["log_dt"],
        "B_Dskip": _B_in["Dskip"],
        "gate_w": _w((lambda *s: torch.randn(*s, dtype=torch.bfloat16) * 0.05)(512) * 16.0),
    }

def reference(A_q, A_k, A_v, A_shift_k, A_ssm_k, A_ssm_D, B_u, B_A_re, B_A_im, B_B_re, B_B_im, B_C_re, B_C_im, B_log_dt, B_Dskip, gate_w):
    def _A_ref(q, k, v, shift_k, ssm_k, ssm_D):
        B, S, D = q.shape
        ks = shift_k.shape[-1]
        k_pad = _pad(k, ((0, 0), (ks - 1, 0), (0, 0)))
        k_shift = torch.zeros_like(k)
        for t in range(ks):
            k_shift = k_shift + k_pad[:, t:t + S, :] * shift_k[:, ks - 1 - t][None, None, :]
        kv = k_shift * v
        L = 2 * S
        kv_pad = _pad(kv, ((0, 0), (0, S), (0, 0)))
        kf_pad = _pad(ssm_k, ((0, 0), (0, S)))
        kv_f = (lambda x, axes=(-2,-1): torch.fft.rfft2(x.float(), dim=axes))(kv_pad[:, None, :, :], axes=(1, 2))
        kf_f = (lambda x, axes=(-2,-1): torch.fft.rfft2(x.float(), dim=axes))(kf_pad[:, None, :], axes=(1, 2))
        kf_f = (lambda x, *d: x.permute(*d))(kf_f, 1, 2, 0)
        y_f = kv_f * kf_f[None, :, :, :]
        y = (lambda x, s, axes=(-2,-1): torch.fft.irfft2(x, s=s, dim=axes).to(torch.bfloat16))(y_f, (1, L), axes=(1, 2))[:, 0, :S, :]
        y = y + kv * ssm_D[None, None, :]
        return q * y

    def _B_ref(u, A_re, A_im, B_re, B_im, C_re, C_im, log_dt, Dskip):
        Bsz, L, D = u.shape
        dt = torch.exp(log_dt)[:, None]
        A = A_re + 1j * A_im
        Bc = B_re + 1j * B_im
        Cc = C_re + 1j * C_im
        logdA = dt * A
        dB = dt * Bc
        l = (lambda x, dt: x.to(dt))(torch.arange(L), A_re.dtype)
        P = torch.exp(logdA[:, :, None] * l[None, None, :])
        K = torch.einsum("dn,dnl,dn->dl", Cc, P, dB).real
        L2 = 2 * L
        Kp = _pad(K, ((0, 0), (0, L)))
        up = (lambda x, *d: x.permute(*d))(u, 0, 2, 1)
        up = _pad(up, ((0, 0), (0, 0), (0, L)))
        Kf = (lambda x, axes=(-2,-1): torch.fft.rfft2(x.float(), dim=axes))(Kp[:, None, :], axes=(-2, -1))
        Uf = (lambda x, axes=(-2,-1): torch.fft.rfft2(x.float(), dim=axes))(up[:, :, None, :], axes=(-2, -1))
        Yf = Uf * Kf[None, :, :, :]
        y = (lambda x, s, axes=(-2,-1): torch.fft.irfft2(x, s=s, dim=axes).to(torch.bfloat16))(Yf, (1, L2), axes=(-2, -1))[:, :, 0, :L]
        y = (lambda x, *d: x.permute(*d))(y, 0, 2, 1) + u * Dskip[None, None, :]
        return y

    x = A_q
    g = _sigmoid((x * gate_w).sum(-1, keepdims=True))
    a = _A_ref(x, A_k, A_v, A_shift_k, A_ssm_k, A_ssm_D)
    b = _B_ref(x, B_A_re, B_A_im, B_B_re, B_B_im, B_C_re, B_C_im, B_log_dt, B_Dskip)
    return g * a + (1 - g) * b
```

```python
import re

TRANS = ("v_exp_f32", "v_log_f32", "v_rcp_f32", "v_rsq_f32", "v_sqrt_f32", "v_sin_f32", "v_cos_f32")

def parse_reg(tok):
    tok = tok.strip()
    neg = tok.startswith("-")
    if neg: tok = tok[1:]
    if tok.startswith("abs(") and tok.endswith(")"): tok = tok[4:-1]
    if tok.startswith("|") and tok.endswith("|"): tok = tok[1:-1]
    m = re.fullmatch(r"([vas])(\d+)", tok)
    if m: return [(m.group(1), int(m.group(2)))]
    m = re.fullmatch(r"([vas])\[(\d+):(\d+)\]", tok)
    if m: return [(m.group(1), i) for i in range(int(m.group(2)), int(m.group(3)) + 1)]
    if tok == "vcc": return [("s", 106), ("s", 107)]
    if tok == "exec": return [("s", 126), ("s", 127)]
    if tok == "m0": return [("s", 124)]
    return []

class Ins:
    __slots__ = ("text", "op", "kind", "wr", "rd", "srcc", "passes", "dpp", "nop")
    def __init__(self, text):
        self.text = text
        body = text.split(";")[0].split("//")[0].strip()
        parts = body.split(None, 1)
        self.op = parts[0]
        rest = parts[1] if len(parts) > 1 else ""
        ops = [o.strip() for o in rest.split(",")] if rest else []
        mods = ""
        if ops:
            sp = ops[-1].split(None, 1)
        mm = re.search(r"\s(offen|idxen|offset:|offset0:|op_sel|neg_lo|neg_hi|row_|quad_perm|wave_|bound_ctrl|lds|sc0|sc1|nt\b|off\b|clamp|mul:|div:|cbsz|abid|blgp|dst_sel|src0_sel|src1_sel|glc)", " " + rest)
        if mm:
            opstr = (" " + rest)[:mm.start()]; mods = (" " + rest)[mm.start():]
        else:
            opstr = rest
        ops = [o.strip() for o in opstr.split(",")] if opstr.strip() else []
        ops = [o for o in ops if o]
        op = self.op
        self.wr = []; self.rd = []; self.srcc = []; self.passes = 0; self.nop = 1
        self.dpp = ("row_" in mods) or ("quad_perm" in mods) or ("wave_" in mods) or op.endswith("_dpp")
        R = lambda i: parse_reg(ops[i]) if i < len(ops) else []
        if op == "s_nop":
            self.kind = "nop"; self.nop = int(ops[0], 0) + 1
        elif op.startswith("v_mfma"):
            self.kind = "mfma"; self.wr = R(0); self.rd = R(1) + R(2) + R(3); self.srcc = R(3)
            self.passes = 8 if "32x32" in op else 4
        elif op.startswith("v_cmp"):
            self.kind = "valu"; self.wr = R(0); self.rd = R(1) + R(2)
        elif op.startswith("v_"):
            self.kind = "valu"; self.wr = R(0)
            self.rd = sum((R(i) for i in range(1, len(ops))), [])
            if op.startswith(("v_fmac", "v_dot2c", "v_mac", "v_pk_fmac")) or "d16" in op: self.rd += R(0)
            if op.startswith("v_cndmask") and len(ops) == 3: self.rd += parse_reg("vcc")
            if op.startswith(("v_add_co", "v_sub_co", "v_addc_co", "v_subb_co")): self.wr += R(1)
            if op.startswith(("v_permlane")): self.wr += R(1); self.rd += R(0)
            if self.dpp: self.rd += R(0)
        elif op.startswith("ds_"):
            self.kind = "ds"
            if op.startswith(("ds_read", "ds_bpermute", "ds_permute", "ds_swizzle")):
                self.wr = R(0); self.rd = sum((R(i) for i in range(1, len(ops))), [])
                if "d16" in op: self.rd += R(0)
            else:
                self.rd = sum((R(i) for i in range(len(ops))), [])
        elif op.startswith(("buffer_", "global_")):
            self.kind = "vmem"
            islds = " lds" in mods or "_lds_" in op
            if ("load" in op) and not islds:
                self.wr = R(0); self.rd = sum((R(i) for i in range(1, len(ops))), [])
            else:
                self.rd = sum((R(i) for i in range(len(ops))), [])
            if islds: self.rd += parse_reg("m0")
        elif op.startswith("s_"):
            self.kind = "salu"
            if op.startswith(("s_cmp", "s_cbranch", "s_branch", "s_waitcnt", "s_barrier", "s_endpgm", "s_setprio", "s_sleep", "s_bitcmp")):
                self.rd = sum((R(i) for i in range(len(ops))), [])
            else:
                self.wr = R(0); self.rd = sum((R(i) for i in range(1, len(ops))), [])
        else:
            self.kind = "other"

class Asm:
    def __init__(self):
        self.lines = []
        self.ds_issued = 0
        self.ds_done = 0
        self.vm_issued = 0
        self.vm_done = 0
    def raw(self, text): self.lines.append(text)
    def label(self, name):
        self.lines.append(name + ":")
    def c(self, text): self.lines.append("  ; " + text)
    def e(self, text):
        ins = Ins(text)
        self.lines.append(ins)
        tok = None
        if ins.kind == "ds":
            tok = self.ds_issued; self.ds_issued += 1
        elif ins.kind == "vmem":
            tok = self.vm_issued; self.vm_issued += 1
        return tok
    def wait_ds(self, tok):
        if tok is None or tok < self.ds_done: return
        n = self.ds_issued - tok - 1
        n = min(n, 15)
        self.e(f"s_waitcnt lgkmcnt({n})")
        self.ds_done = max(self.ds_done, self.ds_issued - n)
    def wait_ds_all(self):
        self.e("s_waitcnt lgkmcnt(0)"); self.ds_done = self.ds_issued
    def wait_vm(self, tok):
        if tok is None or tok < self.vm_done: return
        n = self.vm_issued - tok - 1
        n = min(n, 63)
        self.e(f"s_waitcnt vmcnt({n})")
        self.vm_done = max(self.vm_done, self.vm_issued - n)
    def wait_vm_all(self):
        self.e("s_waitcnt vmcnt(0)"); self.vm_done = self.vm_issued
    def wait_all(self):
        self.e("s_waitcnt vmcnt(0) lgkmcnt(0)"); self.vm_done = self.vm_issued; self.ds_done = self.ds_issued
    def reset_counters(self):
        self.ds_done = self.ds_issued; self.vm_done = self.vm_issued

    def finalize(self):
        out = []
        hist = []
        def need(prev, cur):
            n = 0
            pw = set(prev.wr); pr = set(prev.rd)
            cr = set(cur.rd); cw = set(cur.wr)
            pwv = {r for r in pw if r[0] in "va"}; pws = {r for r in pw if r[0] == "s"}
            if prev.kind == "valu":
                if cur.kind == "mfma" and pwv & cr: n = max(n, 2)
                if cur.kind == "valu" and cur.dpp and pwv & cr: n = max(n, 2)
                if cur.kind == "valu" and cur.op.startswith("v_permlane") and pwv & cr: n = max(n, 2)
                if cur.kind == "valu" and cur.op.startswith(("v_readfirstlane", "v_readlane")) and pwv & cr: n = max(n, 1)
                if prev.op.startswith("v_dot"):
                    same = cur.op == prev.op
                    if cur.kind in ("valu", "mfma", "ds", "vmem"):
                        if same and cur.op.startswith("v_dot2_f32"):
                            srcab = set(cur.rd[:2]) if len(cur.rd) >= 2 else set(cur.rd)
                            if pwv & srcab: n = max(n, 3)
                        elif pwv & (cr | cw): n = max(n, 3)
                if prev.op.split("_e")[0] in TRANS or prev.op in TRANS:
                    if cur.kind in ("valu", "mfma", "ds", "vmem") and pwv & cr: n = max(n, 1)
                if pws:
                    if cur.kind == "valu" and pws & cr: n = max(n, 4 if cur.op.startswith(("v_readlane", "v_writelane")) else 2)
                    if cur.kind == "vmem" and pws & cr: n = max(n, 5)
                    if cur.kind == "salu" and pws & cr: n = max(n, 4)
                    if cur.kind in ("mfma",) and ("s", 126) in pws: n = max(n, 4)
            if prev.kind == "mfma":
                D = pwv
                big = {4: (6, 8, 3), 8: (10, 12, 7)}[prev.passes]
                if cur.kind == "mfma":
                    cs = set(cur.srcc)
                    ab = cr - cs if not (set(cur.rd[:len(cur.rd) - len(cur.srcc)]) & cs) else set(cur.rd[:len(cur.rd) - len(cur.srcc)])
                    ab = set(cur.rd[:len(cur.rd) - len(cur.srcc)])
                    if D & ab: n = max(n, big[1])
                    if D & cs and not (cs == D and cur.passes == prev.passes): n = max(n, big[0])
                    if D & cw and not (D & cs): n = max(n, big[1])
                elif cur.kind in ("valu", "ds", "vmem"):
                    if D & (cr | cw): n = max(n, big[1])
                    if cur.kind == "valu" and set(prev.srcc) & cw: n = max(n, big[2])
            if prev.kind == "vmem" and ("store" in prev.op) and ("x4" in prev.op or "x3" in prev.op):
                if cur.kind in ("valu",) and (pr & cw): n = max(n, 2)
                elif cur.kind in ("ds", "vmem", "mfma") and (pr & cw): n = max(n, 1)
            if prev.kind == "salu" and ("s", 124) in pw and cur.kind == "vmem" and ("s", 124) in cr: n = max(n, 1)
            return n
        for ln in self.lines:
            if isinstance(ln, str):
                out.append(ln)
                if ln.endswith(":"):
                    pass
                continue
            cur = ln
            if cur.kind != "nop":
                req = 0
                dist = 0
                for prev in reversed(hist):
                    r = need(prev, cur) - dist
                    if r > req: req = r
                    dist += prev.nop
                    if dist > 20: break
                if req > 0:
                    while req > 0:
                        k = min(req, 16)
                        nop = Ins(f"s_nop {k-1}")
                        out.append("  " + nop.text); hist.append(nop); req -= k
            out.append("  " + cur.text)
            hist.append(cur)
            if len(hist) > 40: hist = hist[-40:]
        return "\n".join(out) + "\n"
```

```python
import sys
from dsl import Asm

NAME = "gated_mix__ssm_conv_h3__ssm_conv_s4__prompt"
LOG2E = 0x3fb8aa3b
WS_XQ = 0
WS_XKV = 2 << 20
WS_KB = 4 << 20
WS_G = 6 << 20
WS_USED = (6 << 20) + 16384

RS = 144
TQ = 0
TKV = 64 * RS
ENT = 544
TAB0 = 2 * 64 * RS
TABSZ = 72 * ENT
F0 = TAB0 + 2 * TABSZ
FSZ = 6144
K1_LDS = F0 + 2 * FSZ

def cmul(a, dst, w, z, tmp):
    a.e(f"v_pk_mul_f32 v[{tmp}:{tmp+1}], v[{w}:{w+1}], v[{z}:{z+1}] op_sel:[0,0] op_sel_hi:[1,0]")
    a.e(f"v_pk_fma_f32 v[{dst}:{dst+1}], v[{w}:{w+1}], v[{z}:{z+1}], v[{tmp}:{tmp+1}] op_sel:[1,1,0] op_sel_hi:[0,1,1] neg_lo:[1,0,0]")

def cpow(a, dst, rho, phi, m, t0, t1, stmp):
    import struct
    bits = struct.unpack("<I", struct.pack("<f", float(m)))[0]
    a.e(f"s_mov_b32 s{stmp}, 0x{bits:08x}")
    a.e(f"v_mul_f32 v{t0}, s{stmp}, v{rho}")
    a.e(f"v_mul_f32 v{t1}, s{stmp}, v{phi}")
    a.e(f"v_exp_f32 v{t0}, v{t0}")
    a.e(f"v_fract_f32 v{t1}, v{t1}")
    a.e(f"v_cos_f32 v{dst}, v{t1}")
    a.e(f"v_sin_f32 v{dst+1}, v{t1}")
    a.e(f"v_mul_f32 v{dst}, v{t0}, v{dst}")
    a.e(f"v_mul_f32 v{dst+1}, v{t0}, v{dst+1}")

def k1(a):
    kn = "prep_kernel"
    a.raw(f".globl {kn}\n.p2align 8\n.type {kn},@function\n{kn}:")
    a.e("s_cmp_ge_u32 s2, 256")
    a.e("s_cbranch_scc1 K1_END")
    a.e("s_load_dwordx4 s[4:7], s[0:1], 0")
    a.e("s_load_dwordx4 s[8:11], s[0:1], 16")
    a.e("s_load_dwordx8 s[12:19], s[0:1], 56")
    a.e("s_load_dwordx4 s[20:23], s[0:1], 88")
    a.e("s_load_dwordx2 s[24:25], s[0:1], 104")
    a.e("s_load_dwordx2 s[28:29], s[0:1], 120")
    a.e("s_load_dwordx2 s[30:31], s[0:1], 144")
    a.e("s_and_b32 s40, s2, 7")
    a.e("s_lshr_b32 s41, s2, 3")
    a.e("v_lshrrev_b32 v1, 6, v0")
    a.e("v_and_b32 v2, 63, v0")
    a.e("v_readfirstlane_b32 s42, v1")
    a.e("v_lshrrev_b32 v3, 3, v0")
    a.e("v_and_b32 v4, 7, v0")
    a.e("s_lshl_b32 s43, s41, 16")
    a.e("s_lshl_b32 s44, s40, 7")
    a.e("s_add_u32 s43, s43, s44")
    a.e("v_lshlrev_b32 v5, 10, v3")
    a.e("v_lshl_add_u32 v5, v4, 4, v5")
    a.e("v_add_u32 v5, s43, v5")
    a.e("v_subrev_u32 v6, 1024, v5")
    a.e("v_subrev_u32 v7, 2048, v5")
    a.e("v_subrev_u32 v8, 3072, v5")
    a.e("s_lshl_b32 s44, s40, 9")
    a.e("v_lshlrev_b32 v9, 6, v4")
    a.e("v_add_u32 v9, s44, v9")
    a.e("s_lshl_b32 s45, s2, 3")
    a.e("s_add_u32 s45, s45, s42")
    a.e("s_lshl_b32 s46, s45, 10")
    a.e("v_lshlrev_b32 v10, 4, v2")
    a.e("v_add_u32 v11, s46, v10")
    a.e("v_lshrrev_b32 v12, 8, v0")
    a.e("v_and_b32 v13, 127, v0")
    a.e("s_lshl_b32 s47, s2, 1")
    a.e("v_add_u32 v14, s47, v12")
    a.e("v_lshlrev_b32 v15, 8, v14")
    a.e("v_lshl_add_u32 v15, v13, 1, v15")
    a.e("v_lshlrev_b32 v16, 1, v14")
    a.e("s_waitcnt lgkmcnt(0)")
    a.e("s_mov_b32 s36, s6"); a.e("s_and_b32 s37, s7, 0xffff"); a.e("s_mov_b32 s38, 0x200000"); a.e("s_mov_b32 s39, 0x20000")
    Q, V, K0, K1_, K2_, K3 = 20, 24, 28, 32, 36, 40
    SK = 44
    GQ, GW = 60, 64
    PAR = 68
    tq = a.e(f"global_load_dwordx4 v[{Q}:{Q+3}], v5, s[4:5]")
    a.e(f"global_load_dwordx4 v[{V}:{V+3}], v5, s[8:9]")
    a.e(f"buffer_load_dwordx4 v[{K0}:{K0+3}], v5, s[36:39], 0 offen")
    a.e(f"buffer_load_dwordx4 v[{K1_}:{K1_+3}], v6, s[36:39], 0 offen")
    a.e(f"buffer_load_dwordx4 v[{K2_}:{K2_+3}], v7, s[36:39], 0 offen")
    a.e(f"buffer_load_dwordx4 v[{K3}:{K3+3}], v8, s[36:39], 0 offen")
    for i in range(4):
        tsk = a.e(f"global_load_dwordx4 v[{SK+4*i}:{SK+4*i+3}], v9, s[10:11] offset:{16*i}")
    a.e(f"global_load_dwordx4 v[{GQ}:{GQ+3}], v11, s[4:5]")
    tg = a.e(f"global_load_dwordx4 v[{GW}:{GW+3}], v10, s[28:29]")
    for i, sp in enumerate((12, 14, 16, 18, 20, 22)):
        a.e(f"global_load_ushort v{PAR+i}, v15, s[{sp}:{sp+1}]")
    tpar = a.e(f"global_load_ushort v{PAR+6}, v16, s[24:25]")
    ONES, MLO, MHI = 76, 77, 78
    a.e(f"v_mov_b32 v{ONES}, 0x3f803f80")
    a.e(f"v_mov_b32 v{MLO}, 0xffff")
    a.e(f"v_mov_b32 v{MHI}, 0xffff0000")
    XA = 80
    a.e("s_and_b32 s48, s42, 3")
    a.e("s_lshr_b32 s49, s42, 2")
    a.e("s_lshl_b32 s50, s48, 9")
    a.e("v_lshlrev_b32 v17, 3, v2")
    a.e("v_add_u32 v17, s50, v17")
    a.e(f"s_mul_i32 s51, s49, {FSZ}")
    a.e(f"s_add_u32 s51, s51, {F0}")
    for k in range(4):
        a.e(f"v_add_u32 v18, {2*k}, v17")
        a.e(f"v_add_u32 v19, {2*k+1}, v17")
        a.e("v_cvt_f32_u32 v18, v18")
        a.e("v_cvt_f32_u32 v19, v19")
        a.e("v_cvt_pk_bf16_f32 v18, v18, v19")
        a.e(f"v_and_b32 v19, v{MHI}, v18")
        a.e("v_lshlrev_b32 v18, 16, v18")
        a.e("v_cvt_u32_f32 v18, v18")
        a.e("v_cvt_u32_f32 v19, v19")
        a.e(f"v_lshlrev_b32 v{XA+2*k}, 1, v18")
        a.e(f"v_lshlrev_b32 v{XA+2*k+1}, 1, v19")
        a.e(f"v_add_u32 v{XA+2*k}, s51, v{XA+2*k}")
        a.e(f"v_add_u32 v{XA+2*k+1}, s51, v{XA+2*k+1}")
    a.wait_vm(tsk)
    KV = 88
    T = 92
    for m in range(4):
        c0, c1 = 2 * m, 2 * m + 1
        Krow = [K0 + m, K1_ + m, K2_ + m, K3 + m]
        for ci, c in enumerate((c0, c1)):
            base = T + 8 * ci
            mk = base; p = [base + 1, base + 2, base + 3, base + 4]; xx = base + 5; ss = base + 6
            for tau in range(4):
                src = SK + 2 * c + (tau >> 1)
                if ci == 0:
                    if tau & 1: a.e(f"v_lshrrev_b32 v{mk}, 16, v{src}")
                    else: a.e(f"v_and_b32 v{mk}, v{MLO}, v{src}")
                else:
                    if tau & 1: a.e(f"v_and_b32 v{mk}, v{MHI}, v{src}")
                    else: a.e(f"v_lshlrev_b32 v{mk}, 16, v{src}")
                a.e(f"v_dot2_f32_bf16 v{p[tau]}, v{Krow[tau]}, v{mk}, 0")
            a.e(f"v_cvt_pk_bf16_f32 v{xx}, v{p[3]}, v{p[2]}")
            a.e(f"v_dot2_f32_bf16 v{ss}, v{xx}, v{ONES}, 0")
            a.e(f"v_cvt_pk_bf16_f32 v{xx}, v{ss}, v{p[1]}")
            a.e(f"v_dot2_f32_bf16 v{ss}, v{xx}, v{ONES}, 0")
            a.e(f"v_cvt_pk_bf16_f32 v{xx}, v{ss}, v{p[0]}")
            a.e(f"v_dot2_f32_bf16 v{ss}, v{xx}, v{ONES}, 0")
        s0, s1 = T + 6, T + 14
        a.e(f"v_cvt_pk_bf16_f32 v{T}, v{s0}, v{s1}")
        a.e(f"v_and_b32 v{T+1}, v{MLO}, v{V+m}")
        a.e(f"v_and_b32 v{T+2}, v{MHI}, v{V+m}")
        a.e(f"v_dot2_f32_bf16 v{T+1}, v{T}, v{T+1}, 0")
        a.e(f"v_dot2_f32_bf16 v{T+2}, v{T}, v{T+2}, 0")
        a.e(f"v_cvt_pk_bf16_f32 v{KV+m}, v{T+1}, v{T+2}")
    a.e(f"v_mul_u32_u24 v18, {RS}, v3")
    a.e("v_lshl_add_u32 v18, v4, 4, v18")
    a.e(f"ds_write_b128 v18, v[{Q}:{Q+3}] offset:{TQ}")
    a.e(f"ds_write_b128 v18, v[{KV}:{KV+3}] offset:{TKV}")
    a.e("v_lshrrev_b32 v19, 4, v2")
    a.e("v_and_b32 v108, 15, v2")
    a.e("v_lshrrev_b32 v109, 2, v108")
    a.e("v_and_b32 v110, 3, v108")
    a.e("v_lshlrev_b32 v111, 3, v19")
    a.e("v_add_u32 v111, 3, v111")
    a.e("v_sub_u32 v111, v111, v109")
    a.e(f"v_mul_u32_u24 v111, {RS}, v111")
    a.e("v_lshl_add_u32 v111, v110, 3, v111")
    a.e(f"s_mul_i32 s52, s49, {TKV}")
    a.e("s_lshl_b32 s53, s48, 5")
    a.e("s_add_u32 s52, s52, s53")
    a.e("v_add_u32 v111, s52, v111")
    a.e("s_lshl_b32 s52, s49, 21")
    a.e("s_lshl_b32 s53, s40, 18")
    a.e("s_add_u32 s52, s52, s53")
    a.e("s_lshl_b32 s53, s48, 16")
    a.e("s_add_u32 s52, s52, s53")
    a.e("s_add_u32 s52, s52, 4016")
    a.e("s_lshl_b32 s53, s41, 7")
    a.e("s_sub_u32 s52, s52, s53")
    a.e("v_lshlrev_b32 v112, 12, v108")
    a.e("v_lshlrev_b32 v113, 4, v19")
    a.e("v_sub_u32 v112, v112, v113")
    a.e("v_add_u32 v112, s52, v112")
    a.wait_ds_all()
    a.e("s_barrier")
    XO = 116
    a.e(f"ds_read_b64_tr_b16 v[{XO}:{XO+1}], v111 offset:{4*RS}")
    a.e(f"ds_read_b64_tr_b16 v[{XO+2}:{XO+3}], v111 offset:0")
    a.e(f"ds_read_b64_tr_b16 v[{XO+4}:{XO+5}], v111 offset:{32*RS+4*RS}")
    t2 = a.e(f"ds_read_b64_tr_b16 v[{XO+6}:{XO+7}], v111 offset:{32*RS}")
    a.wait_vm(tg)
    GA = T
    a.e(f"v_mov_b32 v{GA}, 0")
    for m in range(4):
        a.e(f"v_and_b32 v{T+1}, v{MLO}, v{GW+m}")
        a.e(f"v_and_b32 v{T+2}, v{MHI}, v{GW+m}")
        a.e(f"v_dot2_f32_bf16 v{T+1}, v{GQ+m}, v{T+1}, 0")
        a.e(f"v_dot2_f32_bf16 v{T+2}, v{GQ+m}, v{T+2}, 0")
        a.e(f"v_cvt_pk_bf16_f32 v{T+1}, v{T+1}, v{T+2}")
        a.e(f"v_lshlrev_b32 v{T+2}, 16, v{T+1}")
        a.e(f"v_and_b32 v{T+1}, v{MHI}, v{T+1}")
        a.e(f"v_add_f32 v{GA}, v{GA}, v{T+2}")
        a.e(f"v_add_f32 v{GA}, v{GA}, v{T+1}")
    a.wait_ds(t2)
    a.e(f"global_store_dwordx4 v112, v[{XO}:{XO+3}], s[30:31] offset:64")
    a.e(f"global_store_dwordx4 v112, v[{XO+4}:{XO+7}], s[30:31]")
    for sh in (1, 2, 4, 8):
        a.e(f"v_add_f32_dpp v{GA}, v{GA}, v{GA} row_shr:{sh} row_mask:0xf bank_mask:0xf bound_ctrl:0")
    a.e(f"v_add_f32_dpp v{GA}, v{GA}, v{GA} row_bcast:15 row_mask:0xa bank_mask:0xf")
    a.e(f"v_add_f32_dpp v{GA}, v{GA}, v{GA} row_bcast:31 row_mask:0xc bank_mask:0xf")
    a.e(f"v_readlane_b32 s54, v{GA}, 63")
    a.e(f"v_mov_b32 v{T+1}, s54")
    a.e(f"v_cvt_pk_bf16_f32 v{T+1}, v{T+1}, v{T+1}")
    a.e(f"v_and_b32 v{T+1}, v{MHI}, v{T+1}")
    a.e(f"v_mul_f32 v{T+1}, 0x{LOG2E ^ 0x80000000:08x}, v{T+1}")
    a.e(f"v_exp_f32 v{T+1}, v{T+1}")
    a.e(f"v_add_f32 v{T+1}, 1.0, v{T+1}")
    a.e(f"v_rcp_f32 v{T+1}, v{T+1}")
    a.e(f"v_cvt_pk_bf16_f32 v{T+1}, v{T+1}, v{T+1}")
    a.e(f"v_and_b32 v{T+2}, v{MHI}, v{T+1}")
    a.e(f"v_sub_f32 v{T+2}, 1.0, v{T+2}")
    a.e(f"v_cvt_pk_bf16_f32 v{T+2}, v{T+2}, v{T+2}")
    a.e("s_and_b32 s55, s42, 1")
    a.e("s_cmp_eq_u32 s55, 0")
    a.e("s_mov_b32 s56, 0xffff")
    a.e("s_cselect_b32 s55, 0xffff0000, s56")
    a.e(f"v_and_b32 v{T+1}, s55, v{T+1}")
    a.e(f"v_and_b32 v{T+2}, s55, v{T+2}")
    a.e("s_lshl_b32 s56, s45, 2")
    a.e(f"s_add_u32 s56, s56, {WS_G}")
    a.e(f"v_mov_b32 v{T+3}, s56")
    a.e(f"v_add_u32 v{T+4}, 8192, v{T+3}")
    a.e("s_mov_b64 s[58:59], exec")
    a.e("s_mov_b64 exec, 1")
    a.e(f"global_store_dword v{T+3}, v{T+1}, s[30:31]")
    a.e(f"global_store_dword v{T+4}, v{T+2}, s[30:31]")
    a.e("s_mov_b64 exec, s[58:59]")
    a.wait_vm(tpar)
    Are, Aim, Bre, Bim, Cre, Cim, LDT = [PAR + i for i in range(7)]
    for r in range(7):
        a.e(f"v_lshlrev_b32 v{PAR+r}, 16, v{PAR+r}")
    DT, RHO, PHI = 20, 21, 22
    C = 24
    a.e(f"v_mul_f32 v{DT}, 0x{LOG2E:08x}, v{LDT}")
    a.e(f"v_exp_f32 v{DT}, v{DT}")
    a.e(f"v_cvt_pk_bf16_f32 v{DT}, v{DT}, v{DT}")
    a.e(f"v_and_b32 v{DT}, v{MHI}, v{DT}")
    a.e(f"v_mul_f32 v{RHO}, v{DT}, v{Are}")
    a.e(f"v_mul_f32 v{PHI}, v{DT}, v{Aim}")
    a.e(f"v_mul_f32 v{RHO}, 0x{LOG2E:08x}, v{RHO}")
    a.e(f"v_mul_f32 v{PHI}, 0.15915494, v{PHI}")
    a.e(f"v_mul_f32 v{Bre}, v{DT}, v{Bre}")
    a.e(f"v_mul_f32 v{Bim}, v{DT}, v{Bim}")
    a.e(f"v_mul_f32 v{C}, v{Cre}, v{Bre}")
    a.e(f"v_mul_f32 v{C+1}, v{Cre}, v{Bim}")
    a.e(f"v_fma_f32 v{C}, -v{Cim}, v{Bim}, v{C}")
    a.e(f"v_fma_f32 v{C+1}, v{Cim}, v{Bre}, v{C+1}")
    TA = 23
    a.e(f"v_mul_u32_u24 v{TA}, {TABSZ}, v12")
    a.e(f"v_lshl_add_u32 v{TA}, v13, 2, v{TA}")
    a.e(f"v_add_u32 v{TA}, {TAB0}, v{TA}")
    t0, t1 = 26, 27
    def put(entry, pair, neg, tmp):
        a.e(f"v_cvt_pk_bf16_f32 v{tmp}, v{pair}, {'-' if neg else ''}v{pair+1}")
        a.e(f"ds_write_b32 v{TA}, v{tmp} offset:{entry*ENT}")
    a.e("s_bitcmp1_b32 s42, 1")
    a.e("s_cbranch_scc1 K1_HALF1")
    Z4, Z8, Z128, W, S3, TM1, TM2 = 28, 30, 32, 34, 36, 38, 40
    PT = 42
    cpow(a, Z4, RHO, PHI, 4, t0, t1, 60)
    cpow(a, Z128, RHO, PHI, 128, t0, t1, 60)
    cpow(a, S3, RHO, PHI, 1024, t0, t1, 60)
    cmul(a, Z8, Z4, Z4, TM1)
    cmul(a, S3, S3, C, TM2)
    a.e(f"v_mov_b32 v{W}, 1.0"); a.e(f"v_mov_b32 v{W+1}, 0")
    put(0, W, False, PT)
    put(24 + 32 + 0, S3, True, PT + 1)
    for j in range(1, 17):
        cmul(a, W, W, Z4, TM1)
        if j <= 8: cmul(a, S3, S3, Z128, TM2)
        put(j, W, False, PT + (j & 1) * 2)
        if j <= 8: put(24 + 32 + j, S3, True, PT + 1 + (j & 1) * 2)
    for m in range(1, 8):
        cmul(a, W, W, Z8, TM1)
        put(16 + m, W, False, PT + (m & 1) * 2)
    a.e("s_branch K1_TABDONE")
    a.label("K1_HALF1")
    Z1, Z64 = 28, 30
    V0, V1, V2, V3 = 32, 34, 36, 38
    TT = [40, 42, 44, 46]; PT = 48
    cpow(a, Z1, RHO, PHI, 1, t0, t1, 60)
    cpow(a, Z64, RHO, PHI, 64, t0, t1, 60)
    a.e(f"v_mov_b32 v{V0}, v{C}"); a.e(f"v_mov_b32 v{V0+1}, v{C+1}")
    cmul(a, V1, V0, Z1, TT[0])
    cmul(a, V2, V1, Z1, TT[0])
    cmul(a, V3, V2, Z1, TT[0])
    VV = [V0, V1, V2, V3]
    for i in range(16):
        ps = [0, 1, 2, 3] if i < 4 else ([0, 2] if i < 8 else [0])
        if i > 0:
            for p in ps: cmul(a, VV[p], VV[p], Z64, TT[p])
        for p in ps:
            if i < 4: ent = 24 + 4 * i + p
            elif i < 8: ent = 24 + 16 + 2 * (i - 4) + p // 2
            else: ent = 24 + 16 + i
            put(ent, VV[p], True, PT + p)
    a.label("K1_TABDONE")
    a.e("s_nop 1")
    a.e("v_and_b32 v28, 15, v2")
    a.e("v_lshrrev_b32 v29, 4, v2")
    a.e(f"s_mul_i32 s52, s49, {TABSZ}")
    a.e(f"s_add_u32 s52, s52, {TAB0}")
    a.e("s_lshl_b32 s53, s48, 4")
    a.e("s_add_u32 s53, s53, 24")
    a.e("v_add_u32 v30, s53, v28")
    a.e(f"v_mul_u32_u24 v30, {ENT}, v30")
    a.e("v_lshl_add_u32 v30, v29, 4, v30")
    a.e("v_add_u32 v30, s52, v30")
    a.e("v_lshlrev_b32 v31, 1, v28")
    a.e("v_add_u32 v32, 8, v28")
    a.e("v_cmp_gt_u32 vcc, 8, v28")
    a.e("v_cndmask_b32 v31, v32, v31, vcc")
    a.e("s_cmp_eq_u32 s48, 2")
    a.e("s_cselect_b64 s[56:57], -1, 0")
    a.e("v_cndmask_b32 v31, v28, v31, s[56:57]")
    a.e(f"v_mul_u32_u24 v31, {ENT}, v31")
    a.e("v_lshl_add_u32 v31, v29, 4, v31")
    a.e("v_add_u32 v31, s52, v31")
    a.e("s_cmp_eq_u32 s48, 1")
    a.e("s_cbranch_scc1 K1_FT1")
    a.e("s_cmp_eq_u32 s48, 2")
    a.e("s_cbranch_scc1 K1_FT2")
    a.e("v_lshlrev_b32 v32, 6, v29")
    a.e("v_lshl_add_u32 v32, v28, 2, v32")
    for e in range(1, 4): a.e(f"v_add_u32 v{32+e}, {e}, v32")
    a.e("s_branch K1_FDONE")
    a.label("K1_FT1")
    a.e("v_cmp_gt_u32 vcc, 2, v29")
    a.e("v_lshlrev_b32 v36, 7, v29")
    a.e("v_add_u32 v36, 256, v36")
    a.e("v_lshlrev_b32 v37, 8, v29")
    a.e("v_cndmask_b32 v32, v37, v36, vcc")
    a.e("v_lshl_add_u32 v32, v28, 2, v32")
    for e, (o1, o2) in enumerate(((2, 64), (64, 128), (66, 192)), start=1):
        a.e(f"v_mov_b32 v36, {o2}")
        a.e(f"v_mov_b32 v37, {o1}")
        a.e(f"v_cndmask_b32 v36, v36, v37, vcc")
        a.e(f"v_add_u32 v{32+e}, v32, v36")
    a.e("s_branch K1_FDONE")
    a.label("K1_FT2")
    a.e("v_lshlrev_b32 v32, 9, v29")
    a.e("v_lshl_add_u32 v32, v28, 3, v32")
    a.e("v_add_u32 v32, 1024, v32")
    for e in range(1, 4): a.e(f"v_add_u32 v{32+e}, {128*e}, v32")
    a.label("K1_FDONE")
    for e in range(4):
        a.e(f"v_lshlrev_b32 v{32+e}, 1, v{32+e}")
        a.e(f"v_add_u32 v{32+e}, s51, v{32+e}")
    a.wait_ds_all()
    a.e("s_barrier")
    a.e("s_cmp_eq_u32 s48, 3")
    a.e("s_cbranch_scc1 K1_NOMM")
    FA, FB = 40, 72
    FB = 120
    ACC = 36
    toks = []
    for ks in range(8):
        a.e(f"ds_read_b128 v[{FA+4*ks}:{FA+4*ks+3}], v30 offset:{64*ks}")
        toks.append(a.e(f"ds_read_b128 v[{FB+4*ks}:{FB+4*ks+3}], v31 offset:{64*ks}"))
    for i in range(4): a.e(f"v_mov_b32 v{ACC+i}, 0")
    for ks in range(8):
        a.wait_ds(toks[ks])
        a.e(f"v_mfma_f32_16x16x32_bf16 v[{ACC}:{ACC+3}], v[{FA+4*ks}:{FA+4*ks+3}], v[{FB+4*ks}:{FB+4*ks+3}], v[{ACC}:{ACC+3}]")
    a.e(f"v_cvt_pk_bf16_f32 v28, v{ACC}, v{ACC+1}")
    a.e(f"v_cvt_pk_bf16_f32 v29, v{ACC+2}, v{ACC+3}")
    a.e("ds_write_b16 v32, v28")
    a.e("ds_write_b16_d16_hi v33, v28")
    a.e("ds_write_b16 v34, v29")
    a.e("ds_write_b16_d16_hi v35, v29")
    a.label("K1_NOMM")
    a.wait_ds_all()
    a.e("s_barrier")
    for k in range(4):
        a.e(f"ds_read_u16 v{28+k}, v{XA+2*k}")
        a.e(f"ds_read_u16_d16_hi v{32+k}, v{XA+2*k+1}")
    a.e("s_lshl_b32 s52, s2, 1")
    a.e("s_add_u32 s52, s52, s49")
    a.e("s_lshl_b32 s52, s52, 12")
    a.e(f"s_add_u32 s52, s52, {WS_KB}")
    a.e("v_lshlrev_b32 v17, 1, v17")
    a.e("v_add_u32 v17, s52, v17")
    a.wait_ds_all()
    for k in range(4): a.e(f"v_or_b32 v{28+k}, v{28+k}, v{32+k}")
    a.e("global_store_dwordx4 v17, v[28:31], s[30:31]")
    a.label("K1_END")
    a.e("s_endpgm")
    return kn

XRS = 4608
XR0 = 0
KC0 = 4 * XRS
KCS = 8320
GM = KC0 + 4 * KCS
PX = GM + 16384
GAB = PX + 32768
K2_LDS = GAB + 16384

def k2(a, passes, NB=8, LOOK=10, RATE=2):
    kn = "conv_kernel"
    a.raw(f".globl {kn}\n.p2align 8\n.type {kn},@function\n{kn}:")
    a.e("s_cmp_ge_u32 s2, 256")
    a.e("s_cbranch_scc1 K2_END")
    a.e("s_load_dwordx4 s[4:7], s[0:1], 32")
    a.e("s_load_dwordx2 s[8:9], s[0:1], 112")
    a.e("s_load_dwordx2 s[10:11], s[0:1], 128")
    a.e("s_load_dwordx2 s[12:13], s[0:1], 144")
    a.e("v_lshrrev_b32 v1, 6, v0")
    a.e("v_and_b32 v2, 63, v0")
    a.e("v_readfirstlane_b32 s14, v1")
    a.e("s_and_b32 s15, s2, 7")
    a.e("s_lshr_b32 s16, s2, 3")
    a.e("s_lshl_b32 s15, s15, 5")
    a.e("s_add_u32 s15, s15, s16")
    a.e("s_lshl_b32 s15, s15, 1")
    a.e("s_and_b32 s16, s14, 3")
    a.e("s_lshr_b32 s17, s14, 2")
    a.e("s_and_b32 s18, s16, 1")
    a.e("s_lshr_b32 s19, s16, 1")
    a.e("s_add_u32 s20, s15, s19")
    a.e("s_lshl_b32 s21, s20, 12")
    a.e("s_lshl_b32 s22, s17, 11")
    a.e("s_add_u32 s21, s21, s22")
    a.e("v_lshlrev_b32 v3, 4, v2")
    a.e("v_add_u32 v4, s21, v3")
    a.e("s_waitcnt lgkmcnt(0)")
    a.e(f"s_add_u32 s24, s12, {WS_KB}")
    a.e("s_addc_u32 s25, s13, 0")
    a.e("s_cmp_eq_u32 s18, 0")
    a.e("s_cselect_b32 s28, s4, s24")
    a.e("s_cselect_b32 s29, s5, s25")
    a.e("s_and_b32 s29, s29, 0xffff")
    a.e("s_mov_b32 s30, 0x200000"); a.e("s_mov_b32 s31, 0x20000")
    a.e("s_mov_b32 s32, s12"); a.e("s_and_b32 s33, s13, 0xffff"); a.e(f"s_mov_b32 s34, {WS_USED}"); a.e("s_mov_b32 s35, 0x20000")
    a.e("s_mov_b32 s36, s10"); a.e("s_and_b32 s37, s11, 0xffff"); a.e("s_mov_b32 s38, 0x200000"); a.e("s_mov_b32 s39, 0x20000")
    a.e("s_cmp_eq_u32 s18, 0")
    a.e("s_cselect_b32 s40, s6, s8")
    a.e("s_cselect_b32 s41, s7, s9")
    a.e("s_lshl_b32 s42, s15, 1")
    a.e("s_load_dword s43, s[40:41], s42")
    T0, T1 = 64, 72
    for it in range(2):
        a.e(f"buffer_load_dwordx4 v[{T0+4*it}:{T0+4*it+3}], v4, s[28:31], 0 offen offset:{1024*it}")
        tk = a.e(f"buffer_load_dwordx4 v[{T1+4*it}:{T1+4*it+3}], v4, s[28:31], 0 offen offset:{1024*it+4}")
    a.e("s_cmp_eq_u32 s18, 0")
    a.e(f"s_cselect_b32 s44, {WS_XKV}, {WS_XQ}")
    a.e("s_add_u32 s44, s44, s21")
    a.e(f"s_mul_i32 s45, s16, {XRS}")
    a.e("s_add_u32 s46, s45, s22")
    for it in range(2):
        a.e(f"s_add_u32 m0, s46, {1024*it}")
        a.e(f"s_add_u32 s47, s44, {1024*it}")
        a.e(f"buffer_load_dwordx4 v3, s[32:35], s47 offen lds")
    a.e("s_lshl_b32 s46, s14, 11")
    for it in range(2):
        a.e(f"s_add_u32 s47, s46, {GM + 1024*it}")
        a.e("s_mov_b32 m0, s47")
        a.e(f"s_add_u32 s47, s46, {WS_G + 1024*it}")
        a.e(f"buffer_load_dwordx4 v3, s[32:35], s47 offen lds")
    J, Q4 = 5, 6
    a.e(f"v_and_b32 v{J}, 15, v2")
    a.e(f"v_lshrrev_b32 v{Q4}, 4, v2")
    vB, vX, vQ, vG, vPX, vGW, vCMB, vOUT = 8, 9, 10, 11, 12, 13, 14, 15
    vA = [16, 17, 18, 19]
    ONES, QML, QOL, QMH, QOH, DLO, DHI = 20, 21, 22, 23, 24, 25, 26
    a.e("s_lshl_b32 s46, s17, 8")
    a.e("s_add_u32 s46, s46, s45")
    a.e("s_add_u32 s46, s46, 480")
    a.e(f"v_lshlrev_b32 v7, 5, v{J}")
    a.e(f"v_lshlrev_b32 v{vB}, 4, v{Q4}")
    a.e(f"v_sub_u32 v{vB}, v{vB}, v7")
    a.e(f"v_add_u32 v{vB}, s46, v{vB}")
    a.e(f"v_lshl_add_u32 v27, v{Q4}, 3, v7")
    a.e("s_add_u32 s46, s45, 504")
    a.e(f"v_sub_u32 v{vX}, s46, v27")
    a.e("s_or_b32 s46, s16, 1")
    a.e(f"s_mul_i32 s46, s46, {XRS}")
    a.e("s_add_u32 s46, s46, 504")
    a.e(f"v_sub_u32 v{vQ}, s46, v27")
    a.e(f"v_lshlrev_b32 v28, 1, v27")
    a.e("s_lshl_b32 s46, s18, 13")
    a.e(f"s_add_u32 s46, s46, {GM}")
    a.e(f"v_add_u32 v{vG}, s46, v28")
    a.e("s_lshl_b32 s46, s16, 13")
    a.e(f"s_add_u32 s46, s46, {PX}")
    a.e(f"v_add_u32 v{vPX}, s46, v3")
    a.e("s_lshl_b32 s46, s16, 12")
    a.e(f"s_add_u32 s46, s46, {GAB}")
    a.e(f"v_add_u32 v{vGW}, s46, v27")
    a.e("s_lshl_b32 s46, s16, 6")
    a.e(f"v_add_u32 v28, s46, v2")
    a.e(f"v_lshlrev_b32 v{vCMB}, 1, v28")
    a.e(f"v_add_u32 v{vCMB}, {GAB}, v{vCMB}")
    a.e(f"v_lshlrev_b32 v{vOUT}, 10, v28")
    a.e("s_lshl_b32 s46, s15, 1")
    a.e(f"v_add_u32 v{vOUT}, s46, v{vOUT}")
    a.e("s_lshl_b32 s46, s17, 7")
    a.e("s_sub_u32 s46, s46, 15")
    a.e(f"v_lshl_add_u32 v28, v{Q4}, 3, v{J}")
    a.e("v_add_u32 v28, s46, v28")
    a.e("v_lshlrev_b32 v28, 1, v28")
    a.e(f"s_mul_i32 s46, s16, {KCS}")
    a.e(f"s_add_u32 s46, s46, {KC0 + 32}")
    a.e(f"v_and_b32 v29, 1, v{J}")
    a.e(f"v_cmp_eq_u32 vcc, 1, v29")
    a.e(f"v_mov_b32 v29, {4160 - 2}")
    a.e(f"v_cndmask_b32 v29, v29, 0, vcc")
    a.e(f"v_add3_u32 v{vA[0]}, v28, v29, s46")
    for i in range(1, 4): a.e(f"v_add_u32 v{vA[i]}, {1024*i}, v{vA[0]}")
    a.e(f"v_mov_b32 v{ONES}, 0x3f803f80")
    a.e("s_cmp_eq_u32 s18, 0")
    a.e("s_cselect_b32 s47, 0xffff, 0");        a.e(f"v_mov_b32 v{QML}, s47")
    a.e("s_cselect_b32 s47, 0, 0x3f80");        a.e(f"v_mov_b32 v{QOL}, s47")
    a.e("s_cselect_b32 s47, 0xffff0000, 0");    a.e(f"v_mov_b32 v{QMH}, s47")
    a.e("s_cselect_b32 s47, 0, 0x3f800000");    a.e(f"v_mov_b32 v{QOH}, s47")
    CMB = [28, 29, 30, 31]
    a.e("s_add_u32 s47, s46, s22")
    a.e("v_add_u32 v7, s47, v3")
    a.e("v_mov_b32 v80, 0"); a.e("v_mov_b32 v81, 0")
    a.e("v_lshlrev_b32 v82, 3, v2")
    a.e("s_add_u32 s47, s45, 4096")
    a.e("v_add_u32 v82, s47, v82")
    a.e("ds_write_b64 v82, v[80:81]")
    a.e("s_waitcnt lgkmcnt(0)")
    a.ds_done = a.ds_issued
    a.e("s_lshl_b32 s47, s19, 4")
    a.e("s_lshr_b32 s43, s43, s47")
    a.e("s_and_b32 s43, s43, 0xffff")
    a.e(f"v_mov_b32 v{DLO}, s43")
    a.e("s_lshl_b32 s43, s43, 16")
    a.e(f"v_mov_b32 v{DHI}, s43")
    a.wait_vm(tk)
    O = 84
    for it in range(2):
        for j in range(4):
            a.e(f"v_alignbit_b32 v{O+4*it+j}, v{T1+4*it+j}, v{T0+4*it+j}, 16")
        a.e(f"ds_write_b128 v7, v[{T0+4*it}:{T0+4*it+3}] offset:{1024*it}")
        a.e(f"ds_write_b128 v7, v[{O+4*it}:{O+4*it+3}] offset:{4160+1024*it}")
    a.e("s_cmp_lg_u32 s17, 0")
    a.e("s_cbranch_scc1 K2_NOPAD")
    a.e(f"v_readfirstlane_b32 s47, v{T0}")
    a.e("s_lshl_b32 s47, s47, 16")
    a.e("v_lshlrev_b32 v82, 2, v2")
    a.e("s_sub_u32 s48, s46, 32")
    a.e("v_add_u32 v82, s48, v82")
    a.e("v_mov_b32 v83, s47")
    a.e("v_cmp_eq_u32 vcc, 7, v2")
    a.e("v_cndmask_b32 v83, 0, v83, vcc")
    a.e("s_mov_b64 s[50:51], exec")
    a.e("s_mov_b64 exec, 0xff")
    a.e("ds_write_b32 v82, v80")
    a.e("ds_write_b32 v82, v83 offset:4160")
    a.e("s_mov_b64 exec, s[50:51]")
    a.label("K2_NOPAD")
    for r in CMB: a.e(f"v_mov_b32 v{r}, 0")
    a.wait_all()
    a.e("s_barrier")
    a.e("s_cmp_lg_u32 s17, 0")
    a.e("s_cbranch_scc1 K2_H1")
    ctx = dict(vB=vB, vX=vX, vQ=vQ, vG=vG, vPX=vPX, vGW=vGW, vCMB=vCMB, vOUT=vOUT, vA=vA, ONES=ONES, QML=QML, QOL=QOL,
               QMH=QMH, QOH=QOH, DLO=DLO, DHI=DHI, CMB=CMB)
    k2_main(a, 0, passes, NB, LOOK, RATE, ctx)
    a.e("s_endpgm")
    a.label("K2_H1")
    k2_main(a, 1, passes, NB, LOOK, RATE, ctx)
    a.label("K2_END")
    a.e("s_endpgm")
    return kn

def k2_main(a, h, passes, NB, LOOK, RATE, c):
    ACC = 32
    BR = 64
    EP = BR + 4 * NB
    assert EP + 30 <= 128
    def areg(cidx, rho): return 4 * (cidx * 4 + rho)
    mf = []
    loads = []
    bseq = 0
    seenA = set()
    first_use = {}
    pass_end = []
    for P in passes:
        thi = max(P)
        for rho in range(4):
            for dl in range(thi + 1):
                users = [t for t in P if t - dl >= 0]
                if not users: continue
                need = len(mf)
                for t in users:
                    cidx = t - dl
                    if (cidx, rho) not in seenA:
                        seenA.add((cidx, rho))
                        loads.append(dict(kind="A", c=cidx, rho=rho, need=len(mf) + users.index(t)))
                loads.append(dict(kind="B", dl=dl, rho=rho, need=need, b=bseq))
                for t in users:
                    mf.append(dict(t=t, c=t - dl, rho=rho, b=bseq))
                bseq += 1
        pass_end.append(len(mf))
    lastuse = {}
    for i, m in enumerate(mf): lastuse[m["b"]] = i
    tokA = {}; tokB = {}
    li = 0
    side = []
    started = set()
    def enqueue_pass(pi):
        P = passes[pi]
        send = [t for t in P if t % 2 != h]
        mine = [t for t in P if t % 2 == h]
        S = side
        S.append(("gap", 3))
        wt = [None]
        for t in send:
            def f(t=t): wt[0] = a.e(f"ds_write_b128 v{c['vPX']}, v[{ACC+4*t}:{ACC+4*t+3}] offset:{1024*t}")
            S.append(f)
        S.append(("gap", 2))
        def bar1():
            a.wait_ds(wt[0]); a.e("s_barrier")
        S.append(bar1)
        wt2 = [None]
        for k, t in enumerate(mine):
            E = EP
            PXR, XO, QM, GG = E, E + 4, E + 6, E + 8
            TT, XX, SS = E + 12, E + 16, E + 20
            S10, S32 = E + 24, E + 25
            tk = [None]
            S.append(lambda t=t: a.e(f"ds_read_b128 v[{PXR}:{PXR+3}], v{c['vPX']} offset:{1024*t}"))
            S.append(lambda t=t: a.e(f"ds_read_b64 v[{XO}:{XO+1}], v{c['vX']} offset:{512*(7-t)}"))
            S.append(lambda t=t: a.e(f"ds_read_b64 v[{QM}:{QM+1}], v{c['vQ']} offset:{512*(7-t)}"))
            def rg(t=t, tk=tk): tk[0] = a.e(f"ds_read_b128 v[{GG}:{GG+3}], v{c['vG']} offset:{1024*t}")
            S.append(rg)
            S.append(("gap", 4))
            S.append(lambda tk=tk: a.wait_ds(tk[0]))
            ac = ACC + 4 * t
            for e in range(4):
                S.append(lambda e=e, ac=ac: a.e(f"v_add_f32 v{PXR+e}, v{ac+e}, v{PXR+e}"))
            S.append(lambda: a.e(f"v_dot2_f32_bf16 v{TT+3}, v{XO}, v{c['DLO']}, 0"))
            S.append(lambda: a.e(f"v_dot2_f32_bf16 v{TT+2}, v{XO}, v{c['DHI']}, 0"))
            S.append(lambda: a.e(f"v_dot2_f32_bf16 v{TT+1}, v{XO+1}, v{c['DLO']}, 0"))
            S.append(lambda: a.e(f"v_dot2_f32_bf16 v{TT+0}, v{XO+1}, v{c['DHI']}, 0"))
            for e in range(4):
                S.append(lambda e=e: a.e(f"v_cvt_pk_bf16_f32 v{XX+e}, v{PXR+e}, v{TT+e}"))
            for e in range(4):
                S.append(lambda e=e: a.e(f"v_dot2_f32_bf16 v{SS+e}, v{XX+e}, v{c['ONES']}, 0"))
            S.append(lambda: a.e(f"v_cvt_pk_bf16_f32 v{S10}, v{SS+1}, v{SS+0}"))
            S.append(lambda: a.e(f"v_cvt_pk_bf16_f32 v{S32}, v{SS+3}, v{SS+2}"))
            S.append(lambda: a.e(f"v_and_or_b32 v{TT+3}, v{QM}, v{c['QML']}, v{c['QOL']}"))
            S.append(lambda: a.e(f"v_and_or_b32 v{TT+2}, v{QM}, v{c['QMH']}, v{c['QOH']}"))
            S.append(lambda: a.e(f"v_and_or_b32 v{TT+1}, v{QM+1}, v{c['QML']}, v{c['QOL']}"))
            S.append(lambda: a.e(f"v_and_or_b32 v{TT+0}, v{QM+1}, v{c['QMH']}, v{c['QOH']}"))
            S.append(lambda: a.e(f"v_dot2_f32_bf16 v{XX+3}, v{S32}, v{TT+3}, 0"))
            S.append(lambda: a.e(f"v_dot2_f32_bf16 v{XX+2}, v{S32}, v{TT+2}, 0"))
            S.append(lambda: a.e(f"v_dot2_f32_bf16 v{XX+1}, v{S10}, v{TT+1}, 0"))
            S.append(lambda: a.e(f"v_dot2_f32_bf16 v{XX+0}, v{S10}, v{TT+0}, 0"))
            S.append(lambda: a.e(f"v_cvt_pk_bf16_f32 v{S10}, v{XX+1}, v{XX+0}"))
            S.append(lambda: a.e(f"v_cvt_pk_bf16_f32 v{S32}, v{XX+3}, v{XX+2}"))
            S.append(lambda: a.e(f"v_dot2_f32_bf16 v{SS+0}, v{S10}, v{GG+0}, 0"))
            S.append(lambda: a.e(f"v_dot2_f32_bf16 v{SS+1}, v{S10}, v{GG+1}, 0"))
            S.append(lambda: a.e(f"v_dot2_f32_bf16 v{SS+2}, v{S32}, v{GG+2}, 0"))
            S.append(lambda: a.e(f"v_dot2_f32_bf16 v{SS+3}, v{S32}, v{GG+3}, 0"))
            S.append(lambda: a.e(f"v_cvt_pk_bf16_f32 v{TT+0}, v{SS+0}, v{SS+1}"))
            S.append(lambda: a.e(f"v_cvt_pk_bf16_f32 v{TT+1}, v{SS+2}, v{SS+3}"))
            def wr(t=t): wt2[0] = a.e(f"ds_write_b64 v{c['vGW']}, v[{TT}:{TT+1}] offset:{512*t}")
            S.append(wr)
        S.append(("gap", 2))
        def bar2():
            a.wait_ds(wt2[0]); a.e("s_barrier")
        S.append(bar2)
        for t in mine:
            tk = [None]
            CM = c["CMB"]
            for cc2 in range(4):
                def rd(cc2=cc2, t=t, tk=tk): tk[0] = a.e(f"ds_read_u16_d16_hi v{CM[cc2]}, v{c['vCMB']} offset:{4096*cc2+512*t}")
                S.append(rd)
            S.append(("gap", 4))
            S.append(lambda tk=tk: a.wait_ds(tk[0]))
            E = EP + 26
            S.append(lambda: a.e(f"v_add_f32 v{E}, v{CM[0]}, v{CM[1]}"))
            S.append(lambda: a.e(f"v_add_f32 v{E+1}, v{CM[2]}, v{CM[3]}"))
            S.append(lambda: a.e(f"v_cvt_pk_bf16_f32 v{E}, v{E}, v{E+1}"))
            S.append(lambda t=t: a.e(f"s_mov_b32 s52, {t*262144}"))
            S.append(lambda: a.e(f"buffer_store_dword v{E}, v{c['vOUT']}, s[36:39], s52 offen"))
    def run_side(n):
        k = 0
        while side and k < n:
            it = side[0]
            if isinstance(it, tuple):
                if it[1] <= 0: side.pop(0); continue
                side[0] = ("gap", it[1] - 1)
                return
            side.pop(0); it(); k += 1
    for i, m in enumerate(mf):
        while li < len(loads):
            L = loads[li]
            if L["need"] > i + LOOK: break
            if L["kind"] == "B":
                prev = L["b"] - NB
                if prev >= 0 and lastuse[prev] >= i: break
                r = BR + 4 * (L["b"] % NB)
                tokB[L["b"]] = a.e(f"ds_read_b128 v[{r}:{r+3}], v{c['vB']} offset:{64*L['rho'] + 512*(7-L['dl'])}")
            else:
                r = areg(L["c"], L["rho"]); o = 128 * (L["c"] & 1) + 16 * L["rho"]
                va = c["vA"][L["c"] >> 1]
                a.e(f"ds_read2_b32 a[{r}:{r+1}], v{va} offset0:{o} offset1:{o+1}")
                tokA[(L["c"], L["rho"])] = a.e(f"ds_read2_b32 a[{r+2}:{r+3}], v{va} offset0:{o+2} offset1:{o+3}")
            li += 1
        a.wait_ds(tokB[m["b"]]); a.wait_ds(tokA[(m["c"], m["rho"])])
        ar = areg(m["c"], m["rho"]); br = BR + 4 * (m["b"] % NB); ac = ACC + 4 * m["t"]
        src = f"v[{ac}:{ac+3}]" if m["t"] in started else "0"
        started.add(m["t"])
        a.e(f"v_mfma_f32_16x16x32_bf16 v[{ac}:{ac+3}], a[{ar}:{ar+3}], v[{br}:{br+3}], {src}")
        if (i + 1) in pass_end: enqueue_pass(pass_end.index(i + 1))
        run_side(RATE)
    while side:
        if isinstance(side[0], tuple): side.pop(0); continue
        run_side(1000)

def build(passes, NB=8, LOOK=10, RATE=2):
    a = Asm()
    hdr = open("cdna_kernels/" + NAME + ".s.ref").read().split("\n")
    head = [l for l in hdr if l.startswith(";") and "@launch" not in l and "Override launch" not in l and "grid=ceil" not in l]
    a.raw("\n".join(head[:21]))
    a.raw(f"; @launch kernel=prep_kernel grid=(256,1,1) block=(512,1,1) lds={K1_LDS}")
    a.raw(f"; @launch kernel=conv_kernel grid=(256,1,1) block=(512,1,1) lds={K2_LDS}")
    a.raw('.amdgcn_target "amdgcn-amd-amdhsa--gfx950"\n.text')
    k1(a)
    a2 = a
    k2(a2, passes, NB, LOOK, RATE)
    a.raw('.section .rodata,"a"')
    for kn, nv, acc in (("prep_kernel", 160, 160), ("conv_kernel", 256, 128)):
        a.raw(f""".p2align 6
.amdhsa_kernel {kn}
  .amdhsa_next_free_vgpr {nv}
  .amdhsa_next_free_sgpr 64
  .amdhsa_accum_offset {acc}
  .amdhsa_group_segment_fixed_size 0
  .amdhsa_kernarg_size 152
  .amdhsa_user_sgpr_count 2
  .amdhsa_user_sgpr_kernarg_segment_ptr 1
  .amdhsa_system_sgpr_workgroup_id_x 1
.end_amdhsa_kernel""")
    return a.finalize()

if __name__ == "__main__":
    out = sys.argv[1] if len(sys.argv) > 1 else "cdna_kernels/" + NAME + ".s"
    passes = [[0, 1], [2, 3], [4, 5], [6, 7]]
    open(out, "w").write(build(passes))
    print("wrote", out)
```

```python
import re

TRANS = ("v_exp_f32", "v_log_f32", "v_rcp_f32", "v_rsq_f32", "v_sqrt_f32", "v_sin_f32", "v_cos_f32")

def parse_reg(tok):
    tok = tok.strip()
    neg = tok.startswith("-")
    if neg: tok = tok[1:]
    if tok.startswith("abs(") and tok.endswith(")"): tok = tok[4:-1]
    if tok.startswith("|") and tok.endswith("|"): tok = tok[1:-1]
    m = re.fullmatch(r"([vas])(\d+)", tok)
    if m: return [(m.group(1), int(m.group(2)))]
    m = re.fullmatch(r"([vas])\[(\d+):(\d+)\]", tok)
    if m: return [(m.group(1), i) for i in range(int(m.group(2)), int(m.group(3)) + 1)]
    if tok == "vcc": return [("s", 106), ("s", 107)]
    if tok == "exec": return [("s", 126), ("s", 127)]
    if tok == "m0": return [("s", 124)]
    return []

class Ins:
    __slots__ = ("text", "op", "kind", "wr", "rd", "srcc", "passes", "dpp", "nop")
    def __init__(self, text):
        self.text = text
        body = text.split(";")[0].split("//")[0].strip()
        parts = body.split(None, 1)
        self.op = parts[0]
        rest = parts[1] if len(parts) > 1 else ""
        ops = [o.strip() for o in rest.split(",")] if rest else []
        mods = ""
        if ops:
            sp = ops[-1].split(None, 1)
        mm = re.search(r"\s(offen|idxen|offset:|offset0:|op_sel|neg_lo|neg_hi|row_|quad_perm|wave_|bound_ctrl|lds|sc0|sc1|nt\b|off\b|clamp|mul:|div:|cbsz|abid|blgp|dst_sel|src0_sel|src1_sel|glc)", " " + rest)
        if mm:
            opstr = (" " + rest)[:mm.start()]; mods = (" " + rest)[mm.start():]
        else:
            opstr = rest
        ops = [o.strip() for o in opstr.split(",")] if opstr.strip() else []
        ops = [o for o in ops if o]
        op = self.op
        self.wr = []; self.rd = []; self.srcc = []; self.passes = 0; self.nop = 1
        self.dpp = ("row_" in mods) or ("quad_perm" in mods) or ("wave_" in mods) or op.endswith("_dpp")
        R = lambda i: parse_reg(ops[i]) if i < len(ops) else []
        if op == "s_nop":
            self.kind = "nop"; self.nop = int(ops[0], 0) + 1
        elif op.startswith("v_mfma"):
            self.kind = "mfma"; self.wr = R(0); self.rd = R(1) + R(2) + R(3); self.srcc = R(3)
            self.passes = 8 if "32x32" in op else 4
        elif op.startswith("v_cmp"):
            self.kind = "valu"; self.wr = R(0); self.rd = R(1) + R(2)
        elif op.startswith("v_"):
            self.kind = "valu"; self.wr = R(0)
            self.rd = sum((R(i) for i in range(1, len(ops))), [])
            if op.startswith(("v_fmac", "v_dot2c", "v_mac", "v_pk_fmac")) or "d16" in op: self.rd += R(0)
            if op.startswith("v_cndmask") and len(ops) == 3: self.rd += parse_reg("vcc")
            if op.startswith(("v_add_co", "v_sub_co", "v_addc_co", "v_subb_co")): self.wr += R(1)
            if op.startswith(("v_permlane")): self.wr += R(1); self.rd += R(0)
            if self.dpp: self.rd += R(0)
        elif op.startswith("ds_"):
            self.kind = "ds"
            if op.startswith(("ds_read", "ds_bpermute", "ds_permute", "ds_swizzle")):
                self.wr = R(0); self.rd = sum((R(i) for i in range(1, len(ops))), [])
                if "d16" in op: self.rd += R(0)
            else:
                self.rd = sum((R(i) for i in range(len(ops))), [])
        elif op.startswith(("buffer_", "global_")):
            self.kind = "vmem"
            islds = " lds" in mods or "_lds_" in op
            if ("load" in op) and not islds:
                self.wr = R(0); self.rd = sum((R(i) for i in range(1, len(ops))), [])
            else:
                self.rd = sum((R(i) for i in range(len(ops))), [])
            if islds: self.rd += parse_reg("m0")
        elif op.startswith("s_"):
            self.kind = "salu"
            if op.startswith(("s_cmp", "s_cbranch", "s_branch", "s_waitcnt", "s_barrier", "s_endpgm", "s_setprio", "s_sleep", "s_bitcmp")):
                self.rd = sum((R(i) for i in range(len(ops))), [])
            else:
                self.wr = R(0); self.rd = sum((R(i) for i in range(1, len(ops))), [])
        else:
            self.kind = "other"

class Asm:
    def __init__(self):
        self.lines = []
        self.ds_issued = 0
        self.ds_done = 0
        self.vm_issued = 0
        self.vm_done = 0
    def raw(self, text): self.lines.append(text)
    def label(self, name):
        self.lines.append(name + ":")
    def c(self, text): self.lines.append("  ; " + text)
    def e(self, text):
        ins = Ins(text)
        self.lines.append(ins)
        tok = None
        if ins.kind == "ds":
            tok = self.ds_issued; self.ds_issued += 1
        elif ins.kind == "vmem":
            tok = self.vm_issued; self.vm_issued += 1
        return tok
    def wait_ds(self, tok):
        if tok is None or tok < self.ds_done: return
        n = self.ds_issued - tok - 1
        n = min(n, 15)
        self.e(f"s_waitcnt lgkmcnt({n})")
        self.ds_done = max(self.ds_done, self.ds_issued - n)
    def wait_ds_all(self):
        self.e("s_waitcnt lgkmcnt(0)"); self.ds_done = self.ds_issued
    def wait_vm(self, tok):
        if tok is None or tok < self.vm_done: return
        n = self.vm_issued - tok - 1
        n = min(n, 63)
        self.e(f"s_waitcnt vmcnt({n})")
        self.vm_done = max(self.vm_done, self.vm_issued - n)
    def wait_vm_all(self):
        self.e("s_waitcnt vmcnt(0)"); self.vm_done = self.vm_issued
    def wait_all(self):
        self.e("s_waitcnt vmcnt(0) lgkmcnt(0)"); self.vm_done = self.vm_issued; self.ds_done = self.ds_issued
    def stamp(self, idx):
        if not getattr(self, "stamps", False): return
        sel = getattr(self, "stamp_sel", None)
        if sel is not None and idx not in sel:
            return
        self.e("s_waitcnt lgkmcnt(0)"); self.ds_done = self.ds_issued
        self.e("s_memtime s[98:99]")
        self.e("s_waitcnt lgkmcnt(0)")
        self.e(f"s_mov_b32 s{80+idx}, s98")
    def dump_stamps(self, n, wsreg, off, wgid="s2", wave=None):
        if not getattr(self, "stamps", False): return
        self.e(f"s_lshl_b32 s98, {wgid}, 3")
        self.e(f"s_add_u32 s98, s98, {wave}")
        self.e("s_lshl_b32 s98, s98, 6")
        self.e(f"s_add_u32 s98, s98, {off}")
        for i in range(n):
            self.e(f"v_mov_b32 v1, s{80+i}")
            self.e(f"v_mov_b32 v2, s98")
            self.e(f"global_store_dword v2, v1, s[{wsreg}:{wsreg+1}] offset:{4*i}")
    def reset_counters(self):
        self.ds_done = self.ds_issued; self.vm_done = self.vm_issued

    def finalize(self):
        out = []
        hist = []
        def need(prev, cur):
            n = 0
            pw = set(prev.wr); pr = set(prev.rd)
            cr = set(cur.rd); cw = set(cur.wr)
            pwv = {r for r in pw if r[0] in "va"}; pws = {r for r in pw if r[0] == "s"}
            if prev.kind == "valu":
                if cur.kind == "mfma" and pwv & cr: n = max(n, 2)
                if cur.kind == "valu" and cur.dpp and pwv & cr: n = max(n, 2)
                if cur.kind == "valu" and cur.op.startswith("v_permlane") and pwv & cr: n = max(n, 2)
                if cur.kind == "valu" and cur.op.startswith(("v_readfirstlane", "v_readlane")) and pwv & cr: n = max(n, 1)
                if prev.op.startswith("v_dot"):
                    same = cur.op == prev.op
                    if cur.kind in ("valu", "mfma", "ds", "vmem"):
                        if same and cur.op.startswith("v_dot2_f32"):
                            srcab = set(cur.rd[:2]) if len(cur.rd) >= 2 else set(cur.rd)
                            if pwv & srcab: n = max(n, 3)
                        elif pwv & (cr | cw): n = max(n, 3)
                if prev.op.split("_e")[0] in TRANS or prev.op in TRANS:
                    if cur.kind in ("valu", "mfma", "ds", "vmem") and pwv & cr: n = max(n, 1)
                if pws:
                    if cur.kind == "valu" and pws & cr: n = max(n, 4 if cur.op.startswith(("v_readlane", "v_writelane")) else 2)
                    if cur.kind == "vmem" and pws & cr: n = max(n, 5)
                    if cur.kind == "salu" and pws & cr: n = max(n, 4)
                    if cur.kind in ("mfma",) and ("s", 126) in pws: n = max(n, 4)
            if prev.kind == "mfma":
                D = pwv
                big = {4: (6, 8, 3), 8: (10, 12, 7)}[prev.passes]
                if cur.kind == "mfma":
                    cs = set(cur.srcc)
                    ab = cr - cs if not (set(cur.rd[:len(cur.rd) - len(cur.srcc)]) & cs) else set(cur.rd[:len(cur.rd) - len(cur.srcc)])
                    ab = set(cur.rd[:len(cur.rd) - len(cur.srcc)])
                    if D & ab: n = max(n, big[1])
                    if D & cs and not (cs == D and cur.passes == prev.passes): n = max(n, big[0])
                    if D & cw and not (D & cs): n = max(n, big[1])
                elif cur.kind in ("valu", "ds", "vmem"):
                    if D & (cr | cw): n = max(n, big[1])
                    if cur.kind == "valu" and set(prev.srcc) & cw: n = max(n, big[2])
            if prev.kind == "vmem" and ("store" in prev.op) and ("x4" in prev.op or "x3" in prev.op):
                if cur.kind in ("valu",) and (pr & cw): n = max(n, 2)
                elif cur.kind in ("ds", "vmem", "mfma") and (pr & cw): n = max(n, 1)
            if prev.kind == "salu" and ("s", 124) in pw and cur.kind == "vmem" and ("s", 124) in cr: n = max(n, 1)
            return n
        for ln in self.lines:
            if isinstance(ln, str):
                out.append(ln)
                if ln.endswith(":"):
                    pass
                continue
            cur = ln
            if cur.kind != "nop":
                req = 0
                dist = 0
                for prev in reversed(hist):
                    r = need(prev, cur) - dist
                    if r > req: req = r
                    dist += prev.nop
                    if dist > 20: break
                if req > 0:
                    while req > 0:
                        k = min(req, 16)
                        nop = Ins(f"s_nop {k-1}")
                        out.append("  " + nop.text); hist.append(nop); req -= k
            out.append("  " + cur.text)
            hist.append(cur)
            if len(hist) > 40: hist = hist[-40:]
        return "\n".join(out) + "\n"
```

```python
import sys, struct
from dsl import Asm

NAME = "gated_mix__ssm_conv_h3__ssm_conv_s4__prompt"
KN = NAME + "_kernel"
LOG2E = 0x3fb8aa3b
WS_XQ = 0
WS_XKV = 2 << 20
WS_GP = 4 << 20
WS_FLAGS = (4 << 20) + 65536
WS_EP = (4 << 20) + 131072
WS_USED = (4 << 20) + 131072 + 4096
FLAGC = 0x5a5a5a5a

KT = 0
QT = KT + 72 * 128
KVT = QT + 8192
SKT = KVT + 8192
PAR = SKT + 512
KC0 = PAR + 3072
KCS = 8320
F0 = KC0 + 4 * KCS
FSZ = 6144
TAB0 = F0 + 2 * FSZ
ENT = 544
TABSZ = 72 * ENT
TABEND = TAB0 + 2 * TABSZ
XRS = 4608
XR0 = TAB0
GM = XR0 + 4 * XRS
PX = GM + 8192
GAB = PX + 32768
assert GAB + 16384 <= TABEND
LDS_TOTAL = TABEND

def fbits(x): return struct.unpack("<I", struct.pack("<f", float(x)))[0]

def cmul(a, dst, w, z, tmp):
    a.e(f"v_pk_mul_f32 v[{tmp}:{tmp+1}], v[{w}:{w+1}], v[{z}:{z+1}] op_sel:[0,0] op_sel_hi:[1,0]")
    a.e(f"v_pk_fma_f32 v[{dst}:{dst+1}], v[{w}:{w+1}], v[{z}:{z+1}], v[{tmp}:{tmp+1}] op_sel:[1,1,0] op_sel_hi:[0,1,1] neg_lo:[1,0,0]")

def cpow(a, dst, rho, phi, m, t0, t1):
    a.e(f"v_mul_f32 v{t0}, 0x{fbits(m):08x}, v{rho}")
    a.e(f"v_mul_f32 v{t1}, 0x{fbits(m):08x}, v{phi}")
    a.e(f"v_exp_f32 v{t0}, v{t0}")
    a.e(f"v_fract_f32 v{t1}, v{t1}")
    a.e(f"v_cos_f32 v{dst}, v{t1}")
    a.e(f"v_sin_f32 v{dst+1}, v{t1}")
    a.e(f"v_mul_f32 v{dst}, v{t0}, v{dst}")
    a.e(f"v_mul_f32 v{dst+1}, v{t0}, v{dst+1}")

def kernel(a, cfg):
    passes, NB, LOOK, RATE = cfg["passes"], cfg["NB"], cfg["LOOK"], cfg["RATE"]
    a.raw(f".globl {KN}\n.p2align 8\n.type {KN},@function\n{KN}:")
    a.e("s_cmp_ge_u32 s2, 256")
    a.e("s_cbranch_scc1 L_END")
    a.stamp(0)
    a.e("s_load_dwordx16 s[16:31], s[0:1], 0")
    a.e("s_load_dwordx16 s[32:47], s[0:1], 64")
    a.e("s_load_dwordx4 s[48:51], s[0:1], 128")
    a.e("s_load_dwordx2 s[52:53], s[0:1], 144")
    a.e("v_lshrrev_b32 v1, 6, v0")
    a.e("v_and_b32 v2, 63, v0")
    a.e("v_readfirstlane_b32 s3, v1")
    a.e("s_and_b32 s4, s2, 7")
    a.e("s_lshr_b32 s5, s2, 3")
    a.e("s_lshl_b32 s10, s4, 6")
    a.e("s_lshl_b32 s11, s5, 1")
    a.e("s_add_u32 s10, s10, s11")
    a.e("s_min_u32 s11, s3, 5")
    a.e("s_lshl_b32 s11, s11, 3")
    a.e("s_add_u32 s11, s11, 56")
    a.e("s_load_dwordx2 s[54:55], s[0:1], s11")
    a.e("s_and_b32 s6, s3, 3")
    a.e("s_lshr_b32 s7, s3, 2")
    a.e("s_and_b32 s8, s6, 1")
    a.e("s_lshr_b32 s9, s6, 1")
    a.e("v_lshrrev_b32 v3, 3, v0")
    a.e("v_and_b32 v4, 7, v0")
    a.e("s_lshl_b32 s11, s5, 16")
    a.e("s_lshl_b32 s12, s4, 7")
    a.e("s_add_u32 s11, s11, s12")
    a.e("v_lshlrev_b32 v5, 10, v3")
    a.e("v_lshl_add_u32 v5, v4, 4, v5")
    a.e("v_add_u32 v5, s11, v5")
    a.e("v_subrev_u32 v6, 8192, v5")
    a.e("v_lshlrev_b32 v10, 4, v2")
    a.e("s_lshl_b32 s12, s2, 3")
    a.e("s_add_u32 s12, s12, s3")
    a.e("s_lshl_b32 s13, s12, 10")
    a.e("v_add_u32 v11, s13, v10")
    a.e("s_lshl_b32 s13, s10, 12")
    a.e("v_lshlrev_b32 v12, 4, v0")
    a.e("v_add_u32 v13, s13, v12")
    a.e("s_lshl_b32 s14, s4, 9")
    a.e("s_lshl_b32 s15, s10, 8")
    a.e("s_waitcnt lgkmcnt(0)")
    a.stamp(1)
    a.e("s_mov_b32 s56, s18"); a.e("s_and_b32 s57, s19, 0xffff"); a.e("s_mov_b32 s58, 0x200000"); a.e("s_mov_b32 s59, 0x20000")
    a.e("s_mov_b32 s60, s52"); a.e("s_and_b32 s61, s53, 0xffff"); a.e(f"s_mov_b32 s62, {WS_USED}"); a.e("s_mov_b32 s63, 0x20000")
    a.e("s_mov_b32 s64, s48"); a.e("s_and_b32 s65, s49, 0xffff"); a.e("s_mov_b32 s66, 0x200000"); a.e("s_mov_b32 s67, 0x20000")
    a.e("s_mov_b32 s68, s24"); a.e("s_and_b32 s69, s25, 0xffff"); a.e("s_mov_b32 s70, 0x200000"); a.e("s_mov_b32 s71, 0x20000")
    a.e("s_lshl_b32 s77, s10, 1")
    a.e("s_load_dword s74, s[26:27], s77")
    a.e("s_load_dword s75, s[44:45], s77")
    a.e("s_load_dword s76, s[42:43], s77")
    EPV = 14
    a.e("s_cmp_eq_u32 s3, 0")
    a.e("s_cbranch_scc0 L_R1")
    a.e(f"s_mov_b32 m0, {KT}")
    a.e("s_nop 0")
    a.e("buffer_load_dwordx4 v6, s[56:59], 0 offen lds")
    a.label("L_R1")
    a.e("s_cmp_eq_u32 s3, 1")
    a.e("s_cbranch_scc0 L_R2")
    a.e("v_add_u32 v7, s14, v10")
    a.e("s_mov_b32 exec_hi, 0")
    a.e(f"s_mov_b32 m0, {SKT}")
    a.e("s_nop 0")
    a.e("global_load_lds_dwordx4 v7, s[22:23]")
    a.e("s_mov_b32 exec_hi, -1")
    a.label("L_R2")
    a.e("s_cmp_lt_u32 s3, 6")
    a.e("s_cbranch_scc0 L_R3")
    a.e("s_lshl_b32 s77, s3, 9")
    a.e(f"s_add_u32 m0, s77, {PAR}")
    a.e("v_add_u32 v7, s15, v10")
    a.e("s_mov_b32 exec_hi, 0")
    a.e("global_load_lds_dwordx4 v7, s[54:55]")
    a.e("s_mov_b32 exec_hi, -1")
    a.e("s_branch L_R4")
    a.label("L_R3")
    a.e(f"v_mov_b32 v7, {WS_EP}")
    a.e(f"global_load_dword v{EPV}, v7, s[52:53]")
    a.e("s_cmp_eq_u32 s3, 6")
    a.e("s_cbranch_scc0 L_R3B")
    a.e("v_lshlrev_b32 v7, 21, v2")
    a.e("s_mov_b64 exec, 3")
    a.e("global_load_dword v15, v7, s[52:53]")
    a.e("s_mov_b64 exec, 1")
    a.e("v_mov_b32 v7, 0")
    a.e("global_load_dword v16, v7, s[48:49]")
    a.e("s_mov_b64 exec, -1")
    a.e("s_branch L_R4")
    a.label("L_R3B")
    if cfg.get("prefetch", True):
        a.e("s_getpc_b64 s[78:79]")
        a.label("L_PC")
        a.e("v_lshlrev_b32 v7, 7, v2")
        a.raw("  .set CODE_REM, L_CODE_END - L_PC")
        for i in range(cfg.get("pf_chunks", 3)):
            a.e(f"v_add_u32 v15, {8192*i}, v7")
            a.e(f"v_cmp_gt_u32 vcc, CODE_REM, v15")
            a.e("s_and_b64 exec, exec, vcc") if False else None
            a.e(f"v_cndmask_b32 v15, 0, v15, vcc")
            a.e(f"global_load_dword v{124+i}, v15, s[78:79]")
    a.label("L_R4")
    a.vm_done = a.vm_issued
    V = 20; GQ = 24; GW = 28; T0 = 32; T1 = 36
    a.e("s_lshl_b32 s77, s3, 10")
    a.e(f"s_add_u32 m0, s77, {KT + 1024}")
    a.e("s_nop 0")
    a.e("buffer_load_dwordx4 v5, s[56:59], 0 offen lds")
    a.e(f"s_add_u32 m0, s77, {QT}")
    a.e("s_nop 0")
    a.e("global_load_lds_dwordx4 v5, s[16:17]")
    tv = a.e(f"global_load_dwordx4 v[{V}:{V+3}], v5, s[20:21]")
    a.e(f"global_load_dwordx4 v[{GQ}:{GQ+3}], v11, s[16:17]")
    tg = a.e(f"global_load_dwordx4 v[{GW}:{GW+3}], v10, s[46:47]")
    a.e(f"buffer_load_dwordx4 v[{T0}:{T0+3}], v13, s[68:71], 0 offen")
    tk = a.e(f"buffer_load_dwordx4 v[{T1}:{T1+3}], v13, s[68:71], 0 offen offset:4")
    ONES, MLO, MHI = 40, 41, 42
    a.e(f"v_mov_b32 v{ONES}, 0x3f803f80")
    a.e(f"v_mov_b32 v{MLO}, 0xffff")
    a.e(f"v_mov_b32 v{MHI}, 0xffff0000")
    XA = 44
    a.e("v_and_b32 v17, 255, v0")
    a.e("v_lshlrev_b32 v17, 3, v17")
    a.e("v_lshrrev_b32 v18, 8, v0")
    a.e(f"v_mul_u32_u24 v19, {FSZ}, v18")
    a.e(f"v_add_u32 v19, {F0}, v19")
    for k in range(5):
        a.e(f"v_add_u32 v54, {2*k}, v17")
        a.e(f"v_add_u32 v55, {2*k+1}, v17")
        a.e("v_cvt_f32_u32 v54, v54")
        a.e("v_cvt_f32_u32 v55, v55")
        a.e("v_cvt_pk_bf16_f32 v54, v54, v55")
        a.e(f"v_and_b32 v55, v{MHI}, v54")
        a.e("v_lshlrev_b32 v54, 16, v54")
        a.e("v_cvt_u32_f32 v54, v54")
        a.e(f"v_lshl_add_u32 v{XA+2*k}, v54, 1, v19")
        if k < 4:
            a.e("v_cvt_u32_f32 v55, v55")
            a.e(f"v_lshl_add_u32 v{XA+2*k+1}, v55, 1, v19")
    a.e("v_lshrrev_b32 v54, 4, v2")
    a.e("v_and_b32 v55, 15, v2")
    a.e("v_lshrrev_b32 v56, 2, v55")
    a.e("v_and_b32 v57, 3, v55")
    a.e("s_lshl_b32 s77, s7, 2")
    a.e("v_add_u32 v58, s77, v54")
    a.e("v_lshlrev_b32 v59, 3, v58")
    a.e("v_add_u32 v60, 3, v59")
    a.e("v_sub_u32 v60, v60, v56")
    a.e("v_lshlrev_b32 v60, 7, v60")
    a.e("v_lshl_add_u32 v60, v57, 3, v60")
    a.e("s_lshl_b32 s77, s6, 5")
    a.e("v_add_u32 v60, s77, v60")
    vTR = 60
    a.e("s_lshl_b32 s77, s4, 18")
    a.e("s_lshl_b32 s78, s6, 16")
    a.e("s_add_u32 s77, s77, s78")
    a.e("s_add_u32 s77, s77, 4080")
    a.e("s_lshl_b32 s78, s5, 7")
    a.e("s_sub_u32 s77, s77, s78")
    a.e("v_lshlrev_b32 v61, 12, v55")
    a.e("v_lshlrev_b32 v62, 1, v59")
    a.e("v_sub_u32 v61, v61, v62")
    a.e("v_add_u32 v61, s77, v61")
    vXS = 61
    a.e(f"v_lshlrev_b32 v62, 7, v3")
    a.e(f"v_lshl_add_u32 v62, v4, 4, v62")
    vRC = 62
    a.e(f"v_lshlrev_b32 v63, 6, v4")
    a.stamp(2)
    a.wait_vm(tv)
    a.wait_ds_all()
    a.stamp(3)
    a.e("s_barrier")
    XO = 64
    a.e(f"ds_read_b64_tr_b16 v[{XO}:{XO+1}], v{vTR} offset:{QT+512}")
    tq = a.e(f"ds_read_b64_tr_b16 v[{XO+2}:{XO+3}], v{vTR} offset:{QT}")
    KR = 68
    for tau in range(4):
        a.e(f"ds_read_b128 v[{KR+4*tau}:{KR+4*tau+3}], v{vRC} offset:{KT + (8-tau)*128}")
    SK = 84
    for i in range(4):
        tsk = a.e(f"ds_read_b128 v[{SK+4*i}:{SK+4*i+3}], v63 offset:{SKT + 16*i}")
    a.wait_ds(tq)
    a.e(f"buffer_store_dwordx4 v[{XO}:{XO+3}], v{vXS}, s[60:63], 0 offen sc1")
    a.wait_ds(tsk)
    P = 100 - 0
    chains = [(m, ci) for m in range(4) for ci in range(2)]
    PA = 100
    PB = 108
    MK = 116
    def prod(dst, tau):
        for idx, (m, ci) in enumerate(chains):
            cch = 2 * m + ci
            src = SK + 2 * cch + (tau >> 1)
            if ci == 0:
                if tau & 1: a.e(f"v_lshrrev_b32 v{MK+idx}, 16, v{src}")
                else: a.e(f"v_and_b32 v{MK+idx}, v{MLO}, v{src}")
            else:
                if tau & 1: a.e(f"v_and_b32 v{MK+idx}, v{MHI}, v{src}")
                else: a.e(f"v_lshlrev_b32 v{MK+idx}, 16, v{src}")
        for idx, (m, ci) in enumerate(chains):
            a.e(f"v_dot2_f32_bf16 v{dst+idx}, v{KR+4*tau+m}, v{MK+idx}, 0")
    prod(PA, 3)
    for tau in (2, 1, 0):
        prod(PB, tau)
        for idx in range(8): a.e(f"v_cvt_pk_bf16_f32 v{MK+idx}, v{PA+idx}, v{PB+idx}")
        for idx in range(8): a.e(f"v_dot2_f32_bf16 v{PA+idx}, v{MK+idx}, v{ONES}, 0")
    KV = 64
    for m in range(4):
        a.e(f"v_and_b32 v{MK+2*m}, v{MLO}, v{V+m}")
        a.e(f"v_and_b32 v{MK+2*m+1}, v{MHI}, v{V+m}")
    for m in range(4): a.e(f"v_cvt_pk_bf16_f32 v{PB+m}, v{PA+2*m}, v{PA+2*m+1}")
    for m in range(4):
        a.e(f"v_dot2_f32_bf16 v{PA+2*m}, v{PB+m}, v{MK+2*m}, 0")
        a.e(f"v_dot2_f32_bf16 v{PA+2*m+1}, v{PB+m}, v{MK+2*m+1}, 0")
    KVR = 112
    for m in range(4): a.e(f"v_cvt_pk_bf16_f32 v{KVR+m}, v{PA+2*m}, v{PA+2*m+1}")
    a.e(f"ds_write_b128 v{vRC}, v[{KVR}:{KVR+3}] offset:{KVT}")
    a.wait_ds_all()
    a.stamp(4)
    a.e("s_barrier")
    a.e(f"ds_read_b64_tr_b16 v[{XO}:{XO+1}], v{vTR} offset:{KVT+512}")
    tq = a.e(f"ds_read_b64_tr_b16 v[{XO+2}:{XO+3}], v{vTR} offset:{KVT}")
    a.wait_vm(tg)
    GA = 100; T = 101
    for m in range(4):
        a.e(f"v_and_b32 v{T+2*m}, v{MLO}, v{GW+m}")
        a.e(f"v_and_b32 v{T+2*m+1}, v{MHI}, v{GW+m}")
    a.wait_ds(tq)
    a.e(f"s_mov_b32 s77, {WS_XKV}")
    a.e(f"buffer_store_dwordx4 v[{XO}:{XO+3}], v{vXS}, s[60:63], s77 offen sc1")
    for m in range(4):
        a.e(f"v_dot2_f32_bf16 v{T+2*m}, v{GQ+m}, v{T+2*m}, 0")
        a.e(f"v_dot2_f32_bf16 v{T+2*m+1}, v{GQ+m}, v{T+2*m+1}, 0")
    for m in range(4): a.e(f"v_cvt_pk_bf16_f32 v{T+8+m}, v{T+2*m}, v{T+2*m+1}")
    for m in range(4):
        a.e(f"v_lshlrev_b32 v{T+2*m}, 16, v{T+8+m}")
        a.e(f"v_and_b32 v{T+2*m+1}, v{MHI}, v{T+8+m}")
    for m in range(4): a.e(f"v_add_f32 v{T+2*m}, v{T+2*m}, v{T+2*m+1}")
    a.e(f"v_add_f32 v{T}, v{T}, v{T+2}")
    a.e(f"v_add_f32 v{T+4}, v{T+4}, v{T+6}")
    a.e(f"v_add_f32 v{GA}, v{T}, v{T+4}")
    for sh in (1, 2, 4, 8):
        a.e(f"v_add_f32_dpp v{GA}, v{GA}, v{GA} row_shr:{sh} row_mask:0xf bank_mask:0xf bound_ctrl:0")
    a.e(f"v_add_f32_dpp v{GA}, v{GA}, v{GA} row_bcast:15 row_mask:0xa bank_mask:0xf")
    a.e(f"v_add_f32_dpp v{GA}, v{GA}, v{GA} row_bcast:31 row_mask:0xc bank_mask:0xf")
    a.e(f"v_cvt_pk_bf16_f32 v{T+1}, v{GA}, v{GA}")
    a.e(f"v_and_b32 v{T+1}, v{MHI}, v{T+1}")
    a.e(f"v_mul_f32 v{T+1}, 0x{LOG2E ^ 0x80000000:08x}, v{T+1}")
    a.e(f"v_exp_f32 v{T+1}, v{T+1}")
    a.e(f"v_add_f32 v{T+1}, 1.0, v{T+1}")
    a.e(f"v_rcp_f32 v{T+1}, v{T+1}")
    a.e(f"v_cvt_pk_bf16_f32 v{T+1}, v{T+1}, v{T+1}")
    a.e(f"v_and_b32 v{T+2}, v{MHI}, v{T+1}")
    a.e(f"v_sub_f32 v{T+3}, 1.0, v{T+2}")
    a.e(f"v_cvt_pk_bf16_f32 v{T+1}, v{T+2}, v{T+3}")
    a.e("s_lshl_b32 s77, s12, 2")
    a.e(f"s_add_u32 s77, s77, {WS_GP}")
    a.e(f"v_mov_b32 v{T+2}, s77")
    a.e("s_mov_b32 exec_lo, 0")
    a.e("s_mov_b32 exec_hi, 0x80000000")
    a.e(f"buffer_store_dword v{T+1}, v{T+2}, s[60:63], 0 offen sc1")
    a.e("s_mov_b64 exec, -1")
    a.wait_vm(tk)
    O = 64
    for jx in range(4): a.e(f"v_alignbit_b32 v{O+jx}, v{T1+jx}, v{T0+jx}, 16")
    a.e(f"v_mul_u32_u24 v54, {2*KCS}, v18")
    a.e("v_lshl_add_u32 v54, v17, 1, v54")
    a.e(f"v_add_u32 v54, {KC0+32}, v54")
    vKW = 54
    a.e(f"ds_write_b128 v{vKW}, v[{T0}:{T0+3}]")
    a.e(f"ds_write_b128 v{vKW}, v[{O}:{O+3}] offset:4160")
    a.e("s_and_b32 s77, s3, 3")
    a.e("s_cmp_lg_u32 s77, 0")
    a.e("s_cbranch_scc1 L_NOPADA")
    a.e(f"v_readfirstlane_b32 s77, v{T0}")
    a.e("s_lshl_b32 s77, s77, 16")
    a.e(f"v_readfirstlane_b32 s78, v{vKW}")
    a.e("s_sub_u32 s78, s78, 32")
    a.e("v_lshlrev_b32 v55, 2, v2")
    a.e("v_add_u32 v55, s78, v55")
    a.e("v_mov_b32 v56, s77")
    a.e("v_cmp_eq_u32 vcc, 7, v2")
    a.e("v_cndmask_b32 v56, 0, v56, vcc")
    a.e("v_mov_b32 v57, 0")
    a.e("s_mov_b64 exec, 0xff")
    a.e("ds_write_b32 v55, v57")
    a.e("ds_write_b32 v55, v56 offset:4160")
    a.e("s_mov_b64 exec, -1")
    a.label("L_NOPADA")
    a.stamp(5)
    PR = 64
    a.e("v_and_b32 v55, 127, v0")
    a.e("v_lshlrev_b32 v56, 8, v18")
    a.e("v_lshl_add_u32 v56, v55, 1, v56")
    for i in range(6): tp = a.e(f"ds_read_u16_d16_hi v{PR+i}, v56 offset:{PAR + 512*i}")
    Are, Aim, Bre, Bim, Cre, Cim = [PR + i for i in range(6)]
    DT, RHO, PHI, TA = 70, 71, 72, 73
    C = 74
    a.e("s_lshl_b32 s77, s7, 4")
    a.e("s_lshr_b32 s77, s76, s77")
    a.e("s_lshl_b32 s77, s77, 16")
    a.e(f"v_mul_f32 v{DT}, s77, v{ONES}") if False else None
    a.e(f"v_mov_b32 v{DT}, s77")
    a.e(f"v_mul_f32 v{DT}, 0x{LOG2E:08x}, v{DT}")
    a.e(f"v_exp_f32 v{DT}, v{DT}")
    a.e(f"v_mul_u32_u24 v{TA}, {TABSZ}, v18")
    a.e(f"v_lshl_add_u32 v{TA}, v55, 2, v{TA}")
    a.e(f"v_add_u32 v{TA}, {TAB0}, v{TA}")
    a.e(f"v_cvt_pk_bf16_f32 v{DT}, v{DT}, v{DT}")
    a.e(f"v_and_b32 v{DT}, v{MHI}, v{DT}")
    a.wait_ds(tp)
    a.e(f"v_mul_f32 v{RHO}, v{DT}, v{Are}")
    a.e(f"v_mul_f32 v{PHI}, v{DT}, v{Aim}")
    a.e(f"v_mul_f32 v{RHO}, 0x{LOG2E:08x}, v{RHO}")
    a.e(f"v_mul_f32 v{PHI}, 0.15915494, v{PHI}")
    a.e(f"v_mul_f32 v{Bre}, v{DT}, v{Bre}")
    a.e(f"v_mul_f32 v{Bim}, v{DT}, v{Bim}")
    a.e(f"v_mul_f32 v{C}, v{Cre}, v{Bre}")
    a.e(f"v_mul_f32 v{C+1}, v{Cre}, v{Bim}")
    a.e(f"v_fma_f32 v{C}, -v{Cim}, v{Bim}, v{C}")
    a.e(f"v_fma_f32 v{C+1}, v{Cim}, v{Bre}, v{C+1}")
    t0, t1 = 76, 77
    def put(entry, pair, neg, tmp):
        a.e(f"v_cvt_pk_bf16_f32 v{tmp}, v{pair}, {'-' if neg else ''}v{pair+1}")
        a.e(f"ds_write_b32 v{TA}, v{tmp} offset:{entry*ENT}")
    a.e("s_bitcmp1_b32 s3, 1")
    a.e("s_cbranch_scc1 L_HALF1")
    Z4, Z8, Z128, W, S3, TM1, TM2 = 78, 80, 82, 84, 86, 88, 90
    PT = 92
    cpow(a, Z4, RHO, PHI, 4, t0, t1)
    cpow(a, Z128, RHO, PHI, 128, t0, t1)
    cpow(a, S3, RHO, PHI, 1024, t0, t1)
    cmul(a, Z8, Z4, Z4, TM1)
    cmul(a, S3, S3, C, TM2)
    a.e(f"v_mov_b32 v{W}, 1.0"); a.e(f"v_mov_b32 v{W+1}, 0")
    put(0, W, False, PT)
    put(24 + 32 + 0, S3, True, PT + 1)
    for jx in range(1, 17):
        cmul(a, W, W, Z4, TM1)
        if jx <= 8: cmul(a, S3, S3, Z128, TM2)
        put(jx, W, False, PT + (jx & 1) * 2)
        if jx <= 8: put(24 + 32 + jx, S3, True, PT + 1 + (jx & 1) * 2)
    for m in range(1, 8):
        cmul(a, W, W, Z8, TM1)
        put(16 + m, W, False, PT + (m & 1) * 2)
    a.e("s_branch L_TABDONE")
    a.label("L_HALF1")
    Z1, Z64 = 78, 80
    VV = [82, 84, 86, 88]; TT = [90, 92, 94, 96]; PT = 98
    cpow(a, Z1, RHO, PHI, 1, t0, t1)
    cpow(a, Z64, RHO, PHI, 64, t0, t1)
    a.e(f"v_mov_b32 v{VV[0]}, v{C}"); a.e(f"v_mov_b32 v{VV[0]+1}, v{C+1}")
    cmul(a, VV[1], VV[0], Z1, TT[0])
    cmul(a, VV[2], VV[1], Z1, TT[0])
    cmul(a, VV[3], VV[2], Z1, TT[0])
    for i in range(16):
        ps = [0, 1, 2, 3] if i < 4 else ([0, 2] if i < 8 else [0])
        if i > 0:
            for p in ps: cmul(a, VV[p], VV[p], Z64, TT[p])
        for p in ps:
            if i < 4: ent = 24 + 4 * i + p
            elif i < 8: ent = 24 + 16 + 2 * (i - 4) + p // 2
            else: ent = 24 + 16 + i
            put(ent, VV[p], True, PT + p)
    a.label("L_TABDONE")
    a.e("s_nop 1")
    a.stamp(6)
    a.e("v_and_b32 v64, 15, v2")
    a.e("v_lshrrev_b32 v65, 4, v2")
    a.e(f"s_mul_i32 s77, s7, {TABSZ}")
    a.e(f"s_add_u32 s77, s77, {TAB0}")
    a.e("s_lshl_b32 s78, s6, 4")
    a.e("s_add_u32 s78, s78, 24")
    a.e("v_add_u32 v66, s78, v64")
    a.e(f"v_mul_u32_u24 v66, {ENT}, v66")
    a.e("v_lshl_add_u32 v66, v65, 4, v66")
    a.e("v_add_u32 v66, s77, v66")
    a.e("v_lshlrev_b32 v67, 1, v64")
    a.e("v_add_u32 v68, 8, v64")
    a.e("v_cmp_gt_u32 vcc, 8, v64")
    a.e("v_cndmask_b32 v67, v68, v67, vcc")
    a.e("s_cmp_eq_u32 s6, 2")
    a.e("s_cselect_b64 s[78:79], -1, 0")
    a.e("v_cndmask_b32 v67, v64, v67, s[78:79]")
    a.e(f"v_mul_u32_u24 v67, {ENT}, v67")
    a.e("v_lshl_add_u32 v67, v65, 4, v67")
    a.e("v_add_u32 v67, s77, v67")
    FW = 68
    a.e("s_cmp_eq_u32 s6, 1")
    a.e("s_cbranch_scc1 L_FT1")
    a.e("s_cmp_eq_u32 s6, 2")
    a.e("s_cbranch_scc1 L_FT2")
    a.e(f"v_lshlrev_b32 v{FW}, 6, v65")
    a.e(f"v_lshl_add_u32 v{FW}, v64, 2, v{FW}")
    for e in range(1, 4): a.e(f"v_add_u32 v{FW+e}, {e}, v{FW}")
    a.e("s_branch L_FDONE")
    a.label("L_FT1")
    a.e("v_cmp_gt_u32 vcc, 2, v65")
    a.e("v_lshlrev_b32 v72, 7, v65")
    a.e("v_add_u32 v72, 256, v72")
    a.e("v_lshlrev_b32 v73, 8, v65")
    a.e(f"v_cndmask_b32 v{FW}, v73, v72, vcc")
    a.e(f"v_lshl_add_u32 v{FW}, v64, 2, v{FW}")
    for e, (o1, o2) in enumerate(((2, 64), (64, 128), (66, 192)), start=1):
        a.e(f"v_mov_b32 v72, {o2}")
        a.e(f"v_mov_b32 v73, {o1}")
        a.e(f"v_cndmask_b32 v72, v72, v73, vcc")
        a.e(f"v_add_u32 v{FW+e}, v{FW}, v72")
    a.e("s_branch L_FDONE")
    a.label("L_FT2")
    a.e(f"v_lshlrev_b32 v{FW}, 9, v65")
    a.e(f"v_lshl_add_u32 v{FW}, v64, 3, v{FW}")
    a.e(f"v_add_u32 v{FW}, 1024, v{FW}")
    for e in range(1, 4): a.e(f"v_add_u32 v{FW+e}, {128*e}, v{FW}")
    a.label("L_FDONE")
    a.e(f"s_mul_i32 s77, s7, {FSZ}")
    a.e(f"s_add_u32 s77, s77, {F0}")
    for e in range(4):
        a.e(f"v_lshlrev_b32 v{FW+e}, 1, v{FW+e}")
        a.e(f"v_add_u32 v{FW+e}, s77, v{FW+e}")
    a.wait_all()
    a.stamp(7)
    a.e("s_barrier")
    a.e("s_cmp_eq_u32 s6, 3")
    a.e("s_cbranch_scc1 L_NOMM")
    FA, FB, ACCK = 72, 64 + 40, 100
    FA = 72; FB = 96 + 0
    toks = []
    for ks in range(8):
        a.e(f"ds_read_b128 a[{4*ks}:{4*ks+3}], v66 offset:{64*ks}")
        toks.append(a.e(f"ds_read_b128 a[{32+4*ks}:{32+4*ks+3}], v67 offset:{64*ks}"))
    for ks in range(8):
        a.wait_ds(toks[ks])
        src = "0" if ks == 0 else f"v[{ACCK}:{ACCK+3}]"
        a.e(f"v_mfma_f32_16x16x32_bf16 v[{ACCK}:{ACCK+3}], a[{4*ks}:{4*ks+3}], a[{32+4*ks}:{32+4*ks+3}], {src}")
    a.e(f"v_cvt_pk_bf16_f32 v104, v{ACCK}, v{ACCK+1}")
    a.e(f"v_cvt_pk_bf16_f32 v105, v{ACCK+2}, v{ACCK+3}")
    a.e(f"ds_write_b16 v{FW}, v104")
    a.e(f"ds_write_b16_d16_hi v{FW+1}, v104")
    a.e(f"ds_write_b16 v{FW+2}, v105")
    a.e(f"ds_write_b16_d16_hi v{FW+3}, v105")
    a.e("s_branch L_MMDONE")
    a.label("L_NOMM")
    a.e("s_cmp_eq_u32 s3, 7")
    a.e("s_cbranch_scc0 L_MMDONE")
    a.e(f"v_readfirstlane_b32 s72, v{EPV}")
    a.e("s_add_u32 s72, s72, 1")
    a.e(f"s_xor_b32 s73, s72, 0x{FLAGC:08x}")
    a.e("v_mov_b32 v104, s72")
    a.e("v_mov_b32 v105, s73")
    a.e("s_lshl_b32 s77, s2, 3")
    a.e(f"s_add_u32 s77, s77, {WS_FLAGS}")
    a.e("v_mov_b32 v106, s77")
    a.e("s_mov_b64 exec, 1")
    a.e("buffer_store_dwordx2 v[104:105], v106, s[60:63], 0 offen sc1")
    a.e("s_mov_b64 exec, -1")
    a.label("L_MMDONE")
    a.wait_ds_all()
    a.stamp(8)
    a.e("s_barrier")
    EL = 64
    for e in range(9): te = a.e(f"ds_read_u16 v{EL+e}, v{XA+e}")
    a.wait_ds(te)
    EE = 76; OO = 80
    for k in range(4):
        a.e(f"v_lshl_or_b32 v{EE+k}, v{EL+2*k+1}, 16, v{EL+2*k}")
        a.e(f"v_lshl_or_b32 v{OO+k}, v{EL+2*k+2}, 16, v{EL+2*k+1}")
    a.e(f"ds_write_b128 v{vKW}, v[{EE}:{EE+3}] offset:{KCS}")
    a.e(f"ds_write_b128 v{vKW}, v[{OO}:{OO+3}] offset:{KCS+4160}")
    a.e("s_and_b32 s77, s3, 3")
    a.e("s_cmp_lg_u32 s77, 0")
    a.e("s_cbranch_scc1 L_NOPADB")
    a.e(f"v_readfirstlane_b32 s77, v{EL}")
    a.e("s_lshl_b32 s77, s77, 16")
    a.e(f"v_readfirstlane_b32 s78, v{vKW}")
    a.e(f"s_add_u32 s78, s78, {KCS-32}")
    a.e("v_lshlrev_b32 v55, 2, v2")
    a.e("v_add_u32 v55, s78, v55")
    a.e("v_mov_b32 v56, s77")
    a.e("v_cmp_eq_u32 vcc, 7, v2")
    a.e("v_cndmask_b32 v56, 0, v56, vcc")
    a.e("v_mov_b32 v57, 0")
    a.e("s_mov_b64 exec, 0xff")
    a.e("ds_write_b32 v55, v57")
    a.e("ds_write_b32 v55, v56 offset:4160")
    a.e("s_mov_b64 exec, -1")
    a.label("L_NOPADB")
    J, Q4 = 5, 6
    a.e(f"v_and_b32 v{J}, 15, v2")
    a.e(f"v_lshrrev_b32 v{Q4}, 4, v2")
    vB, vX, vQ, vG, vPX, vGW, vCMB, vOUT = 8, 9, 10, 11, 12, 14, 15, 16
    vA = [17, 18, 19, 20]
    ONE2, QML, QOL, QMH, QOH, DLO, DHI, SELE, SELO = 21, 22, 23, 24, 25, 26, 27, 28, 29
    CMB = [30, 31]
    vXL = 3
    a.e(f"s_mul_i32 s77, s6, {XRS}")
    a.e(f"s_add_u32 s77, s77, {XR0}")
    a.e("s_lshl_b32 s78, s7, 8")
    a.e("s_add_u32 s78, s78, s77")
    a.e("s_add_u32 s78, s78, 480")
    a.e(f"v_lshlrev_b32 v7, 5, v{J}")
    a.e(f"v_lshlrev_b32 v{vB}, 4, v{Q4}")
    a.e(f"v_sub_u32 v{vB}, v{vB}, v7")
    a.e(f"v_add_u32 v{vB}, s78, v{vB}")
    a.e(f"v_lshl_add_u32 v54, v{Q4}, 3, v7")
    a.e("s_add_u32 s78, s77, 504")
    a.e(f"v_sub_u32 v{vX}, s78, v54")
    a.e("s_add_u32 s78, s77, 4096")
    a.e("v_lshlrev_b32 v55, 3, v2")
    a.e("v_add_u32 v55, s78, v55")
    a.e("v_mov_b32 v56, 0"); a.e("v_mov_b32 v57, 0")
    a.e("s_or_b32 s78, s6, 1")
    a.e(f"s_mul_i32 s78, s78, {XRS}")
    a.e(f"s_add_u32 s78, s78, {XR0 + 504}")
    a.e(f"v_sub_u32 v{vQ}, s78, v54")
    a.e(f"v_lshlrev_b32 v58, 1, v54")
    a.e(f"v_add_u32 v{vG}, {GM}, v58")
    a.e("s_lshl_b32 s78, s6, 13")
    a.e(f"s_add_u32 s78, s78, {PX}")
    a.e(f"v_lshlrev_b32 v58, 4, v2")
    a.e(f"v_add_u32 v{vPX}, s78, v58")
    a.e("s_lshl_b32 s78, s6, 12")
    a.e(f"s_add_u32 s78, s78, {GAB}")
    a.e(f"v_add_u32 v{vGW}, s78, v54")
    a.e("s_lshl_b32 s78, s6, 6")
    a.e(f"v_add_u32 v58, s78, v2")
    a.e(f"v_lshlrev_b32 v{vCMB}, 1, v58")
    a.e(f"v_add_u32 v{vCMB}, {GAB}, v{vCMB}")
    a.e(f"v_lshlrev_b32 v{vOUT}, 10, v58")
    a.e("s_lshl_b32 s78, s10, 1")
    a.e(f"v_add_u32 v{vOUT}, s78, v{vOUT}")
    a.e("s_lshl_b32 s78, s7, 7")
    a.e("s_sub_u32 s78, s78, 15")
    a.e(f"v_lshl_add_u32 v58, v{Q4}, 3, v{J}")
    a.e("v_add_u32 v58, s78, v58")
    a.e("v_lshlrev_b32 v58, 1, v58")
    a.e(f"s_mul_i32 s78, s6, {KCS}")
    a.e(f"s_add_u32 s78, s78, {KC0 + 32}")
    a.e(f"v_and_b32 v59, 1, v{J}")
    a.e(f"v_cmp_eq_u32 vcc, 1, v59")
    a.e(f"v_mov_b32 v59, {4160 - 2}")
    a.e(f"v_cndmask_b32 v59, v59, 0, vcc")
    a.e(f"v_add3_u32 v{vA[0]}, v58, v59, s78")
    for i in range(1, 4): a.e(f"v_add_u32 v{vA[i]}, {1024*i}, v{vA[0]}")
    a.e("v_lshrrev_b32 v58, 8, v0")
    a.e(f"v_mul_u32_u24 v58, {2*XRS}, v58")
    a.e("v_and_b32 v59, 255, v0")
    a.e(f"v_lshl_add_u32 v{vXL}, v59, 4, v58")
    a.e(f"v_add_u32 v{vXL}, {XR0}, v{vXL}")
    a.e("v_lshlrev_b32 v4, 4, v0")
    a.e(f"v_mov_b32 v{ONE2}, 0x3f803f80")
    a.e("s_cmp_eq_u32 s8, 0")
    a.e("s_cselect_b32 s77, 0xffff, 0");        a.e(f"v_mov_b32 v{QML}, s77")
    a.e("s_cselect_b32 s77, 0, 0x3f80");        a.e(f"v_mov_b32 v{QOL}, s77")
    a.e("s_cselect_b32 s77, 0xffff0000, 0");    a.e(f"v_mov_b32 v{QMH}, s77")
    a.e("s_cselect_b32 s77, 0, 0x3f800000");    a.e(f"v_mov_b32 v{QOH}, s77")
    a.e("s_mov_b32 s78, 0x03020c0c")
    a.e("s_cselect_b32 s77, 0x01000c0c, s78");  a.e(f"v_mov_b32 v{SELE}, s77")
    a.e("s_mov_b32 s78, 0x0c0c0302")
    a.e("s_cselect_b32 s77, 0x0c0c0100, s78");  a.e(f"v_mov_b32 v{SELO}, s77")
    a.e("s_cselect_b32 s77, s74, s75")
    a.e("s_lshl_b32 s78, s9, 4")
    a.e("s_lshr_b32 s77, s77, s78")
    a.e("s_and_b32 s77, s77, 0xffff")
    a.e(f"v_mov_b32 v{DLO}, s77")
    a.e("s_lshl_b32 s77, s77, 16")
    a.e(f"v_mov_b32 v{DHI}, s77")
    a.wait_ds_all()
    a.stamp(9)
    a.e("s_barrier")
    a.e("ds_write_b64 v55, v[56:57]")
    def areg(cidx, rho): return 4 * (cidx * 4 + rho)
    for cidx in range(8):
        for rho in range(4):
            r = areg(cidx, rho); o = 128 * (cidx & 1) + 16 * rho; va = vA[cidx >> 1]
            a.e(f"ds_read2_b32 a[{r}:{r+1}], v{va} offset0:{o} offset1:{o+1}")
            a.e(f"ds_read2_b32 a[{r+2}:{r+3}], v{va} offset0:{o+2} offset1:{o+3}")
    a.e("s_cmp_eq_u32 s3, 7")
    a.e("s_cbranch_scc0 L_POLLDONE")
    a.e("v_lshlrev_b32 v58, 5, v2")
    a.e(f"v_add_u32 v58, {WS_FLAGS}, v58")
    a.e("s_mov_b32 s77, 0")
    a.label("L_POLL")
    a.e("buffer_load_dwordx4 v[64:67], v58, s[60:63], 0 offen sc1")
    a.e("buffer_load_dwordx4 v[68:71], v58, s[60:63], 0 offen offset:16 sc1")
    a.e("s_waitcnt vmcnt(0)")
    a.e("v_cmp_ne_u32 vcc, s72, v64")
    a.e("v_cmp_ne_u32 s[78:79], s73, v65")
    a.e("s_or_b64 vcc, vcc, s[78:79]")
    for r, sv in ((66, 72), (67, 73), (68, 72), (69, 73), (70, 72), (71, 73)):
        a.e(f"v_cmp_ne_u32 s[78:79], s{sv}, v{r}")
        a.e("s_nop 3")
        a.e("s_or_b64 vcc, vcc, s[78:79]")
    a.e("s_cmp_eq_u64 vcc, 0")
    a.e("s_cbranch_scc1 L_POLLDONE")
    a.e("s_add_u32 s77, s77, 1")
    a.e("s_cmp_lt_u32 s77, 20000")
    a.e("s_cbranch_scc0 L_POLLDONE")
    a.e("s_sleep 2")
    a.e("s_branch L_POLL")
    a.label("L_POLLDONE")
    a.vm_done = a.vm_issued
    a.stamp(10)
    a.e("s_barrier")
    XL = 64
    a.e(f"buffer_load_dwordx4 v[{XL}:{XL+3}], v13, s[60:63], 0 offen sc1")
    a.e(f"s_mov_b32 s77, {WS_XKV}")
    a.e(f"buffer_load_dwordx4 v[{XL+4}:{XL+7}], v13, s[60:63], s77 offen sc1")
    a.e(f"s_mov_b32 s77, {WS_GP}")
    a.e(f"buffer_load_dwordx4 v[{XL+8}:{XL+11}], v4, s[60:63], s77 offen sc1")
    for r in CMB: a.e(f"v_mov_b32 v{r}, 0")
    a.wait_vm_all()
    a.stamp(11)
    a.e(f"ds_write_b128 v{vXL}, v[{XL}:{XL+3}] offset:{XRS}")
    a.e(f"ds_write_b128 v{vXL}, v[{XL+4}:{XL+7}]")
    a.e(f"v_add_u32 v4, {GM}, v4")
    a.e(f"ds_write_b128 v4, v[{XL+8}:{XL+11}]")
    a.wait_ds_all()
    a.e("s_barrier")
    a.stamp(12)
    a.e("s_cmp_lg_u32 s2, 0")
    a.e("s_cbranch_scc1 L_NOEP")
    a.e("s_cmp_lg_u32 s3, 7")
    a.e("s_cbranch_scc1 L_NOEP")
    a.e("v_mov_b32 v64, s72")
    a.e(f"v_mov_b32 v65, {WS_EP}")
    a.e("s_mov_b64 exec, 1")
    a.e("buffer_store_dword v64, v65, s[60:63], 0 offen")
    a.e("s_mov_b64 exec, -1")
    a.label("L_NOEP")
    a.e("s_cmp_lg_u32 s7, 0")
    a.e("s_cbranch_scc1 L_H1")
    ctx = dict(vB=vB, vX=vX, vQ=vQ, vG=vG, vPX=vPX, vGW=vGW, vCMB=vCMB, vOUT=vOUT, ONES=ONE2, QML=QML, QOL=QOL,
               QMH=QMH, QOH=QOH, DLO=DLO, DHI=DHI, SELE=SELE, SELO=SELO)
    main_loop(a, 0, passes, NB, LOOK, RATE, ctx)
    a.e("s_endpgm")
    a.label("L_H1")
    main_loop(a, 1, passes, NB, LOOK, RATE, ctx)
    a.label("L_END")
    a.e("s_endpgm")
    a.label("L_CODE_END")

def main_loop(a, h, passes, NB, LOOK, RATE, c):
    ACC = 32
    BR = 64
    EP = BR + 4 * NB
    assert EP + 32 <= 128
    def areg(cidx, rho): return 4 * (cidx * 4 + rho)
    mf = []; loads = []; bseq = 0; pass_end = []
    for P in passes:
        thi = max(P)
        for rho in range(4):
            for dl in range(thi + 1):
                users = [t for t in P if t - dl >= 0]
                if not users: continue
                loads.append(dict(dl=dl, rho=rho, need=len(mf), b=bseq))
                for t in users: mf.append(dict(t=t, c=t - dl, rho=rho, b=bseq))
                bseq += 1
        pass_end.append(len(mf))
    lastuse = {}
    for i, m in enumerate(mf): lastuse[m["b"]] = i
    tokB = {}; li = 0; side = []; started = set()
    def enqueue_pass(pi):
        P = passes[pi]
        send = [t for t in P if t % 2 != h]
        mine = [t for t in P if t % 2 == h]
        S = side
        S.append(("gap", 3))
        wt = [None]
        for t in send:
            def f(t=t): wt[0] = a.e(f"ds_write_b128 v{c['vPX']}, v[{ACC+4*t}:{ACC+4*t+3}] offset:{1024*t}")
            S.append(f)
        S.append(("gap", 2))
        def bar1():
            a.wait_ds(wt[0]); a.e("s_barrier")
        S.append(bar1)
        wt2 = [None]
        for k, t in enumerate(mine):
            E = EP
            PXR, XO, QM, GG = E, E + 4, E + 6, E + 8
            TT, XX, SS = E + 12, E + 16, E + 20
            S10, S32 = E + 24, E + 25
            tk = [None]
            S.append(lambda t=t: a.e(f"ds_read_b128 v[{PXR}:{PXR+3}], v{c['vPX']} offset:{1024*t}"))
            S.append(lambda t=t: a.e(f"ds_read_b64 v[{XO}:{XO+1}], v{c['vX']} offset:{512*(7-t)}"))
            S.append(lambda t=t: a.e(f"ds_read_b64 v[{QM}:{QM+1}], v{c['vQ']} offset:{512*(7-t)}"))
            def rg(t=t, tk=tk): tk[0] = a.e(f"ds_read_b128 v[{GG}:{GG+3}], v{c['vG']} offset:{1024*t}")
            S.append(rg)
            S.append(("gap", 4))
            S.append(lambda tk=tk: a.wait_ds(tk[0]))
            ac = ACC + 4 * t
            for e in range(4): S.append(lambda e=e, ac=ac: a.e(f"v_add_f32 v{PXR+e}, v{ac+e}, v{PXR+e}"))
            S.append(lambda: a.e(f"v_dot2_f32_bf16 v{TT+3}, v{XO}, v{c['DLO']}, 0"))
            S.append(lambda: a.e(f"v_dot2_f32_bf16 v{TT+2}, v{XO}, v{c['DHI']}, 0"))
            S.append(lambda: a.e(f"v_dot2_f32_bf16 v{TT+1}, v{XO+1}, v{c['DLO']}, 0"))
            S.append(lambda: a.e(f"v_dot2_f32_bf16 v{TT+0}, v{XO+1}, v{c['DHI']}, 0"))
            for e in range(4): S.append(lambda e=e: a.e(f"v_perm_b32 v{GG+e}, v{GG+e}, v{GG+e}, v{c['SELE'] if e % 2 == 0 else c['SELO']}"))
            for e in range(4): S.append(lambda e=e: a.e(f"v_cvt_pk_bf16_f32 v{XX+e}, v{PXR+e}, v{TT+e}"))
            for e in range(4): S.append(lambda e=e: a.e(f"v_dot2_f32_bf16 v{SS+e}, v{XX+e}, v{c['ONES']}, 0"))
            S.append(lambda: a.e(f"v_and_or_b32 v{TT+3}, v{QM}, v{c['QML']}, v{c['QOL']}"))
            S.append(lambda: a.e(f"v_and_or_b32 v{TT+2}, v{QM}, v{c['QMH']}, v{c['QOH']}"))
            S.append(lambda: a.e(f"v_and_or_b32 v{TT+1}, v{QM+1}, v{c['QML']}, v{c['QOL']}"))
            S.append(lambda: a.e(f"v_and_or_b32 v{TT+0}, v{QM+1}, v{c['QMH']}, v{c['QOH']}"))
            S.append(lambda: a.e(f"v_cvt_pk_bf16_f32 v{S10}, v{SS+1}, v{SS+0}"))
            S.append(lambda: a.e(f"v_cvt_pk_bf16_f32 v{S32}, v{SS+3}, v{SS+2}"))
            S.append(lambda: a.e(f"v_dot2_f32_bf16 v{XX+3}, v{S32}, v{TT+3}, 0"))
            S.append(lambda: a.e(f"v_dot2_f32_bf16 v{XX+2}, v{S32}, v{TT+2}, 0"))
            S.append(lambda: a.e(f"v_dot2_f32_bf16 v{XX+1}, v{S10}, v{TT+1}, 0"))
            S.append(lambda: a.e(f"v_dot2_f32_bf16 v{XX+0}, v{S10}, v{TT+0}, 0"))
            S.append(("gap", 1))
            S.append(lambda: a.e(f"v_cvt_pk_bf16_f32 v{S10}, v{XX+1}, v{XX+0}"))
            S.append(lambda: a.e(f"v_cvt_pk_bf16_f32 v{S32}, v{XX+3}, v{XX+2}"))
            S.append(lambda: a.e(f"v_dot2_f32_bf16 v{SS+0}, v{S10}, v{GG+0}, 0"))
            S.append(lambda: a.e(f"v_dot2_f32_bf16 v{SS+1}, v{S10}, v{GG+1}, 0"))
            S.append(lambda: a.e(f"v_dot2_f32_bf16 v{SS+2}, v{S32}, v{GG+2}, 0"))
            S.append(lambda: a.e(f"v_dot2_f32_bf16 v{SS+3}, v{S32}, v{GG+3}, 0"))
            S.append(("gap", 1))
            S.append(lambda: a.e(f"v_cvt_pk_bf16_f32 v{TT+0}, v{SS+0}, v{SS+1}"))
            S.append(lambda: a.e(f"v_cvt_pk_bf16_f32 v{TT+1}, v{SS+2}, v{SS+3}"))
            def wr(t=t): wt2[0] = a.e(f"ds_write_b64 v{c['vGW']}, v[{TT}:{TT+1}] offset:{512*t}")
            S.append(wr)
        S.append(("gap", 2))
        def bar2():
            a.wait_ds(wt2[0]); a.e("s_barrier")
        S.append(bar2)
        for t in mine:
            tk = [None]
            CM = [EP + 26, EP + 27, EP + 28, EP + 29]
            for cc2 in range(4):
                def rd(cc2=cc2, t=t, tk=tk): tk[0] = a.e(f"ds_read_u16_d16_hi v{CM[cc2]}, v{c['vCMB']} offset:{4096*cc2+512*t}")
                S.append(rd)
            S.append(("gap", 4))
            S.append(lambda tk=tk: a.wait_ds(tk[0]))
            S.append(lambda: a.e(f"v_add_f32 v{CM[0]}, v{CM[0]}, v{CM[1]}"))
            S.append(lambda: a.e(f"v_add_f32 v{CM[2]}, v{CM[2]}, v{CM[3]}"))
            S.append(lambda: a.e(f"v_cvt_pk_bf16_f32 v{EP+30}, v{CM[0]}, v{CM[2]}"))
            S.append(lambda t=t: a.e(f"s_mov_b32 s77, {t*262144}"))
            S.append(lambda: a.e(f"buffer_store_dword v{EP+30}, v{c['vOUT']}, s[64:67], s77 offen"))
    def run_side(n):
        k = 0
        while side and k < n:
            it = side[0]
            if isinstance(it, tuple):
                if it[1] <= 0: side.pop(0); continue
                side[0] = ("gap", it[1] - 1)
                return
            side.pop(0); it(); k += 1
    for i, m in enumerate(mf):
        while li < len(loads):
            L = loads[li]
            if L["need"] > i + LOOK: break
            prev = L["b"] - NB
            if prev >= 0 and lastuse[prev] >= i: break
            r = BR + 4 * (L["b"] % NB)
            tokB[L["b"]] = a.e(f"ds_read_b128 v[{r}:{r+3}], v{c['vB']} offset:{64*L['rho'] + 512*(7-L['dl'])}")
            li += 1
        a.wait_ds(tokB[m["b"]])
        ar = areg(m["c"], m["rho"]); br = BR + 4 * (m["b"] % NB); ac = ACC + 4 * m["t"]
        src = f"v[{ac}:{ac+3}]" if m["t"] in started else "0"
        started.add(m["t"])
        a.e(f"v_mfma_f32_16x16x32_bf16 v[{ac}:{ac+3}], a[{ar}:{ar+3}], v[{br}:{br+3}], {src}")
        if (i + 1) in pass_end: enqueue_pass(pass_end.index(i + 1))
        run_side(RATE)
    a.stamp(13)
    while side:
        if isinstance(side[0], tuple): side.pop(0); continue
        run_side(1000)
    a.stamp(14)
    if getattr(a, "stamps", False): a.wait_vm_all()
    a.stamp(15)
    a.dump_stamps(16, 52, 8 << 20, wave="s3")

def build(cfg):
    a = Asm()
    a.stamps = cfg.get("stamps", False)
    hdr = open("cdna_kernels/" + NAME + ".s.ref").read().split("\n")
    head = [l for l in hdr if l.startswith(";") and "@launch" not in l and "Override launch" not in l and "grid=ceil" not in l]
    a.raw("\n".join(head[:21]))
    a.raw(f"; @launch grid=(256,1,1) block=(512,1,1) lds={LDS_TOTAL}")
    a.raw('.amdgcn_target "amdgcn-amd-amdhsa--gfx950"\n.text')
    kernel(a, cfg)
    a.raw(f""".section .rodata,"a"
.p2align 6
.amdhsa_kernel {KN}
  .amdhsa_next_free_vgpr 256
  .amdhsa_next_free_sgpr 100
  .amdhsa_accum_offset 128
  .amdhsa_group_segment_fixed_size 0
  .amdhsa_kernarg_size 152
  .amdhsa_user_sgpr_count 2
  .amdhsa_user_sgpr_kernarg_segment_ptr 1
  .amdhsa_system_sgpr_workgroup_id_x 1
.end_amdhsa_kernel""")
    return a.finalize()

DEFAULT = dict(passes=[[0, 1, 2], [3, 4, 5], [6, 7]], NB=8, LOOK=10, RATE=2)
if __name__ == "__main__":
    out = sys.argv[1] if len(sys.argv) > 1 else "cdna_kernels/" + NAME + ".s"
    cfg = dict(DEFAULT)
    for arg in sys.argv[2:]:
        if arg == "stamps": cfg["stamps"] = True
        elif "=" in arg:
            k, v = arg.split("=", 1); cfg[k] = eval(v)
    open(out, "w").write(build(cfg))
    print("wrote", out)
```

```python
import sys, struct
from dsl import Asm

NAME = "gated_mix__ssm_conv_h3__ssm_conv_s4__prompt"
KN = NAME + "_kernel"
LOG2E = 0x3fb8aa3b
WS_XQ = 0
WS_XKV = 2 << 20
WS_GP = 4 << 20
WS_FLAGS = (4 << 20) + 65536
WS_EP = (4 << 20) + 131072
WS_USED = (4 << 20) + 131072 + 4096
FLAGC = 0x5a5a5a5a

KT = 0
QT = KT + 72 * 128
KVT = QT + 8192
SKT = KVT + 8192
PAR = SKT + 512
KC0 = PAR + 3072
KCS = 8320
F0 = KC0 + 4 * KCS
FSZ = 6144
TAB0 = F0 + 2 * FSZ
ENT = 544
TABSZ = 72 * ENT
TABEND = TAB0 + 2 * TABSZ
XRS = 4608
XR0 = TAB0
GM = XR0 + 4 * XRS
PX = GM + 8192
GAB = PX + 32768
assert GAB + 16384 <= TABEND
LDS_TOTAL = TABEND

def fbits(x): return struct.unpack("<I", struct.pack("<f", float(x)))[0]

def cmul(a, dst, w, z, tmp):
    a.e(f"v_pk_mul_f32 v[{tmp}:{tmp+1}], v[{w}:{w+1}], v[{z}:{z+1}] op_sel:[0,0] op_sel_hi:[1,0]")
    a.e(f"v_pk_fma_f32 v[{dst}:{dst+1}], v[{w}:{w+1}], v[{z}:{z+1}], v[{tmp}:{tmp+1}] op_sel:[1,1,0] op_sel_hi:[0,1,1] neg_lo:[1,0,0]")

def cpow(a, dst, rho, phi, m, t0, t1):
    a.e(f"v_mul_f32 v{t0}, 0x{fbits(m):08x}, v{rho}")
    a.e(f"v_mul_f32 v{t1}, 0x{fbits(m):08x}, v{phi}")
    a.e(f"v_exp_f32 v{t0}, v{t0}")
    a.e(f"v_fract_f32 v{t1}, v{t1}")
    a.e(f"v_cos_f32 v{dst}, v{t1}")
    a.e(f"v_sin_f32 v{dst+1}, v{t1}")
    a.e(f"v_mul_f32 v{dst}, v{t0}, v{dst}")
    a.e(f"v_mul_f32 v{dst+1}, v{t0}, v{dst+1}")

def kernel(a, cfg):
    passes, NB, LOOK, RATE = cfg["passes"], cfg["NB"], cfg["LOOK"], cfg["RATE"]
    a.raw(f".globl {KN}\n.p2align 8\n.type {KN},@function\n{KN}:")
    a.e("s_cmp_ge_u32 s2, 256")
    a.e("s_cbranch_scc1 L_END")
    a.stamp(0)
    a.e("s_load_dwordx16 s[16:31], s[0:1], 0")
    a.e("s_load_dwordx16 s[32:47], s[0:1], 64")
    a.e("s_load_dwordx4 s[48:51], s[0:1], 128")
    a.e("s_load_dwordx2 s[52:53], s[0:1], 144")
    a.e("v_lshrrev_b32 v1, 6, v0")
    a.e("v_and_b32 v2, 63, v0")
    a.e("v_readfirstlane_b32 s3, v1")
    a.e("s_and_b32 s4, s2, 7")
    a.e("s_lshr_b32 s5, s2, 3")
    a.e("s_lshl_b32 s10, s4, 6")
    a.e("s_lshl_b32 s11, s5, 1")
    a.e("s_add_u32 s10, s10, s11")
    a.e("s_min_u32 s11, s3, 5")
    a.e("s_lshl_b32 s11, s11, 3")
    a.e("s_add_u32 s11, s11, 56")
    a.e("s_load_dwordx2 s[54:55], s[0:1], s11")
    a.e("v_lshrrev_b32 v67, 3, v0")
    a.e("v_and_b32 v68, 7, v0")
    a.e("s_lshl_b32 s11, s5, 16")
    a.e("s_lshl_b32 s12, s4, 7")
    a.e("s_add_u32 s11, s11, s12")
    a.e("v_lshlrev_b32 v5, 10, v67")
    a.e("v_lshl_add_u32 v5, v68, 4, v5")
    a.e("v_add_u32 v5, s11, v5")
    a.e("v_subrev_u32 v6, 8192, v5")
    a.e("v_lshlrev_b32 v69, 4, v2")
    a.e("s_and_b32 s79, s3, 3")
    a.e("s_lshr_b32 s7, s3, 2")
    a.e("s_xor_b32 s6, s79, s7") if cfg.get("mix", True) else a.e("s_mov_b32 s6, s79")
    a.e("s_and_b32 s8, s6, 1")
    a.e("s_lshr_b32 s9, s6, 1")
    a.e("s_lshl_b32 s14, s4, 9")
    a.e("s_lshl_b32 s15, s10, 8")
    a.e("s_lshl_b32 s77, s3, 10")
    a.e("s_lshl_b32 s12, s2, 3")
    a.e("s_add_u32 s12, s12, s3")
    a.e("s_lshl_b32 s13, s12, 10")
    a.e("v_add_u32 v7, s13, v69")
    MQ = 96
    a.e(f"s_mov_b32 s{MQ}, s79")
    a.e("s_waitcnt lgkmcnt(0)")
    a.stamp(1)
    a.e("s_mov_b32 s56, s18"); a.e("s_and_b32 s57, s19, 0xffff"); a.e("s_mov_b32 s58, 0x200000"); a.e("s_mov_b32 s59, 0x20000")
    V = 32; GQ = 36; GW = 40; T0 = 44; T1 = 48
    EPV = 30; vKW = 31
    a.e("s_cmp_eq_u32 s3, 0")
    a.e("s_cbranch_scc0 L_R1")
    a.e(f"s_mov_b32 m0, {KT}")
    a.e("s_nop 0")
    a.e("buffer_load_dwordx4 v6, s[56:59], 0 offen lds")
    a.e("s_branch L_R2")
    a.label("L_R1")
    a.e("s_cmp_eq_u32 s3, 1")
    a.e("s_cbranch_scc0 L_R1B")
    a.e("v_add_u32 v1, s14, v69")
    a.e("s_mov_b32 exec_hi, 0")
    a.e(f"s_mov_b32 m0, {SKT}")
    a.e("s_nop 0")
    a.e("global_load_lds_dwordx4 v1, s[22:23]")
    a.e("s_mov_b32 exec_hi, -1")
    a.e("s_branch L_R2")
    a.label("L_R1B")
    a.e("s_cmp_eq_u32 s3, 7")
    a.e("s_cbranch_scc0 L_R2")
    a.e(f"v_mov_b32 v1, {WS_EP}")
    a.e(f"global_load_dword v{EPV}, v1, s[52:53]")
    a.label("L_R2")
    a.e(f"s_add_u32 m0, s77, {QT}")
    a.e("s_nop 0")
    a.e("global_load_lds_dwordx4 v5, s[16:17]")
    a.e(f"s_add_u32 m0, s77, {KT + 1024}")
    a.e("s_nop 0")
    a.e("buffer_load_dwordx4 v5, s[56:59], 0 offen lds")
    a.e(f"global_load_dwordx4 v[{V}:{V+3}], v5, s[20:21]")
    a.e("s_cmp_lt_u32 s3, 6")
    a.e("s_cbranch_scc0 L_R3")
    a.e("s_lshl_b32 s77, s3, 9")
    a.e(f"s_add_u32 m0, s77, {PAR}")
    a.e("v_add_u32 v1, s15, v69")
    a.e("s_mov_b32 exec_hi, 0")
    a.e("global_load_lds_dwordx4 v1, s[54:55]")
    a.e("s_mov_b32 exec_hi, -1")
    a.e("s_branch L_R4")
    a.label("L_R3")
    a.e("s_cmp_eq_u32 s3, 7")
    a.e("s_cbranch_scc0 L_R3B")
    a.e("v_lshlrev_b32 v1, 21, v2")
    a.e("s_mov_b64 exec, 3")
    a.e("global_load_dword v66, v1, s[52:53]")
    a.e("s_mov_b64 exec, -1")
    a.e("s_branch L_R4")
    a.label("L_R3B")
    a.e("s_getpc_b64 s[78:79]")
    a.label("L_PC")
    a.raw("  .set CODE_REM, L_CODE_END - L_PC")
    a.e("v_lshlrev_b32 v1, 8, v2")
    a.e(f"v_cmp_gt_u32 vcc, CODE_REM, v1")
    a.e(f"v_cndmask_b32 v1, 0, v1, vcc")
    a.e(f"global_load_dword v66, v1, s[78:79]")
    a.label("L_R4")
    a.e(f"global_load_dwordx4 v[{GQ}:{GQ+3}], v7, s[16:17]")
    a.e(f"global_load_dwordx4 v[{GW}:{GW+3}], v69, s[46:47]")
    a.stamp(2)
    a.e("s_mov_b32 s60, s52"); a.e("s_and_b32 s61, s53, 0xffff"); a.e(f"s_mov_b32 s62, {WS_USED}"); a.e("s_mov_b32 s63, 0x20000")
    a.e("s_mov_b32 s64, s48"); a.e("s_and_b32 s65, s49, 0xffff"); a.e("s_mov_b32 s66, 0x200000"); a.e("s_mov_b32 s67, 0x20000")
    a.e("s_mov_b32 s68, s24"); a.e("s_and_b32 s69, s25, 0xffff"); a.e("s_mov_b32 s70, 0x200000"); a.e("s_mov_b32 s71, 0x20000")
    a.e("s_lshl_b32 s77, s10, 1")
    a.e("s_load_dword s74, s[26:27], s77")
    a.e("s_load_dword s75, s[44:45], s77")
    a.e("s_load_dword s76, s[42:43], s77")
    ONES, MLO, MHI = 21, 52, 53
    a.e(f"v_mov_b32 v{ONES}, 0x3f803f80")
    a.e(f"v_mov_b32 v{MLO}, 0xffff")
    a.e(f"v_mov_b32 v{MHI}, 0xffff0000")
    vTR, vXS, vRC, vSKA = 63, 64, 65, 66
    vSKA = 1
    a.e(f"v_lshlrev_b32 v{vRC}, 7, v67")
    a.e(f"v_lshl_add_u32 v{vRC}, v68, 4, v{vRC}")
    a.e(f"v_lshlrev_b32 v{vSKA}, 6, v68")
    J, Q4 = 70, 71
    a.e(f"v_and_b32 v{J}, 15, v2")
    a.e(f"v_lshrrev_b32 v{Q4}, 4, v2")
    a.e(f"v_lshrrev_b32 v72, 2, v{J}")
    a.e(f"v_and_b32 v73, 3, v{J}")
    a.e("s_lshl_b32 s77, s7, 2")
    a.e(f"v_add_u32 v74, s77, v{Q4}")
    a.e("v_lshlrev_b32 v75, 3, v74")
    a.e("v_add_u32 v76, 3, v75")
    a.e("v_sub_u32 v76, v76, v72")
    a.e("v_lshlrev_b32 v76, 7, v76")
    a.e("v_lshl_add_u32 v76, v73, 3, v76")
    a.e(f"s_lshl_b32 s77, s{MQ}, 5")
    a.e(f"v_add_u32 v{vTR}, s77, v76")
    a.e("s_lshl_b32 s77, s4, 18")
    a.e(f"s_lshl_b32 s78, s{MQ}, 16")
    a.e("s_add_u32 s77, s77, s78")
    a.e("s_add_u32 s77, s77, 4080")
    a.e("s_lshl_b32 s78, s5, 7")
    a.e("s_sub_u32 s77, s77, s78")
    a.e(f"v_lshlrev_b32 v{vXS}, 12, v{J}")
    a.e("v_lshlrev_b32 v76, 1, v75")
    a.e(f"v_sub_u32 v{vXS}, v{vXS}, v76")
    a.e(f"v_add_u32 v{vXS}, s77, v{vXS}")
    a.e("s_lshl_b32 s13, s10, 12")
    a.e("v_lshlrev_b32 v4, 4, v0")
    a.e("v_add_u32 v13, s13, v4")
    XA = 54
    a.e("v_and_b32 v72, 255, v0")
    a.e("v_lshlrev_b32 v72, 3, v72")
    a.e("v_lshrrev_b32 v73, 8, v0")
    a.e(f"v_mul_u32_u24 v74, {FSZ}, v73")
    a.e(f"v_add_u32 v74, {F0}, v74")
    for k in range(5):
        a.e(f"v_add_u32 v75, {2*k}, v72")
        a.e(f"v_add_u32 v76, {2*k+1}, v72")
        a.e("v_cvt_f32_u32 v75, v75")
        a.e("v_cvt_f32_u32 v76, v76")
        a.e("v_cvt_pk_bf16_f32 v75, v75, v76")
        a.e(f"v_and_b32 v76, v{MHI}, v75")
        a.e("v_lshlrev_b32 v75, 16, v75")
        a.e("v_cvt_u32_f32 v75, v75")
        a.e(f"v_lshl_add_u32 v{XA+2*k}, v75, 1, v74")
        if k < 4:
            a.e("v_cvt_u32_f32 v76, v76")
            a.e(f"v_lshl_add_u32 v{XA+2*k+1}, v76, 1, v74")
    a.e(f"v_mul_u32_u24 v{vKW}, {2*KCS}, v73")
    a.e(f"v_lshl_add_u32 v{vKW}, v72, 1, v{vKW}")
    a.e(f"v_add_u32 v{vKW}, {KC0+32}, v{vKW}")
    vB, vX, vQ, vG, vPX, vGW, vCMB, vOUT = 8, 9, 10, 11, 12, 14, 15, 16
    vA = [17, 18, 19, 20]
    SQL, SQH, ONEF, SG, DF = 22, 23, 24, 25, 26
    vXL = 3
    a.e(f"s_mul_i32 s77, s6, {XRS}")
    a.e(f"s_add_u32 s77, s77, {XR0}")
    a.e("s_lshl_b32 s78, s7, 8")
    a.e("s_add_u32 s78, s78, s77")
    a.e("s_add_u32 s78, s78, 480")
    a.e(f"v_lshlrev_b32 v7, 5, v{J}")
    a.e(f"v_lshlrev_b32 v{vB}, 4, v{Q4}")
    a.e(f"v_sub_u32 v{vB}, v{vB}, v7")
    a.e(f"v_add_u32 v{vB}, s78, v{vB}")
    a.e(f"v_lshl_add_u32 v74, v{Q4}, 3, v7")
    a.e("s_add_u32 s78, s77, 504")
    a.e(f"v_sub_u32 v{vX}, s78, v74")
    vPAD = 5
    a.e("s_add_u32 s78, s77, 4096")
    a.e(f"v_lshlrev_b32 v{vPAD}, 3, v2")
    a.e(f"v_add_u32 v{vPAD}, s78, v{vPAD}")
    a.e("s_or_b32 s78, s6, 1")
    a.e(f"s_mul_i32 s78, s78, {XRS}")
    a.e(f"s_add_u32 s78, s78, {XR0 + 504}")
    a.e(f"v_sub_u32 v{vQ}, s78, v74")
    a.e(f"v_lshlrev_b32 v75, 1, v74")
    a.e(f"v_add_u32 v{vG}, {GM}, v75")
    a.e("s_lshl_b32 s78, s6, 13")
    a.e(f"s_add_u32 s78, s78, {PX}")
    a.e(f"v_add_u32 v{vPX}, s78, v69")
    a.e("s_lshl_b32 s78, s6, 12")
    a.e(f"s_add_u32 s78, s78, {GAB}")
    a.e(f"v_add_u32 v{vGW}, s78, v74")
    a.e("s_lshl_b32 s78, s6, 6")
    a.e(f"v_add_u32 v75, s78, v2")
    a.e(f"v_lshlrev_b32 v{vCMB}, 1, v75")
    a.e(f"v_add_u32 v{vCMB}, {GAB}, v{vCMB}")
    a.e(f"v_lshlrev_b32 v{vOUT}, 10, v75")
    a.e("s_lshl_b32 s78, s10, 1")
    a.e(f"v_add_u32 v{vOUT}, s78, v{vOUT}")
    a.e("s_lshl_b32 s78, s7, 7")
    a.e("s_sub_u32 s78, s78, 15")
    a.e(f"v_lshl_add_u32 v75, v{Q4}, 3, v{J}")
    a.e("v_add_u32 v75, s78, v75")
    a.e("v_lshlrev_b32 v75, 1, v75")
    a.e(f"s_mul_i32 s78, s6, {KCS}")
    a.e(f"s_add_u32 s78, s78, {KC0 + 32}")
    a.e(f"v_and_b32 v76, 1, v{J}")
    a.e(f"v_cmp_eq_u32 vcc, 1, v76")
    a.e(f"v_mov_b32 v76, {4160 - 2}")
    a.e(f"v_cndmask_b32 v76, v76, 0, vcc")
    a.e(f"v_add3_u32 v{vA[0]}, v75, v76, s78")
    for i in range(1, 4): a.e(f"v_add_u32 v{vA[i]}, {1024*i}, v{vA[0]}")
    a.e(f"v_mul_u32_u24 v75, {2*XRS}, v73")
    a.e(f"v_lshl_add_u32 v{vXL}, v72, 1, v75")
    a.e(f"v_add_u32 v{vXL}, {XR0}, v{vXL}")
    a.e(f"v_mov_b32 v{ONEF}, 1.0")
    a.e("s_cmp_eq_u32 s8, 0")
    a.e("s_mov_b32 s78, 0x03020100")
    a.e("s_cselect_b32 s77, 0x05040c0c, s78");  a.e(f"v_mov_b32 v{SQL}, s77")
    a.e("s_cselect_b32 s77, 0x07060c0c, s78");  a.e(f"v_mov_b32 v{SQH}, s77")
    a.e("s_mov_b32 s78, 0x07060c0c")
    a.e("s_cselect_b32 s77, 0x05040c0c, s78");  a.e(f"v_mov_b32 v{SG}, s77")
    a.stamp(4)
    a.e("s_waitcnt vmcnt(5)")
    a.e("s_barrier")
    XO = 72
    a.e(f"ds_read_b64_tr_b16 v[{XO}:{XO+1}], v{vTR} offset:{QT+512}")
    tq = a.e(f"ds_read_b64_tr_b16 v[{XO+2}:{XO+3}], v{vTR} offset:{QT}")
    a.wait_ds(tq)
    a.e(f"buffer_store_dwordx4 v[{XO}:{XO+3}], v{vXS}, s[60:63], 0 offen sc1")
    a.e("s_waitcnt vmcnt(4) lgkmcnt(0)")
    a.ds_done = a.ds_issued
    a.stamp(5)
    a.e("s_barrier")
    KR = 72; SK = 88
    for tau in (3, 2, 1, 0):
        a.e(f"ds_read_b128 v[{KR+4*tau}:{KR+4*tau+3}], v{vRC} offset:{KT + (8-tau)*128}")
    for i in range(4):
        tsk = a.e(f"ds_read_b128 v[{SK+4*i}:{SK+4*i+3}], v{vSKA} offset:{SKT + 16*i}")
    a.e("s_cmp_eq_u32 s8, 0")
    a.e("s_cselect_b32 s77, s74, s75")
    a.e("s_lshl_b32 s78, s9, 4")
    a.e("s_lshr_b32 s77, s77, s78")
    a.e("s_lshl_b32 s77, s77, 16")
    a.e(f"v_mov_b32 v{DF}, s77")
    a.wait_ds(tsk)
    chains = [(m, ci) for m in range(4) for ci in range(2)]
    PA, PB, MK = 104, 112, 120
    def prod(dst, tau):
        for idx, (m, ci) in enumerate(chains):
            cch = 2 * m + ci
            src = SK + 2 * cch + (tau >> 1)
            if ci == 0:
                if tau & 1: a.e(f"v_lshrrev_b32 v{MK+idx}, 16, v{src}")
                else: a.e(f"v_and_b32 v{MK+idx}, v{MLO}, v{src}")
            else:
                if tau & 1: a.e(f"v_and_b32 v{MK+idx}, v{MHI}, v{src}")
                else: a.e(f"v_lshlrev_b32 v{MK+idx}, 16, v{src}")
        for idx, (m, ci) in enumerate(chains):
            a.e(f"v_dot2_f32_bf16 v{dst+idx}, v{KR+4*tau+m}, v{MK+idx}, 0")
    prod(PA, 3)
    for tau in (2, 1, 0):
        prod(PB, tau)
        for idx in range(8): a.e(f"v_cvt_pk_bf16_f32 v{MK+idx}, v{PA+idx}, v{PB+idx}")
        for idx in range(8): a.e(f"v_dot2_f32_bf16 v{PA+idx}, v{MK+idx}, v{ONES}, 0")
    for m in range(4):
        a.e(f"v_and_b32 v{MK+2*m}, v{MLO}, v{V+m}")
        a.e(f"v_and_b32 v{MK+2*m+1}, v{MHI}, v{V+m}")
    for m in range(4): a.e(f"v_cvt_pk_bf16_f32 v{PB+m}, v{PA+2*m}, v{PA+2*m+1}")
    for m in range(4):
        a.e(f"v_dot2_f32_bf16 v{PA+2*m}, v{PB+m}, v{MK+2*m}, 0")
        a.e(f"v_dot2_f32_bf16 v{PA+2*m+1}, v{PB+m}, v{MK+2*m+1}, 0")
    KVR = 116
    for m in range(4): a.e(f"v_cvt_pk_bf16_f32 v{KVR+m}, v{PA+2*m}, v{PA+2*m+1}")
    a.e(f"ds_write_b128 v{vRC}, v[{KVR}:{KVR+3}] offset:{KVT}")
    a.e("s_waitcnt vmcnt(3) lgkmcnt(0)")
    a.ds_done = a.ds_issued
    a.stamp(6)
    a.e("s_barrier")
    XO = 72
    a.e(f"ds_read_b64_tr_b16 v[{XO+4}:{XO+5}], v{vTR} offset:{KVT+512}")
    tq2 = a.e(f"ds_read_b64_tr_b16 v[{XO+6}:{XO+7}], v{vTR} offset:{KVT}")
    a.e(f"s_mov_b32 s77, {WS_XKV}")
    a.wait_ds(tq2)
    a.e(f"buffer_store_dwordx4 v[{XO+4}:{XO+7}], v{vXS}, s[60:63], s77 offen sc1")
    a.e("s_waitcnt vmcnt(2)")
    GA = 100; T = 101
    for m in range(4):
        a.e(f"v_and_b32 v{T+2*m}, v{MLO}, v{GW+m}")
        a.e(f"v_and_b32 v{T+2*m+1}, v{MHI}, v{GW+m}")
    for m in range(4):
        a.e(f"v_dot2_f32_bf16 v{T+2*m}, v{GQ+m}, v{T+2*m}, 0")
        a.e(f"v_dot2_f32_bf16 v{T+2*m+1}, v{GQ+m}, v{T+2*m+1}, 0")
    for m in range(4): a.e(f"v_cvt_pk_bf16_f32 v{T+8+m}, v{T+2*m}, v{T+2*m+1}")
    for m in range(4):
        a.e(f"v_lshlrev_b32 v{T+2*m}, 16, v{T+8+m}")
        a.e(f"v_and_b32 v{T+2*m+1}, v{MHI}, v{T+8+m}")
    for m in range(4): a.e(f"v_add_f32 v{T+2*m}, v{T+2*m}, v{T+2*m+1}")
    a.e(f"v_add_f32 v{T}, v{T}, v{T+2}")
    a.e(f"v_add_f32 v{T+4}, v{T+4}, v{T+6}")
    a.e(f"v_add_f32 v{GA}, v{T}, v{T+4}")
    for sh in (1, 2, 4, 8):
        a.e(f"v_add_f32_dpp v{GA}, v{GA}, v{GA} row_shr:{sh} row_mask:0xf bank_mask:0xf bound_ctrl:0")
    a.e(f"v_add_f32_dpp v{GA}, v{GA}, v{GA} row_bcast:15 row_mask:0xa bank_mask:0xf")
    a.e(f"v_add_f32_dpp v{GA}, v{GA}, v{GA} row_bcast:31 row_mask:0xc bank_mask:0xf")
    a.e(f"v_cvt_pk_bf16_f32 v{T+1}, v{GA}, v{GA}")
    a.e(f"v_and_b32 v{T+1}, v{MHI}, v{T+1}")
    a.e(f"v_mul_f32 v{T+1}, 0x{LOG2E ^ 0x80000000:08x}, v{T+1}")
    a.e(f"v_exp_f32 v{T+1}, v{T+1}")
    a.e(f"v_add_f32 v{T+1}, 1.0, v{T+1}")
    a.e(f"v_rcp_f32 v{T+1}, v{T+1}")
    a.e(f"v_cvt_pk_bf16_f32 v{T+1}, v{T+1}, v{T+1}")
    a.e(f"v_and_b32 v{T+2}, v{MHI}, v{T+1}")
    a.e(f"v_sub_f32 v{T+3}, 1.0, v{T+2}")
    a.e(f"v_cvt_pk_bf16_f32 v{T+1}, v{T+2}, v{T+3}")
    a.e("s_lshl_b32 s77, s12, 2")
    a.e(f"s_add_u32 s77, s77, {WS_GP}")
    a.e(f"v_mov_b32 v{T+2}, s77")
    a.e("s_mov_b32 exec_lo, 0")
    a.e("s_mov_b32 exec_hi, 0x80000000")
    a.e(f"buffer_store_dword v{T+1}, v{T+2}, s[60:63], 0 offen sc1")
    a.e("s_mov_b64 exec, -1")
    a.e(f"buffer_load_dwordx4 v[{T0}:{T0+3}], v13, s[68:71], 0 offen")
    a.e(f"buffer_load_dwordx4 v[{T1}:{T1+3}], v13, s[68:71], 0 offen offset:4")
    a.stamp(7)
    PR = 72
    a.e("v_and_b32 v79, 127, v0")
    a.e("v_lshrrev_b32 v80, 8, v0")
    a.e("v_lshlrev_b32 v81, 8, v80")
    a.e("v_lshl_add_u32 v81, v79, 1, v81")
    for i in range(6): tp = a.e(f"ds_read_u16_d16_hi v{PR+i}, v81 offset:{PAR + 512*i}")
    Are, Aim, Bre, Bim, Cre, Cim = [PR + i for i in range(6)]
    DT, RHO, PHI, TA = 82, 83, 84, 85
    C = 86
    a.e("s_lshl_b32 s77, s7, 4")
    a.e("s_lshr_b32 s77, s76, s77")
    a.e("s_lshl_b32 s77, s77, 16")
    a.e(f"v_mov_b32 v{DT}, s77")
    a.e(f"v_mul_f32 v{DT}, 0x{LOG2E:08x}, v{DT}")
    a.e(f"v_exp_f32 v{DT}, v{DT}")
    a.e(f"v_mul_u32_u24 v{TA}, {TABSZ}, v80")
    a.e(f"v_lshl_add_u32 v{TA}, v79, 2, v{TA}")
    a.e(f"v_add_u32 v{TA}, {TAB0}, v{TA}")
    a.e(f"v_cvt_pk_bf16_f32 v{DT}, v{DT}, v{DT}")
    a.e(f"v_and_b32 v{DT}, v{MHI}, v{DT}")
    a.wait_ds(tp)
    a.e(f"v_mul_f32 v{RHO}, v{DT}, v{Are}")
    a.e(f"v_mul_f32 v{PHI}, v{DT}, v{Aim}")
    a.e(f"v_mul_f32 v{RHO}, 0x{LOG2E:08x}, v{RHO}")
    a.e(f"v_mul_f32 v{PHI}, 0.15915494, v{PHI}")
    a.e(f"v_mul_f32 v{Bre}, v{DT}, v{Bre}")
    a.e(f"v_mul_f32 v{Bim}, v{DT}, v{Bim}")
    a.e(f"v_mul_f32 v{C}, v{Cre}, v{Bre}")
    a.e(f"v_mul_f32 v{C+1}, v{Cre}, v{Bim}")
    a.e(f"v_fma_f32 v{C}, -v{Cim}, v{Bim}, v{C}")
    a.e(f"v_fma_f32 v{C+1}, v{Cim}, v{Bre}, v{C+1}")
    t0, t1 = 88, 89
    def put(entry, pair, neg, tmp):
        a.e(f"v_cvt_pk_bf16_f32 v{tmp}, v{pair}, {'-' if neg else ''}v{pair+1}")
        a.e(f"ds_write_b32 v{TA}, v{tmp} offset:{entry*ENT}")
    def flagpoint(tag):
        a.stamp(3)
        a.e("s_waitcnt vmcnt(2)")
        a.stamp(8)
        a.e("s_barrier")
        a.e("s_cmp_eq_u32 s3, 7")
        a.e(f"s_cbranch_scc0 L_NOFLAG{tag}")
        a.e(f"v_readfirstlane_b32 s72, v{EPV}")
        a.e("s_add_u32 s72, s72, 1")
        a.e(f"s_xor_b32 s73, s72, 0x{FLAGC:08x}")
        a.e("v_mov_b32 v120, s72")
        a.e("v_mov_b32 v121, s73")
        a.e("s_lshl_b32 s77, s2, 3")
        a.e(f"s_add_u32 s77, s77, {WS_FLAGS}")
        a.e("v_mov_b32 v122, s77")
        a.e("s_mov_b64 exec, 1")
        a.e("buffer_store_dwordx2 v[120:121], v122, s[60:63], 0 offen sc1")
        a.e("s_mov_b64 exec, -1")
        a.label(f"L_NOFLAG{tag}")
    FP = cfg.get("flagpos", 8)
    a.e("s_bitcmp1_b32 s3, 1")
    a.e("s_cbranch_scc1 L_HALF1")
    Z4, Z8, Z128, W, S3, TM1, TM2 = 90, 92, 94, 96, 98, 100, 102
    PT = 104
    cpow(a, Z4, RHO, PHI, 4, t0, t1)
    cpow(a, Z128, RHO, PHI, 128, t0, t1)
    cpow(a, S3, RHO, PHI, 1024, t0, t1)
    cmul(a, Z8, Z4, Z4, TM1)
    cmul(a, S3, S3, C, TM2)
    a.e(f"v_mov_b32 v{W}, 1.0"); a.e(f"v_mov_b32 v{W+1}, 0")
    put(0, W, False, PT)
    put(24 + 32 + 0, S3, True, PT + 1)
    for jx in range(1, 17):
        cmul(a, W, W, Z4, TM1)
        if jx <= 8: cmul(a, S3, S3, Z128, TM2)
        put(jx, W, False, PT + (jx & 1) * 2)
        if jx <= 8: put(24 + 32 + jx, S3, True, PT + 1 + (jx & 1) * 2)
        if jx == FP: flagpoint("A")
    for m in range(1, 8):
        cmul(a, W, W, Z8, TM1)
        put(16 + m, W, False, PT + (m & 1) * 2)
    a.e("s_branch L_TABDONE")
    a.label("L_HALF1")
    Z1, Z64 = 90, 92
    VV = [94, 96, 98, 100]; TT = [102, 104, 106, 108]; PT = 110
    cpow(a, Z1, RHO, PHI, 1, t0, t1)
    cpow(a, Z64, RHO, PHI, 64, t0, t1)
    a.e(f"v_mov_b32 v{VV[0]}, v{C}"); a.e(f"v_mov_b32 v{VV[0]+1}, v{C+1}")
    cmul(a, VV[1], VV[0], Z1, TT[0])
    cmul(a, VV[2], VV[1], Z1, TT[0])
    cmul(a, VV[3], VV[2], Z1, TT[0])
    for i in range(16):
        ps = [0, 1, 2, 3] if i < 4 else ([0, 2] if i < 8 else [0])
        if i > 0:
            for p in ps: cmul(a, VV[p], VV[p], Z64, TT[p])
        for p in ps:
            if i < 4: ent = 24 + 4 * i + p
            elif i < 8: ent = 24 + 16 + 2 * (i - 4) + p // 2
            else: ent = 24 + 16 + i
            put(ent, VV[p], True, PT + p)
        if i == 3: flagpoint("B")
    a.label("L_TABDONE")
    a.e("s_nop 1")
    a.e(f"s_mul_i32 s77, s7, {TABSZ}")
    a.e(f"s_add_u32 s77, s77, {TAB0}")
    a.e(f"s_lshl_b32 s78, s{MQ}, 4")
    a.e("s_add_u32 s78, s78, 24")
    a.e(f"v_add_u32 v72, s78, v{J}")
    a.e(f"v_mul_u32_u24 v72, {ENT}, v72")
    a.e(f"v_lshl_add_u32 v72, v{Q4}, 4, v72")
    a.e("v_add_u32 v72, s77, v72")
    a.e(f"v_lshlrev_b32 v73, 1, v{J}")
    a.e(f"v_add_u32 v74, 8, v{J}")
    a.e(f"v_cmp_gt_u32 vcc, 8, v{J}")
    a.e("v_cndmask_b32 v73, v74, v73, vcc")
    a.e(f"s_cmp_eq_u32 s{MQ}, 2")
    a.e("s_cselect_b64 s[78:79], -1, 0")
    a.e(f"v_cndmask_b32 v73, v{J}, v73, s[78:79]")
    a.e(f"v_mul_u32_u24 v73, {ENT}, v73")
    a.e(f"v_lshl_add_u32 v73, v{Q4}, 4, v73")
    a.e("v_add_u32 v73, s77, v73")
    FW = 76
    a.e(f"s_cmp_eq_u32 s{MQ}, 1")
    a.e("s_cbranch_scc1 L_FT1")
    a.e(f"s_cmp_eq_u32 s{MQ}, 2")
    a.e("s_cbranch_scc1 L_FT2")
    a.e(f"v_lshlrev_b32 v{FW}, 6, v{Q4}")
    a.e(f"v_lshl_add_u32 v{FW}, v{J}, 2, v{FW}")
    for e in range(1, 4): a.e(f"v_add_u32 v{FW+e}, {e}, v{FW}")
    a.e("s_branch L_FDONE")
    a.label("L_FT1")
    a.e(f"v_cmp_gt_u32 vcc, 2, v{Q4}")
    a.e(f"v_lshlrev_b32 v74, 7, v{Q4}")
    a.e("v_add_u32 v74, 256, v74")
    a.e(f"v_lshlrev_b32 v75, 8, v{Q4}")
    a.e(f"v_cndmask_b32 v{FW}, v75, v74, vcc")
    a.e(f"v_lshl_add_u32 v{FW}, v{J}, 2, v{FW}")
    for e, (o1, o2) in enumerate(((2, 64), (64, 128), (66, 192)), start=1):
        a.e(f"v_mov_b32 v74, {o2}")
        a.e(f"v_mov_b32 v75, {o1}")
        a.e(f"v_cndmask_b32 v74, v74, v75, vcc")
        a.e(f"v_add_u32 v{FW+e}, v{FW}, v74")
    a.e("s_branch L_FDONE")
    a.label("L_FT2")
    a.e(f"v_lshlrev_b32 v{FW}, 9, v{Q4}")
    a.e(f"v_lshl_add_u32 v{FW}, v{J}, 3, v{FW}")
    a.e(f"v_add_u32 v{FW}, 1024, v{FW}")
    for e in range(1, 4): a.e(f"v_add_u32 v{FW+e}, {128*e}, v{FW}")
    a.label("L_FDONE")
    a.e(f"s_mul_i32 s77, s7, {FSZ}")
    a.e(f"s_add_u32 s77, s77, {F0}")
    for e in range(4):
        a.e(f"v_lshlrev_b32 v{FW+e}, 1, v{FW+e}")
        a.e(f"v_add_u32 v{FW+e}, s77, v{FW+e}")
    a.wait_ds_all()
    a.stamp(9)
    a.e("s_barrier")
    def areg(cidx, rho): return 4 * (cidx * 4 + rho)
    def aloads(a):
        for cidx in range(8):
            for rho in range(4):
                r = areg(cidx, rho); o = 128 * (cidx & 1) + 16 * rho; va = vA[cidx >> 1]
                a.e(f"ds_read2_b32 a[{r}:{r+1}], v{va} offset0:{o} offset1:{o+1}")
                a.e(f"ds_read2_b32 a[{r+2}:{r+3}], v{va} offset0:{o+2} offset1:{o+3}")
    a.e("s_cmp_eq_u32 s3, 7")
    a.e("s_cbranch_scc0 L_NOP1")
    a.e("v_lshlrev_b32 v110, 5, v2")
    a.e(f"v_add_u32 v110, {WS_FLAGS}, v110")
    a.e("buffer_load_dwordx4 v[112:115], v110, s[60:63], 0 offen sc1")
    a.e("buffer_load_dwordx4 v[116:119], v110, s[60:63], 0 offen offset:16 sc1")
    a.label("L_NOP1")
    a.e(f"s_cmp_eq_u32 s{MQ}, 3")
    a.e("s_cbranch_scc1 L_MMDONE")
    ACCK = 100
    toks = []
    for ks in range(8):
        a.e(f"ds_read_b128 a[{64+4*ks}:{64+4*ks+3}], v72 offset:{64*ks}")
        toks.append(a.e(f"ds_read_b128 a[{96+4*ks}:{96+4*ks+3}], v73 offset:{64*ks}"))
    for ks in range(8):
        a.wait_ds(toks[ks])
        src = "0" if ks == 0 else f"v[{ACCK}:{ACCK+3}]"
        a.e(f"v_mfma_f32_16x16x32_bf16 v[{ACCK}:{ACCK+3}], a[{64+4*ks}:{64+4*ks+3}], a[{96+4*ks}:{96+4*ks+3}], {src}")
    a.e(f"v_cvt_pk_bf16_f32 v104, v{ACCK}, v{ACCK+1}")
    a.e(f"v_cvt_pk_bf16_f32 v105, v{ACCK+2}, v{ACCK+3}")
    a.e(f"ds_write_b16 v{FW}, v104")
    a.e(f"ds_write_b16_d16_hi v{FW+1}, v104")
    a.e(f"ds_write_b16 v{FW+2}, v105")
    a.e(f"ds_write_b16_d16_hi v{FW+3}, v105")
    a.label("L_MMDONE")
    a.e("s_cmp_eq_u32 s3, 7")
    a.e("s_cbranch_scc1 L_WK7")
    a.e("s_waitcnt vmcnt(0)")
    a.e("s_branch L_WKD")
    a.label("L_WK7")
    a.e("s_waitcnt vmcnt(3)")
    a.label("L_WKD")
    O = 84
    for jx in range(4): a.e(f"v_alignbit_b32 v{O+jx}, v{T1+jx}, v{T0+jx}, 16")
    a.e(f"ds_write_b128 v{vKW}, v[{T0}:{T0+3}]")
    a.e(f"ds_write_b128 v{vKW}, v[{O}:{O+3}] offset:4160")
    def pads(koff, firstreg, lab):
        a.e(f"s_cmp_lg_u32 s{MQ}, 0")
        a.e(f"s_cbranch_scc1 {lab}")
        a.e(f"v_readfirstlane_b32 s77, v{firstreg}")
        a.e(f"v_readfirstlane_b32 s78, v{vKW}")
        a.e("s_lshl_b32 s77, s77, 16")
        a.e(f"s_add_u32 s78, s78, {koff - 32}")
        a.e("v_lshlrev_b32 v88, 2, v2")
        a.e("v_add_u32 v88, s78, v88")
        a.e("v_mov_b32 v89, s77")
        a.e("v_cmp_eq_u32 vcc, 7, v2")
        a.e("v_cndmask_b32 v89, 0, v89, vcc")
        a.e("v_mov_b32 v90, 0")
        a.e("s_mov_b64 exec, 0xff")
        a.e("ds_write_b32 v88, v90")
        a.e("ds_write_b32 v88, v89 offset:4160")
        a.e("s_mov_b64 exec, -1")
        a.label(lab)
    pads(0, T0, "L_NOPADA")
    a.wait_ds_all()
    a.stamp(10)
    a.e("s_barrier")
    EL = 72
    for e in range(9): te = a.e(f"ds_read_u16 v{EL+e}, v{XA+e}")
    a.wait_ds(te)
    EE = 84; OO = 92
    for k in range(4):
        a.e(f"v_lshl_or_b32 v{EE+k}, v{EL+2*k+1}, 16, v{EL+2*k}")
        a.e(f"v_lshl_or_b32 v{OO+k}, v{EL+2*k+2}, 16, v{EL+2*k+1}")
    a.e(f"ds_write_b128 v{vKW}, v[{EE}:{EE+3}] offset:{KCS}")
    a.e(f"ds_write_b128 v{vKW}, v[{OO}:{OO+3}] offset:{KCS+4160}")
    pads(KCS, EL, "L_NOPADB")
    a.e("s_cmp_eq_u32 s8, 0")
    a.e("s_cbranch_scc0 L_NOAL1")
    aloads(a)
    a.e("s_waitcnt lgkmcnt(15)")
    a.e("s_branch L_B4")
    a.label("L_NOAL1")
    a.e("s_waitcnt lgkmcnt(0)")
    a.label("L_B4")
    a.stamp(11)
    a.e("s_barrier")
    a.e("v_mov_b32 v72, 0"); a.e("v_mov_b32 v73, 0")
    a.e(f"ds_write_b64 v{vPAD}, v[72:73]")
    a.e("s_cmp_eq_u32 s8, 0")
    a.e("s_cbranch_scc1 L_NOAL2")
    aloads(a)
    a.label("L_NOAL2")
    a.e("s_cmp_eq_u32 s3, 7")
    a.e("s_cbranch_scc0 L_POLLDONE")
    a.e("s_mov_b32 s77, 0")
    a.e("s_branch L_POLLCHK")
    a.label("L_POLL")
    a.e("buffer_load_dwordx4 v[112:115], v110, s[60:63], 0 offen sc1")
    a.e("buffer_load_dwordx4 v[116:119], v110, s[60:63], 0 offen offset:16 sc1")
    a.label("L_POLLCHK")
    a.e("s_waitcnt vmcnt(0)")
    for r in (112, 114, 116, 118): a.e(f"v_xor_b32 v{r}, s72, v{r}")
    for r in (113, 115, 117, 119): a.e(f"v_xor_b32 v{r}, s73, v{r}")
    a.e("v_or_b32 v112, v112, v113"); a.e("v_or_b32 v114, v114, v115"); a.e("v_or_b32 v116, v116, v117"); a.e("v_or_b32 v118, v118, v119")
    a.e("v_or_b32 v112, v112, v114"); a.e("v_or_b32 v116, v116, v118"); a.e("v_or_b32 v112, v112, v116")
    a.e("v_cmp_ne_u32 vcc, 0, v112")
    a.e("s_cmp_eq_u64 vcc, 0")
    a.e("s_cbranch_scc1 L_POLLDONE")
    a.e("s_add_u32 s77, s77, 1")
    a.e("s_cmp_lt_u32 s77, 20000")
    a.e("s_cbranch_scc0 L_POLLDONE")
    a.e("s_branch L_POLL")
    a.label("L_POLLDONE")
    a.vm_done = a.vm_issued
    a.stamp(12)
    a.e("s_barrier")
    XL = 72
    a.e(f"buffer_load_dwordx4 v[{XL}:{XL+3}], v13, s[60:63], 0 offen sc1")
    a.e(f"s_mov_b32 s77, {WS_XKV}")
    a.e(f"buffer_load_dwordx4 v[{XL+4}:{XL+7}], v13, s[60:63], s77 offen sc1")
    a.e(f"s_mov_b32 s77, {WS_GP}")
    a.e(f"buffer_load_dwordx4 v[{XL+8}:{XL+11}], v4, s[60:63], s77 offen sc1")
    a.e(f"v_add_u32 v5, {GM}, v4")
    a.e("s_waitcnt vmcnt(1)")
    a.e(f"ds_write_b128 v{vXL}, v[{XL}:{XL+3}] offset:{XRS}")
    a.e(f"ds_write_b128 v{vXL}, v[{XL+4}:{XL+7}]")
    a.wait_vm_all()
    a.e(f"ds_write_b128 v5, v[{XL+8}:{XL+11}]")
    a.e("s_waitcnt lgkmcnt(0)")
    a.ds_done = a.ds_issued
    a.stamp(13)
    a.e("s_barrier")
    a.e("s_cmp_lg_u32 s2, 0")
    a.e("s_cbranch_scc1 L_NOEP")
    a.e("s_cmp_lg_u32 s3, 7")
    a.e("s_cbranch_scc1 L_NOEP")
    a.e("v_mov_b32 v72, s72")
    a.e(f"v_mov_b32 v73, {WS_EP}")
    a.e("s_mov_b64 exec, 1")
    a.e("buffer_store_dword v72, v73, s[60:63], 0 offen")
    a.e("s_mov_b64 exec, -1")
    a.label("L_NOEP")
    a.e("s_cmp_lg_u32 s7, 0")
    a.e("s_cbranch_scc1 L_H1")
    ctx = dict(vB=vB, vX=vX, vQ=vQ, vG=vG, vPX=vPX, vGW=vGW, vCMB=vCMB, vOUT=vOUT, SQL=SQL, SQH=SQH, ONEF=ONEF, SG=SG, DF=DF, MHI=27,
               nostore=cfg.get("nostore"), noepi=cfg.get("noepi"))
    for kk in ("G1", "G2", "G3", "nobar", "novalu"):
        if kk in cfg: ctx[kk] = cfg[kk]
    main_loop(a, 0, passes, NB, LOOK, RATE, ctx)
    a.e("s_endpgm")
    a.label("L_H1")
    main_loop(a, 1, passes, NB, LOOK, RATE, ctx)
    a.label("L_END")
    a.e("s_endpgm")
    a.label("L_CODE_END")

def main_loop(a, h, passes, NB, LOOK, RATE, c):
    ACC = 32
    BR = 64
    EP = BR + 4 * NB
    assert EP + 32 <= 128
    MHI = c["MHI"]
    a.e(f"v_mov_b32 v{MHI}, 0xffff0000")
    def areg(cidx, rho): return 4 * (cidx * 4 + rho)
    mf = []; loads = []; bseq = 0; pass_end = []
    for P in passes:
        thi = max(P)
        for rho in range(4):
            for dl in range(thi + 1):
                users = [t for t in P if t - dl >= 0]
                if not users: continue
                loads.append(dict(dl=dl, rho=rho, need=len(mf), b=bseq))
                for t in users: mf.append(dict(t=t, c=t - dl, rho=rho, b=bseq))
                bseq += 1
        pass_end.append(len(mf))
    lastuse = {}
    for i, m in enumerate(mf): lastuse[m["b"]] = i
    tokB = {}; li = 0; side = []; started = set()
    G1, G2, G3 = c.get("G1", 2), c.get("G2", 3), c.get("G3", 5)
    def enqueue_pass(pi):
        P = passes[pi]
        send = [t for t in P if t % 2 != h]
        mine = [t for t in P if t % 2 == h]
        S = side
        V = (lambda f: None) if c.get("novalu") else (lambda f: S.append(("v", f)))
        X = lambda f: S.append(("x", f))
        S.append(("gap", G1))
        wt = [None]
        for t in send:
            def f(t=t): wt[0] = a.e(f"ds_write_b128 v{c['vPX']}, v[{ACC+4*t}:{ACC+4*t+3}] offset:{1024*t}")
            X(f)
        S.append(("gap", G2))
        def bar1():
            a.wait_ds(wt[0])
            if not c.get("nobar"): a.e("s_barrier")
        X(bar1)
        wt2 = [None]
        tks = {}
        for k, t in enumerate(mine):
            E = EP + 12 * (k % 2)
            PXR, XO, QM, GG = E, E + 4, E + 6, E + 8
            if k >= 2: break
            X(lambda t=t, PXR=PXR: a.e(f"ds_read_b128 v[{PXR}:{PXR+3}], v{c['vPX']} offset:{1024*t}"))
            X(lambda t=t, XO=XO: a.e(f"ds_read_b64 v[{XO}:{XO+1}], v{c['vX']} offset:{512*(7-t)}"))
            X(lambda t=t, QM=QM: a.e(f"ds_read_b64 v[{QM}:{QM+1}], v{c['vQ']} offset:{512*(7-t)}"))
            def rg(t=t, GG=GG): tks[t] = a.e(f"ds_read_b128 v[{GG}:{GG+3}], v{c['vG']} offset:{1024*t}")
            X(rg)
        assert len(mine) <= 2
        if mine: S.append(("gap", G3))
        for k, t in enumerate(mine):
            E = EP + 12 * (k % 2)
            PXR, XO, QM, GG = E, E + 4, E + 6, E + 8
            TT, UU = EP + 24, EP + 28
            X(lambda t=t: a.wait_ds(tks[t]))
            ac = ACC + 4 * t
            for e in range(4): V(lambda e=e, ac=ac, PXR=PXR: a.e(f"v_add_f32 v{PXR+e}, v{ac+e}, v{PXR+e}"))
            V(lambda XO=XO: a.e(f"v_lshlrev_b32 v{TT+3}, 16, v{XO}"))
            V(lambda XO=XO: a.e(f"v_and_b32 v{TT+2}, v{MHI}, v{XO}"))
            V(lambda XO=XO: a.e(f"v_lshlrev_b32 v{TT+1}, 16, v{XO+1}"))
            V(lambda XO=XO: a.e(f"v_and_b32 v{TT+0}, v{MHI}, v{XO+1}"))
            for e in range(4): V(lambda e=e, PXR=PXR: a.e(f"v_cvt_pk_bf16_f32 v{PXR+e}, 0, v{PXR+e}"))
            for e in range(4): V(lambda e=e: a.e(f"v_mul_f32 v{TT+e}, v{c['DF']}, v{TT+e}"))
            for e in range(4): V(lambda e=e, GG=GG: a.e(f"v_perm_b32 v{GG+e}, v{GG+e}, v{GG+e}, v{c['SG']}"))
            for e in range(4): V(lambda e=e: a.e(f"v_cvt_pk_bf16_f32 v{TT+e}, 0, v{TT+e}"))
            V(lambda QM=QM: a.e(f"v_perm_b32 v{UU+3}, v{QM}, v{c['ONEF']}, v{c['SQL']}"))
            V(lambda QM=QM: a.e(f"v_perm_b32 v{UU+2}, v{QM}, v{c['ONEF']}, v{c['SQH']}"))
            V(lambda QM=QM: a.e(f"v_perm_b32 v{UU+1}, v{QM+1}, v{c['ONEF']}, v{c['SQL']}"))
            V(lambda QM=QM: a.e(f"v_perm_b32 v{UU+0}, v{QM+1}, v{c['ONEF']}, v{c['SQH']}"))
            for e in range(4): V(lambda e=e, PXR=PXR: a.e(f"v_add_f32 v{PXR+e}, v{PXR+e}, v{TT+e}"))
            for e in range(4): V(lambda e=e, PXR=PXR: a.e(f"v_cvt_pk_bf16_f32 v{PXR+e}, 0, v{PXR+e}"))
            for e in range(4): V(lambda e=e, PXR=PXR: a.e(f"v_mul_f32 v{PXR+e}, v{PXR+e}, v{UU+e}"))
            for e in range(4): V(lambda e=e, PXR=PXR: a.e(f"v_cvt_pk_bf16_f32 v{PXR+e}, 0, v{PXR+e}"))
            for e in range(4): V(lambda e=e, PXR=PXR, GG=GG: a.e(f"v_mul_f32 v{PXR+e}, v{PXR+e}, v{GG+e}"))
            V(lambda PXR=PXR: a.e(f"v_cvt_pk_bf16_f32 v{TT+0}, v{PXR+0}, v{PXR+1}"))
            V(lambda PXR=PXR: a.e(f"v_cvt_pk_bf16_f32 v{TT+1}, v{PXR+2}, v{PXR+3}"))
            def wr(t=t): wt2[0] = a.e(f"ds_write_b64 v{c['vGW']}, v[{TT}:{TT+1}] offset:{512*t}")
            X(wr)
        S.append(("gap", G2))
        def bar2():
            a.wait_ds(wt2[0])
            if not c.get("nobar"): a.e("s_barrier")
        X(bar2)
        tkc = {}
        for k, t in enumerate(mine):
            CM = [EP + 4 * k + i for i in range(4)]
            for cc2 in range(4):
                def rd(cc2=cc2, t=t, CM=CM): tkc[t] = a.e(f"ds_read_u16_d16_hi v{CM[cc2]}, v{c['vCMB']} offset:{4096*cc2+512*t}")
                X(rd)
        if mine: S.append(("gap", G3))
        for k, t in enumerate(mine):
            CM = [EP + 4 * k + i for i in range(4)]
            X(lambda t=t: a.wait_ds(tkc[t]))
            V(lambda CM=CM: a.e(f"v_add_f32 v{CM[0]}, v{CM[0]}, v{CM[1]}"))
            V(lambda CM=CM: a.e(f"v_add_f32 v{CM[2]}, v{CM[2]}, v{CM[3]}"))
            X(lambda t=t: a.e(f"s_mov_b32 s77, {t*262144}"))
            V(lambda CM=CM: a.e(f"v_cvt_pk_bf16_f32 v{CM[1]}, v{CM[0]}, v{CM[2]}"))
            if not c.get("nostore"): X(lambda CM=CM: a.e(f"buffer_store_dword v{CM[1]}, v{c['vOUT']}, s[64:67], s77 offen"))
    def run_side(n):
        k = 0
        while side:
            it = side[0]
            if it[0] == "gap":
                if it[1] <= 0: side.pop(0); continue
                side[0] = ("gap", it[1] - 1)
                return
            if it[0] == "v":
                if k >= n: return
                k += 1
            side.pop(0); it[1]()
    for i, m in enumerate(mf):
        while li < len(loads):
            L = loads[li]
            if L["need"] > i + LOOK: break
            prev = L["b"] - NB
            if prev >= 0 and lastuse[prev] >= i: break
            r = BR + 4 * (L["b"] % NB)
            tokB[L["b"]] = a.e(f"ds_read_b128 v[{r}:{r+3}], v{c['vB']} offset:{64*L['rho'] + 512*(7-L['dl'])}")
            li += 1
        a.wait_ds(tokB[m["b"]])
        ar = areg(m["c"], m["rho"]); br = BR + 4 * (m["b"] % NB); ac = ACC + 4 * m["t"]
        src = f"v[{ac}:{ac+3}]" if m["t"] in started else "0"
        started.add(m["t"])
        a.e(f"v_mfma_f32_16x16x32_bf16 v[{ac}:{ac+3}], a[{ar}:{ar+3}], v[{br}:{br+3}], {src}")
        if (i + 1) in pass_end and not c.get("noepi"): enqueue_pass(pass_end.index(i + 1))
        run_side(RATE)
    a.stamp(14)
    while side:
        if side[0][0] == "gap": side.pop(0); continue
        run_side(1000)
    if getattr(a, "stamps", False): a.wait_vm_all()
    a.stamp(15)
    a.dump_stamps(16, 52, 8 << 20, wave="s3")

def build(cfg):
    a = Asm()
    a.stamps = cfg.get("stamps", False)
    a.stamp_sel = cfg.get("stamp_sel", None)
    hdr = open("cdna_kernels/" + NAME + ".s.ref").read().split("\n")
    head = [l for l in hdr if l.startswith(";") and "@launch" not in l and "Override launch" not in l and "grid=ceil" not in l]
    a.raw("\n".join(head[:21]))
    a.raw(f"; @launch grid=(256,1,1) block=(512,1,1) lds={LDS_TOTAL}")
    a.raw('.amdgcn_target "amdgcn-amd-amdhsa--gfx950"\n.text')
    kernel(a, cfg)
    a.raw(f""".section .rodata,"a"
.p2align 6
.amdhsa_kernel {KN}
  .amdhsa_next_free_vgpr 256
  .amdhsa_next_free_sgpr 100
  .amdhsa_accum_offset 128
  .amdhsa_group_segment_fixed_size 0
  .amdhsa_kernarg_size 152
  .amdhsa_user_sgpr_count 2
  .amdhsa_user_sgpr_kernarg_segment_ptr 1
  .amdhsa_system_sgpr_workgroup_id_x 1
.end_amdhsa_kernel""")
    return a.finalize()

DEFAULT = dict(passes=[[0, 1, 2], [3, 4, 5], [6, 7]], NB=8, LOOK=14, RATE=2)
if __name__ == "__main__":
    out = sys.argv[1] if len(sys.argv) > 1 else "cdna_kernels/" + NAME + ".s"
    cfg = dict(DEFAULT)
    for arg in sys.argv[2:]:
        if arg == "stamps": cfg["stamps"] = True
        elif "=" in arg:
            k, v = arg.split("=", 1); cfg[k] = eval(v)
    open(out, "w").write(build(cfg))
    print("wrote", out)
```

```python
import sys, struct
from dsl import Asm

NAME = "gated_mix__ssm_conv_h3__ssm_conv_s4__prompt"
KN = NAME + "_kernel"
LOG2E = 0x3fb8aa3b
WS_XQ = 0
WS_XKV = 2 << 20
WS_X2 = 4 << 20
WS_GP = 8 << 20
WS_GF1 = (8 << 20) + 65536
WS_GF2 = (8 << 20) + 131072
WS_LF = (8 << 20) + 196608
WS_EP = (8 << 20) + 262144
WS_USED = (8 << 20) + 262144 + 4096
FLAGC = 0x5a5a5a5a

KT = 0
QT = KT + 72 * 128
KVT = QT + 8192
SKT = KVT + 8192
PAR = SKT + 512
KC0 = PAR + 3072
KCS = 8320
F0 = KC0 + 4 * KCS
FSZ = 6144
TAB0 = F0 + 2 * FSZ
ENT = 544
TABSZ = 72 * ENT
TABEND = TAB0 + 2 * TABSZ
XRS = 4608
XR0 = TAB0
GM = XR0 + 4 * XRS
PX = GM + 8192
GAB = PX + 32768
assert GAB + 16384 <= TABEND
LDS_TOTAL = TABEND

def fbits(x): return struct.unpack("<I", struct.pack("<f", float(x)))[0]

def cmul(a, dst, w, z, tmp):
    a.e(f"v_pk_mul_f32 v[{tmp}:{tmp+1}], v[{w}:{w+1}], v[{z}:{z+1}] op_sel:[0,0] op_sel_hi:[1,0]")
    a.e(f"v_pk_fma_f32 v[{dst}:{dst+1}], v[{w}:{w+1}], v[{z}:{z+1}], v[{tmp}:{tmp+1}] op_sel:[1,1,0] op_sel_hi:[0,1,1] neg_lo:[1,0,0]")

def cpow(a, dst, rho, phi, m, t0, t1):
    a.e(f"v_mul_f32 v{t0}, 0x{fbits(m):08x}, v{rho}")
    a.e(f"v_mul_f32 v{t1}, 0x{fbits(m):08x}, v{phi}")
    a.e(f"v_exp_f32 v{t0}, v{t0}")
    a.e(f"v_fract_f32 v{t1}, v{t1}")
    a.e(f"v_cos_f32 v{dst}, v{t1}")
    a.e(f"v_sin_f32 v{dst+1}, v{t1}")
    a.e(f"v_mul_f32 v{dst}, v{t0}, v{dst}")
    a.e(f"v_mul_f32 v{dst+1}, v{t0}, v{dst+1}")

def kernel(a, cfg):
    passes, NB, LOOK, RATE = cfg["passes"], cfg["NB"], cfg["LOOK"], cfg["RATE"]
    GLD, EPL, RES = PAR, PAR + 64, PAR + 128
    a.raw(f".globl {KN}\n.p2align 8\n.type {KN},@function\n{KN}:")
    a.e("s_cmp_ge_u32 s2, 256")
    a.e("s_cbranch_scc1 L_END")
    a.stamp(0)
    a.e("s_load_dwordx16 s[16:31], s[0:1], 0")
    a.e("s_load_dwordx16 s[32:47], s[0:1], 64")
    a.e("s_load_dwordx4 s[48:51], s[0:1], 128")
    a.e("s_load_dwordx2 s[52:53], s[0:1], 144")
    a.e("v_lshrrev_b32 v1, 6, v0")
    a.e("v_and_b32 v2, 63, v0")
    a.e("v_readfirstlane_b32 s3, v1")
    a.e("s_and_b32 s4, s2, 7")
    a.e("s_lshr_b32 s5, s2, 3")
    a.e("s_lshl_b32 s10, s4, 6")
    a.e("s_lshl_b32 s11, s5, 1")
    a.e("s_add_u32 s10, s10, s11")
    MQ = 96
    a.e(f"s_and_b32 s{MQ}, s3, 3")
    a.e("s_lshr_b32 s7, s3, 2")
    a.e(f"s_xor_b32 s6, s{MQ}, s7")
    a.e("s_and_b32 s8, s6, 1")
    a.e("s_lshr_b32 s9, s6, 1")
    a.e("v_lshlrev_b32 v69, 4, v2")
    a.e("s_lshl_b32 s11, s5, 16")
    a.e("s_lshl_b32 s12, s4, 7")
    a.e("s_add_u32 s11, s11, s12")
    a.e("s_getreg_b32 s97, hwreg(HW_REG_XCC_ID, 0, 4)")
    a.e("s_cmp_eq_u32 s7, 0")
    a.e("s_cbranch_scc1 L_KISSUE")
    a.e("v_lshrrev_b32 v67, 3, v2")
    a.e("v_and_b32 v68, 7, v2")
    a.e("v_lshlrev_b32 v5, 10, v67")
    a.e("v_lshl_add_u32 v5, v68, 4, v5")
    a.e(f"s_lshl_b32 s12, s{MQ}, 14")
    a.e("s_add_u32 s12, s12, s11")
    a.e("v_add_u32 v5, s12, v5")
    a.e("v_add_u32 v7, 8192, v5")
    a.e("v_subrev_u32 v6, 8192, v5")
    a.e("v_bfe_u32 v70, v0, 3, 5")
    a.e("v_and_b32 v71, 7, v0")
    a.e("v_lshlrev_b32 v72, 11, v70")
    a.e("v_lshl_add_u32 v72, v71, 4, v72")
    a.e("v_add_u32 v72, s11, v72")
    a.e("s_lshl_b32 s14, s4, 9")
    a.e("v_add_u32 v73, s14, v69")
    a.e(f"s_lshl_b32 s13, s{MQ}, 11")
    a.e("s_waitcnt lgkmcnt(0)")
    a.e("s_mov_b32 s56, s18"); a.e("s_and_b32 s57, s19, 0xffff"); a.e("s_mov_b32 s58, 0x200000"); a.e("s_mov_b32 s59, 0x20000")
    VR = 120
    a.e("s_cmp_eq_u32 s3, 4")
    a.e("s_cbranch_scc0 L_X1")
    a.e(f"s_mov_b32 m0, {KT}")
    a.e("s_nop 0")
    a.e("buffer_load_dwordx4 v6, s[56:59], 0 offen lds")
    a.e("s_branch L_X2")
    a.label("L_X1")
    a.e("s_cmp_eq_u32 s3, 5")
    a.e("s_cbranch_scc0 L_X2")
    a.e("s_mov_b32 exec_hi, 0")
    a.e(f"s_mov_b32 m0, {SKT}")
    a.e("s_nop 0")
    a.e("global_load_lds_dwordx4 v73, s[22:23]")
    a.e("s_mov_b32 exec_hi, -1")
    a.label("L_X2")
    a.e(f"s_add_u32 m0, s13, {KT + 1024}")
    a.e("s_nop 0")
    a.e("buffer_load_dwordx4 v5, s[56:59], 0 offen lds")
    a.e(f"s_add_u32 m0, s13, {KT + 2048}")
    a.e("s_nop 0")
    a.e("buffer_load_dwordx4 v7, s[56:59], 0 offen lds")
    a.e(f"global_load_dwordx4 v[{VR}:{VR+3}], v72, s[20:21]")
    a.e(f"global_load_dwordx4 v[{VR+4}:{VR+7}], v72, s[20:21] offset:1024")
    a.e(f"s_add_u32 m0, s13, {QT}")
    a.e("s_nop 0")
    a.e("global_load_lds_dwordx4 v5, s[16:17]")
    a.e(f"s_add_u32 m0, s13, {QT + 1024}")
    a.e("s_nop 0")
    a.e("global_load_lds_dwordx4 v7, s[16:17]")
    a.e("s_branch L_COMMON")
    a.label("L_KISSUE")
    GQ0, GQ1, GW = 100, 104, 108
    EPV = 30
    a.e("s_lshl_b32 s15, s10, 8")
    a.e("v_add_u32 v72, s15, v69")
    a.e("s_lshl_b32 s12, s2, 3")
    a.e(f"s_lshl_b32 s13, s{MQ}, 1")
    a.e("s_add_u32 s12, s12, s13")
    a.e("s_lshl_b32 s13, s12, 10")
    a.e("v_add_u32 v73, s13, v69")
    a.e("s_lshl_b32 s79, s10, 1")
    a.e("s_waitcnt lgkmcnt(0)")
    a.e("s_load_dword s76, s[42:43], s79")
    a.e("s_mov_b32 exec_hi, 0")
    for wv, arrs in enumerate(((0, 1), (2, 3), (4,), (5,))):
        a.e(f"s_cmp_eq_u32 s{MQ}, {wv}")
        a.e(f"s_cbranch_scc0 L_KP{wv}")
        for ar in arrs:
            a.e(f"s_mov_b32 m0, {PAR + 512*ar}")
            a.e("s_nop 0")
            a.e(f"global_load_lds_dwordx4 v72, s[{30+2*ar}:{31+2*ar}]")
        a.e("s_branch L_KP4")
        a.label(f"L_KP{wv}")
    a.label("L_KP4")
    a.e("s_mov_b64 exec, -1")
    a.e(f"global_load_dwordx4 v[{GQ0}:{GQ0+3}], v73, s[16:17]")
    a.e(f"global_load_dwordx4 v[{GQ1}:{GQ1+3}], v73, s[16:17] offset:1024")
    a.e(f"global_load_dwordx4 v[{GW}:{GW+3}], v69, s[46:47]")
    a.e("s_cmp_lt_u32 s3, 2")
    a.e("s_cbranch_scc1 L_COMMON")
    a.e("s_cmp_eq_u32 s3, 3")
    a.e("s_cbranch_scc1 L_KX7")
    a.e("s_getpc_b64 s[74:75]")
    a.label("L_PC")
    a.raw("  .set CODE_REM, L_CODE_END - L_PC")
    a.e("v_lshlrev_b32 v74, 8, v2")
    a.e(f"v_cmp_gt_u32 vcc, CODE_REM, v74")
    a.e(f"v_cndmask_b32 v74, 0, v74, vcc")
    a.e(f"global_load_dword v30, v74, s[74:75]")
    a.e("s_branch L_COMMON")
    a.label("L_KX7")
    a.e("v_subrev_u32 v74, 1, v2")
    a.e("v_lshlrev_b32 v74, 21, v74")
    a.e(f"v_mov_b32 v75, {WS_EP}")
    a.e("v_cmp_eq_u32 vcc, 0, v2")
    a.e("v_cndmask_b32 v74, v74, v75, vcc")
    a.e("s_mov_b64 exec, 7")
    a.e(f"global_load_dword v{EPV}, v74, s[52:53] sc1")
    a.e("s_mov_b64 exec, -1")
    a.label("L_COMMON")
    a.e("s_mov_b32 s60, s52"); a.e("s_and_b32 s61, s53, 0xffff"); a.e(f"s_mov_b32 s62, {WS_USED}"); a.e("s_mov_b32 s63, 0x20000")
    a.e("s_mov_b32 s64, s48"); a.e("s_and_b32 s65, s49, 0xffff"); a.e("s_mov_b32 s66, 0x200000"); a.e("s_mov_b32 s67, 0x20000")
    a.e("s_mov_b32 s68, s24"); a.e("s_and_b32 s69, s25, 0xffff"); a.e("s_mov_b32 s70, 0x200000"); a.e("s_mov_b32 s71, 0x20000")
    a.e("s_lshl_b32 s79, s10, 1")
    a.e("s_load_dword s76, s[42:43], s79")
    a.e("s_load_dword s100, s[26:27], s79")
    a.e("s_load_dword s101, s[44:45], s79")
    ONES, MLO, MHI = 21, 28, 27
    a.e(f"v_mov_b32 v{ONES}, 0x3f803f80")
    a.e(f"v_mov_b32 v{MLO}, 0xffff")
    a.e(f"v_mov_b32 v{MHI}, 0xffff0000")
    J, Q4 = 64, 65
    a.e(f"v_and_b32 v{J}, 15, v2")
    a.e(f"v_lshrrev_b32 v{Q4}, 4, v2")
    a.e("s_lshl_b32 s13, s10, 12")
    a.e("v_lshlrev_b32 v4, 4, v0")
    a.e("v_add_u32 v13, s13, v4")
    vB, vX, vQ, vG, vPX, vGW, vCMB, vOUT = 8, 9, 10, 11, 12, 14, 15, 16
    vA = [17, 18, 19, 20]
    SQL, SQH, ONEF, SG, DF = 22, 23, 24, 25, 26
    vXL = 3
    CPRE = cfg.get("CPRE", 8)
    def areg(cidx, rho): return 4 * (cidx * 4 + rho)
    def aloads():
        for cidx in range(CPRE):
            for rho in range(4):
                r = areg(cidx, rho); o = 128 * (cidx & 1) + 16 * rho; va = vA[cidx >> 1]
                a.e(f"ds_read2_b32 a[{r}:{r+1}], v{va} offset0:{o} offset1:{o+1}")
                a.e(f"ds_read2_b32 a[{r+2}:{r+3}], v{va} offset0:{o+2} offset1:{o+3}")
    a.e(f"s_mul_i32 s77, s6, {XRS}")
    a.e(f"s_add_u32 s77, s77, {XR0}")
    a.e("s_lshl_b32 s78, s7, 8")
    a.e("s_add_u32 s78, s78, s77")
    a.e("s_add_u32 s78, s78, 480")
    a.e(f"v_lshlrev_b32 v62, 5, v{J}")
    a.e(f"v_lshlrev_b32 v{vB}, 4, v{Q4}")
    a.e(f"v_sub_u32 v{vB}, v{vB}, v62")
    a.e(f"v_add_u32 v{vB}, s78, v{vB}")
    a.e(f"v_lshl_add_u32 v63, v{Q4}, 3, v62")
    a.e("s_add_u32 s78, s77, 504")
    a.e(f"v_sub_u32 v{vX}, s78, v63")
    vPAD = 29
    a.e("s_add_u32 s78, s77, 4096")
    a.e(f"v_lshlrev_b32 v{vPAD}, 3, v2")
    a.e(f"v_add_u32 v{vPAD}, s78, v{vPAD}")
    a.e("s_or_b32 s78, s6, 1")
    a.e(f"s_mul_i32 s78, s78, {XRS}")
    a.e(f"s_add_u32 s78, s78, {XR0 + 504}")
    a.e(f"v_sub_u32 v{vQ}, s78, v63")
    a.e(f"v_lshlrev_b32 v62, 1, v63")
    a.e(f"v_add_u32 v{vG}, {GM}, v62")
    a.e("s_lshl_b32 s78, s6, 13")
    a.e(f"s_add_u32 s78, s78, {PX}")
    a.e(f"v_add_u32 v{vPX}, s78, v69")
    a.e("s_lshl_b32 s78, s6, 12")
    a.e(f"s_add_u32 s78, s78, {GAB}")
    a.e(f"v_add_u32 v{vGW}, s78, v63")
    a.e("s_lshl_b32 s78, s6, 6")
    a.e(f"v_add_u32 v62, s78, v2")
    a.e(f"v_lshlrev_b32 v{vCMB}, 1, v62")
    a.e(f"v_add_u32 v{vCMB}, {GAB}, v{vCMB}")
    a.e(f"v_lshlrev_b32 v{vOUT}, 10, v62")
    a.e("s_lshl_b32 s78, s10, 1")
    a.e(f"v_add_u32 v{vOUT}, s78, v{vOUT}")
    a.e("s_lshl_b32 s78, s7, 7")
    a.e("s_sub_u32 s78, s78, 15")
    a.e(f"v_lshl_add_u32 v62, v{Q4}, 3, v{J}")
    a.e("v_add_u32 v62, s78, v62")
    a.e("v_lshlrev_b32 v62, 1, v62")
    a.e(f"s_mul_i32 s78, s6, {KCS}")
    a.e(f"s_add_u32 s78, s78, {KC0 + 32}")
    a.e(f"v_and_b32 v63, 1, v{J}")
    a.e(f"v_cmp_eq_u32 vcc, 1, v63")
    a.e(f"v_mov_b32 v63, {4160 - 2}")
    a.e(f"v_cndmask_b32 v63, v63, 0, vcc")
    a.e(f"v_add3_u32 v{vA[0]}, v62, v63, s78")
    for i in range(1, 4): a.e(f"v_add_u32 v{vA[i]}, {1024*i}, v{vA[0]}")
    a.e("v_lshrrev_b32 v62, 8, v0")
    a.e(f"v_mul_u32_u24 v62, {2*XRS}, v62")
    a.e("v_and_b32 v63, 255, v0")
    a.e(f"v_lshl_add_u32 v{vXL}, v63, 4, v62")
    a.e(f"v_add_u32 v{vXL}, {XR0}, v{vXL}")
    a.e(f"v_mov_b32 v{ONEF}, 1.0")
    a.e("s_cmp_eq_u32 s8, 0")
    a.e("s_mov_b32 s78, 0x03020100")
    a.e("s_cselect_b32 s77, 0x05040c0c, s78");  a.e(f"v_mov_b32 v{SQL}, s77")
    a.e("s_cselect_b32 s77, 0x07060c0c, s78");  a.e(f"v_mov_b32 v{SQH}, s77")
    a.e("s_mov_b32 s78, 0x07060c0c")
    a.e("s_cselect_b32 s77, 0x05040c0c, s78");  a.e(f"v_mov_b32 v{SG}, s77")
    a.e("s_cmp_eq_u32 s7, 0")
    a.e("s_cbranch_scc1 L_KPATH")
    vRC, vSKA, vTR, vXS = 31, 1, 5, 6
    a.e("v_bfe_u32 v70, v0, 3, 5")
    a.e("v_and_b32 v71, 7, v0")
    a.e(f"v_lshlrev_b32 v{vRC}, 8, v70")
    a.e(f"v_lshl_add_u32 v{vRC}, v71, 4, v{vRC}")
    a.e(f"v_lshlrev_b32 v{vSKA}, 6, v71")
    a.e(f"v_lshrrev_b32 v72, 2, v{J}")
    a.e(f"v_and_b32 v73, 3, v{J}")
    a.e(f"v_lshlrev_b32 v75, 3, v{Q4}")
    a.e("v_add_u32 v76, 3, v75")
    a.e("v_sub_u32 v76, v76, v72")
    a.e("v_lshlrev_b32 v76, 7, v76")
    a.e("v_lshl_add_u32 v76, v73, 3, v76")
    a.e(f"s_lshl_b32 s77, s{MQ}, 5")
    a.e(f"v_add_u32 v{vTR}, s77, v76")
    a.e("s_lshl_b32 s77, s4, 18")
    a.e(f"s_lshl_b32 s78, s{MQ}, 16")
    a.e("s_add_u32 s77, s77, s78")
    a.e("s_add_u32 s77, s77, 4016")
    a.e("s_lshl_b32 s78, s5, 7")
    a.e("s_sub_u32 s77, s77, s78")
    a.e(f"v_lshlrev_b32 v{vXS}, 12, v{J}")
    a.e("v_lshlrev_b32 v76, 1, v75")
    a.e(f"v_sub_u32 v{vXS}, v{vXS}, v76")
    a.e(f"v_add_u32 v{vXS}, s77, v{vXS}")
    a.e("v_and_b32 v32, 127, v0")
    a.e("v_bfe_u32 v33, v0, 7, 1")
    a.e("v_lshlrev_b32 v34, 8, v33")
    a.e("v_lshl_add_u32 v34, v32, 1, v34")
    TA = 35
    a.e(f"v_mul_u32_u24 v{TA}, {TABSZ}, v33")
    a.e(f"v_lshl_add_u32 v{TA}, v32, 2, v{TA}")
    a.e(f"v_add_u32 v{TA}, {TAB0}, v{TA}")
    a.e("s_waitcnt lgkmcnt(0)")
    a.stamp(1)
    a.e("s_barrier")
    PR = 66
    for i in range(6): tp = a.e(f"ds_read_u16_d16_hi v{PR+i}, v34 offset:{PAR + 512*i}")
    Are, Aim, Bre, Bim, Cre, Cim = [PR + i for i in range(6)]
    DT, RHO, PHI = 72, 73, 74
    C = 76
    a.e("v_bfe_u32 v75, v0, 7, 1")
    a.e("v_lshlrev_b32 v75, 4, v75")
    a.e(f"v_lshrrev_b32 v{DT}, v75, s76") if False else None
    a.e(f"v_mov_b32 v{DT}, s76")
    a.e(f"v_lshrrev_b32 v{DT}, v75, v{DT}")
    a.e(f"v_lshlrev_b32 v{DT}, 16, v{DT}")
    a.e(f"v_mul_f32 v{DT}, 0x{LOG2E:08x}, v{DT}")
    a.e(f"v_exp_f32 v{DT}, v{DT}")
    a.e(f"v_cvt_pk_bf16_f32 v{DT}, 0, v{DT}")
    a.wait_ds(tp)
    a.e(f"v_mul_f32 v{RHO}, v{DT}, v{Are}")
    a.e(f"v_mul_f32 v{PHI}, v{DT}, v{Aim}")
    a.e(f"v_mul_f32 v{RHO}, 0x{LOG2E:08x}, v{RHO}")
    a.e(f"v_mul_f32 v{PHI}, 0.15915494, v{PHI}")
    a.e(f"v_mul_f32 v{Bre}, v{DT}, v{Bre}")
    a.e(f"v_mul_f32 v{Bim}, v{DT}, v{Bim}")
    a.e(f"v_mul_f32 v{C}, v{Cre}, v{Bre}")
    a.e(f"v_mul_f32 v{C+1}, v{Cre}, v{Bim}")
    a.e(f"v_fma_f32 v{C}, -v{Cim}, v{Bim}, v{C}")
    a.e(f"v_fma_f32 v{C+1}, v{Cim}, v{Bre}, v{C+1}")
    Z4, Z128, S3, Z8, W = 80, 84, 86, 88, 90
    TMP = [100, 102, 104, 106, 108, 110]
    PT = [112, 113, 114, 115]
    pw = [(Z4, 4), (Z128, 128), (S3, 1024)]
    for i, (dst, m) in enumerate(pw):
        a.e(f"v_mul_f32 v{TMP[0]+i}, 0x{fbits(m):08x}, v{RHO}")
        a.e(f"v_mul_f32 v{TMP[3]+i}, 0x{fbits(m):08x}, v{PHI}")
    for i, (dst, m) in enumerate(pw):
        a.e(f"v_exp_f32 v{TMP[0]+i}, v{TMP[0]+i}")
        a.e(f"v_fract_f32 v{TMP[3]+i}, v{TMP[3]+i}")
    for i, (dst, m) in enumerate(pw):
        a.e(f"v_cos_f32 v{dst}, v{TMP[3]+i}")
        a.e(f"v_sin_f32 v{dst+1}, v{TMP[3]+i}")
    for i, (dst, m) in enumerate(pw):
        a.e(f"v_mul_f32 v{dst}, v{TMP[0]+i}, v{dst}")
        a.e(f"v_mul_f32 v{dst+1}, v{TMP[0]+i}, v{dst+1}")
    pti2 = [0]
    def putx(entry, pair, neg):
        tmp = PT[pti2[0] % 4]; pti2[0] += 1
        a.e(f"v_cvt_pk_bf16_f32 v{tmp}, v{pair}, {'-' if neg else ''}v{pair+1}")
        a.e(f"ds_write_b32 v{TA}, v{tmp} offset:{entry*ENT}")
    cmul(a, Z8, Z4, Z4, TMP[0])
    cmul(a, S3, S3, C, TMP[1])
    W1 = 92
    a.e(f"v_mov_b32 v{W}, 1.0"); a.e(f"v_mov_b32 v{W+1}, 0")
    a.e(f"v_mov_b32 v{W1}, v{Z4}"); a.e(f"v_mov_b32 v{W1+1}, v{Z4+1}")
    putx(0, W, False); putx(1, W1, False); putx(24 + 32, S3, True)
    for st in range(1, 16):
        cmul(a, W, W, Z8, TMP[0])
        if st <= 7: cmul(a, W1, W1, Z8, TMP[2])
        if st <= 8: cmul(a, S3, S3, Z128, TMP[1])
        putx(2 * st if st < 8 else 16 + (st - 8), W, False)
        if st <= 7: putx(2 * st + 1, W1, False)
        if st <= 8: putx(24 + 32 + st, S3, True)
    a.e("s_waitcnt vmcnt(2) lgkmcnt(0)")
    a.ds_done = a.ds_issued
    a.stamp(2)
    a.e("s_barrier")
    KR, SK, MK, PA, PB, XX = 32, 52, 68, 100, 108, 52
    for i in range(5): a.e(f"ds_read_b128 v[{KR+4*i}:{KR+4*i+3}], v{vRC} offset:{KT + (5+i)*128}")
    for i in range(4): tsk = a.e(f"ds_read_b128 v[{SK+4*i}:{SK+4*i+3}], v{vSKA} offset:{SKT + 16*i}")
    a.e("s_cmp_eq_u32 s8, 0")
    a.e("s_cselect_b32 s77, s100, s101")
    a.e("s_lshl_b32 s78, s9, 4")
    a.e("s_lshr_b32 s77, s77, s78")
    a.e("s_lshl_b32 s77, s77, 16")
    a.e(f"v_mov_b32 v{DF}, s77")
    a.wait_ds(tsk)
    chains = [(m, ci) for m in range(4) for ci in range(2)]
    for tau in range(4):
        for idx, (m, ci) in enumerate(chains):
            cch = 2 * m + ci; src = SK + 2 * cch + (tau >> 1); dst = MK + 8 * tau + idx
            if ci == 0:
                if tau & 1: a.e(f"v_lshrrev_b32 v{dst}, 16, v{src}")
                else: a.e(f"v_and_b32 v{dst}, v{MLO}, v{src}")
            else:
                if tau & 1: a.e(f"v_and_b32 v{dst}, v{MHI}, v{src}")
                else: a.e(f"v_lshlrev_b32 v{dst}, 16, v{src}")
    for row in range(2):
        def prod(dst, tau):
            for idx, (m, ci) in enumerate(chains):
                a.e(f"v_dot2_f32_bf16 v{dst+idx}, v{KR+4*(3-tau+row)+m}, v{MK+8*tau+idx}, 0")
        prod(PA, 3)
        for tau in (2, 1, 0):
            prod(PB, tau)
            for idx in range(8): a.e(f"v_cvt_pk_bf16_f32 v{XX+idx}, v{PA+idx}, v{PB+idx}")
            for idx in range(8): a.e(f"v_dot2_f32_bf16 v{PA+idx}, v{XX+idx}, v{ONES}, 0")
        Vr = VR + 4 * row
        for m in range(4):
            a.e(f"v_and_b32 v{XX+2*m}, v{MLO}, v{Vr+m}")
            a.e(f"v_and_b32 v{XX+2*m+1}, v{MHI}, v{Vr+m}")
        for m in range(4): a.e(f"v_cvt_pk_bf16_f32 v{PB+m}, v{PA+2*m}, v{PA+2*m+1}")
        for m in range(4):
            a.e(f"v_dot2_f32_bf16 v{PA+2*m}, v{PB+m}, v{XX+2*m}, 0")
            a.e(f"v_dot2_f32_bf16 v{PA+2*m+1}, v{PB+m}, v{XX+2*m+1}, 0")
        KVR = 116
        for m in range(4): a.e(f"v_cvt_pk_bf16_f32 v{KVR+m}, v{PA+2*m}, v{PA+2*m+1}")
        a.e(f"ds_write_b128 v{vRC}, v[{KVR}:{KVR+3}] offset:{KVT + 128*row}")
    a.e("s_waitcnt vmcnt(0) lgkmcnt(0)")
    a.ds_done = a.ds_issued
    a.stamp(3)
    a.e("s_barrier")
    XO = 32
    def tr_and_store(sc, base_q, base_kv):
        toks = []
        for ai, T in enumerate((KVT, QT)):
            for blk in range(2):
                r = XO + 8 * ai + 4 * blk
                a.e(f"ds_read_b64_tr_b16 v[{r}:{r+1}], v{vTR} offset:{T + 4096*blk + 512}")
                toks.append(a.e(f"ds_read_b64_tr_b16 v[{r+2}:{r+3}], v{vTR} offset:{T + 4096*blk}"))
        a.e(f"s_mov_b32 s77, {base_kv}")
        a.e(f"s_mov_b32 s78, {base_q}")
        for ai in range(2):
            for blk in range(2):
                r = XO + 8 * ai + 4 * blk
                a.wait_ds(toks[2 * ai + blk])
                a.e(f"buffer_store_dwordx4 v[{r}:{r+3}], v{vXS}, s[60:63], s{77+ai} offen offset:{64*(1-blk)}{sc}")
    tr_and_store("", WS_XQ, WS_XKV)
    a.e("s_cmp_eq_u32 s8, 0")
    a.e("s_cbranch_scc0 L_XNOAL")
    aloads()
    a.label("L_XNOAL")
    a.e("s_waitcnt vmcnt(0)")
    a.stamp(4)
    a.e("s_barrier")
    a.e("s_branch L_JOIN")
    a.label("L_KPATH")
    a.e("v_and_b32 v32, 127, v0")
    a.e("v_bfe_u32 v33, v0, 7, 1")
    a.e("v_lshlrev_b32 v34, 8, v33")
    a.e("v_lshl_add_u32 v34, v32, 1, v34")
    TA = 35
    a.e(f"v_mul_u32_u24 v{TA}, {TABSZ}, v33")
    a.e(f"v_lshl_add_u32 v{TA}, v32, 2, v{TA}")
    a.e(f"v_add_u32 v{TA}, {TAB0}, v{TA}")
    XA = 36
    a.e("v_and_b32 v45, 255, v0")
    a.e("v_lshlrev_b32 v45, 3, v45")
    for k in range(5):
        a.e(f"v_add_u32 v46, {2*k}, v45")
        a.e(f"v_add_u32 v47, {2*k+1}, v45")
        a.e("v_cvt_f32_u32 v46, v46")
        a.e("v_cvt_f32_u32 v47, v47")
        a.e("v_cvt_pk_bf16_f32 v46, v46, v47")
        a.e(f"v_and_b32 v47, v{MHI}, v46")
        a.e("v_lshlrev_b32 v46, 16, v46")
        a.e("v_cvt_u32_f32 v46, v46")
        a.e(f"v_lshlrev_b32 v{XA+2*k}, 1, v46")
        a.e(f"v_add_u32 v{XA+2*k}, {F0}, v{XA+2*k}")
        if k < 4:
            a.e("v_cvt_u32_f32 v47, v47")
            a.e(f"v_lshlrev_b32 v{XA+2*k+1}, 1, v47")
            a.e(f"v_add_u32 v{XA+2*k+1}, {F0}, v{XA+2*k+1}")
    vKW = 31
    a.e(f"v_lshlrev_b32 v{vKW}, 1, v45")
    a.e(f"v_add_u32 v{vKW}, {KC0+32}, v{vKW}")
    vSS = 46
    a.e(f"v_lshlrev_b32 v{vSS}, 1, v45")
    a.e(f"v_add_u32 v{vSS}, s13, v{vSS}")
    a.e("s_cmp_lt_u32 s3, 2")
    a.e("s_cbranch_scc1 L_KW1")
    a.e("s_waitcnt vmcnt(4) lgkmcnt(0)")
    a.e("s_branch L_KW2")
    a.label("L_KW1")
    a.e("s_waitcnt vmcnt(3) lgkmcnt(0)")
    a.label("L_KW2")
    a.stamp(1)
    a.e("s_barrier")
    T0a, T1a, T0b, T1b = 48, 52, 56, 60
    a.e(f"buffer_load_dwordx4 v[{T0a}:{T0a+3}], v{vSS}, s[68:71], 0 offen")
    a.e(f"buffer_load_dwordx4 v[{T1a}:{T1a+3}], v{vSS}, s[68:71], 0 offen offset:4")
    a.e("s_mov_b32 s77, 4096")
    a.e(f"buffer_load_dwordx4 v[{T0b}:{T0b+3}], v{vSS}, s[68:71], s77 offen")
    a.e(f"buffer_load_dwordx4 v[{T1b}:{T1b+3}], v{vSS}, s[68:71], s77 offen offset:4")
    a.e("s_waitcnt vmcnt(4)")
    T = 66
    for m in range(4):
        a.e(f"v_and_b32 v{T+2*m}, v{MLO}, v{GW+m}")
        a.e(f"v_and_b32 v{T+2*m+1}, v{MHI}, v{GW+m}")
    GA = [90, 91]
    for ri, GQ in enumerate((GQ0, GQ1)):
        U = 74 + 8 * ri
        for m in range(4):
            a.e(f"v_dot2_f32_bf16 v{U+2*m}, v{GQ+m}, v{T+2*m}, 0")
            a.e(f"v_dot2_f32_bf16 v{U+2*m+1}, v{GQ+m}, v{T+2*m+1}, 0")
    for ri in range(2):
        U = 74 + 8 * ri
        for m in range(4): a.e(f"v_cvt_pk_bf16_f32 v{92+4*ri+m}, v{U+2*m}, v{U+2*m+1}")
    for ri in range(2):
        U = 74 + 8 * ri
        for m in range(4):
            a.e(f"v_lshlrev_b32 v{U+2*m}, 16, v{92+4*ri+m}")
            a.e(f"v_and_b32 v{U+2*m+1}, v{MHI}, v{92+4*ri+m}")
    for ri in range(2):
        U = 74 + 8 * ri
        for m in range(4): a.e(f"v_add_f32 v{U+2*m}, v{U+2*m}, v{U+2*m+1}")
    for ri in range(2):
        U = 74 + 8 * ri
        a.e(f"v_add_f32 v{U}, v{U}, v{U+2}")
        a.e(f"v_add_f32 v{U+4}, v{U+4}, v{U+6}")
    for ri in range(2):
        U = 74 + 8 * ri
        a.e(f"v_add_f32 v{GA[ri]}, v{U}, v{U+4}")
    for sh in (1, 2, 4, 8):
        for ri in range(2): a.e(f"v_add_f32_dpp v{GA[ri]}, v{GA[ri]}, v{GA[ri]} row_shr:{sh} row_mask:0xf bank_mask:0xf bound_ctrl:0")
    for ri in range(2): a.e(f"v_add_f32_dpp v{GA[ri]}, v{GA[ri]}, v{GA[ri]} row_bcast:15 row_mask:0xa bank_mask:0xf")
    for ri in range(2): a.e(f"v_add_f32_dpp v{GA[ri]}, v{GA[ri]}, v{GA[ri]} row_bcast:31 row_mask:0xc bank_mask:0xf")
    for ri in range(2): a.e(f"v_cvt_pk_bf16_f32 v{GA[ri]}, 0, v{GA[ri]}")
    for ri in range(2): a.e(f"v_mul_f32 v{GA[ri]}, 0x{LOG2E ^ 0x80000000:08x}, v{GA[ri]}")
    for ri in range(2): a.e(f"v_exp_f32 v{GA[ri]}, v{GA[ri]}")
    for ri in range(2): a.e(f"v_add_f32 v{GA[ri]}, 1.0, v{GA[ri]}")
    for ri in range(2): a.e(f"v_rcp_f32 v{GA[ri]}, v{GA[ri]}")
    for ri in range(2): a.e(f"v_cvt_pk_bf16_f32 v{GA[ri]}, 0, v{GA[ri]}")
    for ri in range(2): a.e(f"v_sub_f32 v{92+ri}, 1.0, v{GA[ri]}")
    for ri in range(2): a.e(f"v_cvt_pk_bf16_f32 v{94+ri}, v{GA[ri]}, v{92+ri}")
    a.e("s_lshl_b32 s77, s12, 2")
    a.e(f"s_add_u32 s77, s77, {WS_GP}")
    a.e("v_mov_b32 v96, s77")
    a.e("s_mov_b32 exec_lo, 0")
    a.e("s_mov_b32 exec_hi, 0x80000000")
    a.e("buffer_store_dwordx2 v[94:95], v96, s[60:63], 0 offen sc1")
    a.e("s_mov_b64 exec, -1")
    PR = 66
    for i in range(6): tp = a.e(f"ds_read_u16_d16_hi v{PR+i}, v34 offset:{PAR + 512*i}")
    Are, Aim, Bre, Bim, Cre, Cim = [PR + i for i in range(6)]
    DT, RHO, PHI = 72, 73, 74
    C = 76
    a.e("v_bfe_u32 v75, v0, 7, 1")
    a.e("v_lshlrev_b32 v75, 4, v75")
    a.e(f"v_lshrrev_b32 v{DT}, v75, s76") if False else None
    a.e(f"v_mov_b32 v{DT}, s76")
    a.e(f"v_lshrrev_b32 v{DT}, v75, v{DT}")
    a.e(f"v_lshlrev_b32 v{DT}, 16, v{DT}")
    a.e(f"v_mul_f32 v{DT}, 0x{LOG2E:08x}, v{DT}")
    a.e(f"v_exp_f32 v{DT}, v{DT}")
    a.e(f"v_cvt_pk_bf16_f32 v{DT}, 0, v{DT}")
    a.wait_ds(tp)
    a.e(f"v_mul_f32 v{RHO}, v{DT}, v{Are}")
    a.e(f"v_mul_f32 v{PHI}, v{DT}, v{Aim}")
    a.e(f"v_mul_f32 v{RHO}, 0x{LOG2E:08x}, v{RHO}")
    a.e(f"v_mul_f32 v{PHI}, 0.15915494, v{PHI}")
    a.e(f"v_mul_f32 v{Bre}, v{DT}, v{Bre}")
    a.e(f"v_mul_f32 v{Bim}, v{DT}, v{Bim}")
    a.e(f"v_mul_f32 v{C}, v{Cre}, v{Bre}")
    a.e(f"v_mul_f32 v{C+1}, v{Cre}, v{Bim}")
    a.e(f"v_fma_f32 v{C}, -v{Cim}, v{Bim}, v{C}")
    a.e(f"v_fma_f32 v{C+1}, v{Cim}, v{Bre}, v{C+1}")
    Z1, Z64 = 78, 82
    VV = [92, 94, 96, 98]
    TMP = [112, 114, 116, 118, 120, 122]
    PT = [124, 125, 126, 127]
    pw = [(Z1, 1), (Z64, 64)]
    for i, (dst, m) in enumerate(pw):
        a.e(f"v_mul_f32 v{TMP[0]+i}, 0x{fbits(m):08x}, v{RHO}")
        a.e(f"v_mul_f32 v{TMP[3]+i}, 0x{fbits(m):08x}, v{PHI}")
    for i, (dst, m) in enumerate(pw):
        a.e(f"v_exp_f32 v{TMP[0]+i}, v{TMP[0]+i}")
        a.e(f"v_fract_f32 v{TMP[3]+i}, v{TMP[3]+i}")
    for i, (dst, m) in enumerate(pw):
        a.e(f"v_cos_f32 v{dst}, v{TMP[3]+i}")
        a.e(f"v_sin_f32 v{dst+1}, v{TMP[3]+i}")
    for i, (dst, m) in enumerate(pw):
        a.e(f"v_mul_f32 v{dst}, v{TMP[0]+i}, v{dst}")
        a.e(f"v_mul_f32 v{dst+1}, v{TMP[0]+i}, v{dst+1}")
    pti = [0]
    def put(entry, pair, neg):
        tmp = PT[pti[0] % 4]; pti[0] += 1
        a.e(f"v_cvt_pk_bf16_f32 v{tmp}, v{pair}, {'-' if neg else ''}v{pair+1}")
        a.e(f"ds_write_b32 v{TA}, v{tmp} offset:{entry*ENT}")
    a.e(f"v_mov_b32 v{VV[0]}, v{C}"); a.e(f"v_mov_b32 v{VV[0]+1}, v{C+1}")
    cmul(a, VV[1], VV[0], Z1, TMP[2])
    cmul(a, VV[2], VV[1], Z1, TMP[2])
    cmul(a, VV[3], VV[2], Z1, TMP[2])
    for i in range(16):
        ps = [0, 1, 2, 3] if i < 4 else ([0, 2] if i < 8 else [0])
        if i > 0:
            for p in ps: cmul(a, VV[p], VV[p], Z64, TMP[2 + p])
        for p in ps:
            if i < 4: ent = 24 + 4 * i + p
            elif i < 8: ent = 24 + 16 + 2 * (i - 4) + p // 2
            else: ent = 24 + 16 + i
            put(ent, VV[p], True)
    a.wait_ds_all()
    a.stamp(2)
    a.e("s_barrier")
    if cfg.get("pretouch", True):
        a.e("s_cmp_eq_u32 s3, 1")
        a.e("s_cbranch_scc0 L_NOPT")
        a.e("s_lshl_b32 s77, s4, 18")
        a.e("s_add_u32 s77, s77, 3968")
        a.e("s_lshl_b32 s78, s5, 7")
        a.e("s_sub_u32 s77, s77, s78")
        a.e("v_lshlrev_b32 v66, 12, v2")
        a.e("v_add_u32 v66, s77, v66")
        a.e(f"s_mov_b32 s78, {WS_XKV}")
        a.e("buffer_load_dword v112, v66, s[60:63], 0 offen sc1")
        a.e("buffer_load_dword v113, v66, s[60:63], s78 offen sc1")
        a.label("L_NOPT")
    a.e(f"s_and_b32 s77, s{MQ}, 1")
    a.e(f"s_mul_i32 s78, s77, {FSZ}")
    a.e(f"s_add_u32 s79, s78, {F0}")
    a.e(f"s_mul_i32 s77, s77, {TABSZ}")
    a.e(f"s_add_u32 s77, s77, {TAB0}")
    a.e(f"v_mul_u32_u24 v66, {ENT}, v{J}")
    a.e(f"v_lshl_add_u32 v66, v{Q4}, 4, v66")
    a.e("v_add_u32 v66, s77, v66")
    a.e(f"s_cmp_gt_u32 s{MQ}, 1")
    a.e("s_cbranch_scc1 L_JOB2")
    toks = []
    for ks in range(8):
        a.e(f"ds_read_b128 a[{4*ks}:{4*ks+3}], v66 offset:{64*ks}")
        a.e(f"ds_read_b128 a[{32+4*ks}:{32+4*ks+3}], v66 offset:{24*ENT + 64*ks}")
        toks.append(a.e(f"ds_read_b128 a[{64+4*ks}:{64+4*ks+3}], v66 offset:{40*ENT + 64*ks}"))
    a.e(f"v_lshlrev_b32 v68, 6, v{Q4}")
    a.e(f"v_lshl_add_u32 v68, v{J}, 2, v68")
    a.e("v_lshlrev_b32 v68, 1, v68")
    a.e("v_add_u32 v68, s79, v68")
    a.e(f"v_cmp_gt_u32 vcc, 2, v{Q4}")
    a.e(f"v_lshlrev_b32 v74, 7, v{Q4}")
    a.e("v_add_u32 v74, 256, v74")
    a.e(f"v_lshlrev_b32 v75, 8, v{Q4}")
    a.e(f"v_cndmask_b32 v70, v75, v74, vcc")
    a.e(f"v_lshl_add_u32 v70, v{J}, 2, v70")
    for e, (o1, o2) in enumerate(((2, 64), (64, 128), (66, 192)), start=1):
        a.e(f"v_mov_b32 v74, {o2}")
        a.e(f"v_mov_b32 v75, {o1}")
        a.e(f"v_cndmask_b32 v74, v74, v75, vcc")
        a.e(f"v_add_u32 v{70+e}, v70, v74")
    for e in range(4):
        a.e(f"v_lshlrev_b32 v{70+e}, 1, v{70+e}")
        a.e(f"v_add_u32 v{70+e}, s79, v{70+e}")
    for ks in range(8):
        a.wait_ds(toks[ks])
        s0 = "0" if ks == 0 else "v[76:79]"; s1 = "0" if ks == 0 else "v[80:83]"
        a.e(f"v_mfma_f32_16x16x32_bf16 v[76:79], a[{32+4*ks}:{32+4*ks+3}], a[{4*ks}:{4*ks+3}], {s0}")
        a.e(f"v_mfma_f32_16x16x32_bf16 v[80:83], a[{64+4*ks}:{64+4*ks+3}], a[{4*ks}:{4*ks+3}], {s1}")
    a.e("v_cvt_pk_bf16_f32 v84, v76, v77")
    a.e("v_cvt_pk_bf16_f32 v85, v78, v79")
    a.e("ds_write_b64 v68, v[84:85]")
    a.e("v_cvt_pk_bf16_f32 v86, v80, v81")
    a.e("v_cvt_pk_bf16_f32 v87, v82, v83")
    a.e("ds_write_b16 v70, v86")
    a.e("ds_write_b16_d16_hi v71, v86")
    a.e("ds_write_b16 v72, v87")
    a.e("ds_write_b16_d16_hi v73, v87")
    a.e("s_branch L_JOBD")
    a.label("L_JOB2")
    a.ds_done = a.ds_issued
    a.e(f"v_lshlrev_b32 v67, 1, v{J}")
    a.e(f"v_add_u32 v68, 8, v{J}")
    a.e(f"v_cmp_gt_u32 vcc, 8, v{J}")
    a.e("v_cndmask_b32 v67, v68, v67, vcc")
    a.e(f"v_mul_u32_u24 v67, {ENT}, v67")
    a.e(f"v_lshl_add_u32 v67, v{Q4}, 4, v67")
    a.e("v_add_u32 v67, s77, v67")
    toks = []
    for ks in range(8):
        a.e(f"ds_read_b128 a[{4*ks}:{4*ks+3}], v67 offset:{64*ks}")
        toks.append(a.e(f"ds_read_b128 a[{32+4*ks}:{32+4*ks+3}], v66 offset:{56*ENT + 64*ks}"))
    a.e(f"v_lshlrev_b32 v70, 9, v{Q4}")
    a.e(f"v_lshl_add_u32 v70, v{J}, 3, v70")
    a.e("v_add_u32 v70, 1024, v70")
    a.e("v_lshlrev_b32 v70, 1, v70")
    a.e("v_add_u32 v70, s79, v70")
    for ks in range(8):
        a.wait_ds(toks[ks])
        s0 = "0" if ks == 0 else "v[76:79]"
        a.e(f"v_mfma_f32_16x16x32_bf16 v[76:79], a[{32+4*ks}:{32+4*ks+3}], a[{4*ks}:{4*ks+3}], {s0}")
    a.e("v_cvt_pk_bf16_f32 v84, v76, v77")
    a.e("v_cvt_pk_bf16_f32 v85, v78, v79")
    a.e("ds_write_b16 v70, v84")
    a.e("ds_write_b16_d16_hi v70, v84 offset:256")
    a.e("ds_write_b16 v70, v85 offset:512")
    a.e("ds_write_b16_d16_hi v70, v85 offset:768")
    a.label("L_JOBD")
    a.e("s_waitcnt vmcnt(0)")
    for chn, (T0, T1) in enumerate(((T0a, T1a), (T0b, T1b))):
        O = 104 + 4 * chn
        for jx in range(4): a.e(f"v_alignbit_b32 v{O+jx}, v{T1+jx}, v{T0+jx}, 16")
        a.e(f"ds_write_b128 v{vKW}, v[{T0}:{T0+3}] offset:{KCS*2*chn}")
        a.e(f"ds_write_b128 v{vKW}, v[{O}:{O+3}] offset:{KCS*2*chn+4160}")
    def pads(items, lab):
        a.e("s_cmp_eq_u32 s3, 0")
        a.e(f"s_cbranch_scc0 {lab}")
        a.e("v_lshlrev_b32 v112, 2, v2")
        a.e(f"v_add_u32 v112, {KC0}, v112")
        a.e("v_mov_b32 v113, 0")
        a.e("v_cmp_eq_u32 vcc, 7, v2")
        for ccx, reg in items:
            a.e(f"v_readfirstlane_b32 s77, v{reg}")
            a.e("s_nop 3")
            a.e("s_lshl_b32 s77, s77, 16")
            a.e("v_mov_b32 v114, s77")
            a.e("v_cndmask_b32 v114, 0, v114, vcc")
            a.e("s_mov_b64 exec, 0xff")
            a.e(f"ds_write_b32 v112, v113 offset:{KCS*ccx}")
            a.e(f"ds_write_b32 v112, v114 offset:{KCS*ccx+4160}")
            a.e("s_mov_b64 exec, -1")
        a.label(lab)
    pads(((0, T0a), (2, T0b)), "L_NOPADA")
    a.e("s_cmp_eq_u32 s3, 3")
    a.e("s_cbranch_scc0 L_NOEPW")
    a.e(f"v_readfirstlane_b32 s72, v{EPV}")
    a.e("s_add_u32 s72, s72, 1")
    a.e("v_mov_b32 v84, s72")
    a.e(f"v_mov_b32 v85, {EPL}")
    a.e("ds_write_b32 v85, v84")
    a.label("L_NOEPW")
    a.wait_ds_all()
    a.stamp(3)
    a.e("s_barrier")
    a.e("s_cmp_eq_u32 s3, 2")
    a.e("s_cbranch_scc0 L_NOGST")
    a.e(f"v_mov_b32 v67, {EPL}")
    a.e("ds_read_b32 v66, v67")
    a.e("s_lshl_b32 s77, s2, 3")
    a.e(f"s_add_u32 s77, s77, {WS_GF1}")
    a.e("v_mov_b32 v68, s77")
    a.e("s_waitcnt lgkmcnt(0)")
    a.e(f"v_xor_b32 v67, 0x{FLAGC:08x}, v66")
    a.e("s_mov_b64 exec, 1")
    a.e("buffer_store_dwordx2 v[66:67], v68, s[60:63], 0 offen sc1")
    a.e("s_mov_b64 exec, -1")
    a.label("L_NOGST")
    a.ds_done = a.ds_issued
    for chn in range(2):
        EL = 66 + 10 * chn
        for e in range(9): te = a.e(f"ds_read_u16 v{EL+e}, v{XA+e} offset:{FSZ*chn}")
    a.wait_ds(te)
    for chn in range(2):
        EL = 66 + 10 * chn; EE = 88 + 8 * chn; OO = EE + 4
        for k in range(4):
            a.e(f"v_lshl_or_b32 v{EE+k}, v{EL+2*k+1}, 16, v{EL+2*k}")
            a.e(f"v_lshl_or_b32 v{OO+k}, v{EL+2*k+2}, 16, v{EL+2*k+1}")
        a.e(f"ds_write_b128 v{vKW}, v[{EE}:{EE+3}] offset:{KCS*(2*chn+1)}")
        a.e(f"ds_write_b128 v{vKW}, v[{OO}:{OO+3}] offset:{KCS*(2*chn+1)+4160}")
    pads(((1, 66), (3, 76)), "L_NOPADB")
    a.e("s_cmp_eq_u32 s8, 0")
    a.e("s_cbranch_scc0 L_KNOAL")
    aloads()
    a.e("s_waitcnt lgkmcnt(15)")
    a.e("s_branch L_KAL2")
    a.label("L_KNOAL")
    a.e("s_waitcnt lgkmcnt(0)")
    a.label("L_KAL2")
    a.e("s_cmp_eq_u32 s8, 0")
    a.e("s_cselect_b32 s77, s100, s101")
    a.e("s_lshl_b32 s78, s9, 4")
    a.e("s_lshr_b32 s77, s77, s78")
    a.e("s_lshl_b32 s77, s77, 16")
    a.e(f"v_mov_b32 v{DF}, s77")
    a.stamp(4)
    a.e("s_barrier")
    a.label("L_JOIN")
    a.ds_done = a.ds_issued; a.vm_done = a.vm_issued
    a.e(f"v_mov_b32 v101, {EPL}")
    a.e("ds_read_b32 v100, v101")
    a.e("v_mov_b32 v104, 0"); a.e("v_mov_b32 v105, 0")
    a.e(f"ds_write_b64 v{vPAD}, v[104:105]")
    a.e("s_waitcnt lgkmcnt(0)")
    a.e("v_readfirstlane_b32 s72, v100")
    a.e("s_nop 3")
    a.e(f"s_xor_b32 s73, s72, 0x{FLAGC:08x}")
    a.e("s_add_u32 s97, s97, s73") if not cfg.get("force_fb") else a.e("s_add_u32 s97, s2, s73")
    a.e("s_cmp_eq_u32 s3, 7")
    a.e("s_cbranch_scc0 L_NOFLAG2")
    a.e("v_mov_b32 v120, s72")
    a.e("v_mov_b32 v121, s97")
    a.e("s_lshl_b32 s77, s4, 5")
    a.e("s_add_u32 s77, s77, s5")
    a.e("s_lshl_b32 s77, s77, 3")
    a.e(f"s_add_u32 s78, s77, {WS_LF}")
    a.e("v_mov_b32 v124, s78")
    a.e("s_mov_b64 exec, 1")
    a.e("buffer_store_dwordx2 v[120:121], v124, s[60:63], 0 offen")
    a.e("s_mov_b64 exec, -1")
    a.label("L_NOFLAG2")
    a.e("v_lshlrev_b32 v122, 5, v2")
    a.e(f"v_add_u32 v122, {WS_GF1}, v122")
    a.e("v_and_b32 v123, 31, v2")
    a.e("v_lshlrev_b32 v123, 3, v123")
    a.e("s_lshl_b32 s77, s4, 8")
    a.e(f"s_add_u32 s77, s77, {WS_LF}")
    a.e("v_add_u32 v123, s77, v123")
    a.e("s_cmp_eq_u32 s8, 0")
    a.e("s_cbranch_scc1 L_SKIPAL")
    aloads()
    a.label("L_SKIPAL")
    a.stamp(5)
    XF = cfg.get("xflag", " sc1")
    def pollG(a):
        a.e("buffer_load_dwordx4 v[112:115], v122, s[60:63], 0 offen sc1")
        a.e("buffer_load_dwordx4 v[116:119], v122, s[60:63], 0 offen offset:16 sc1")
    def checkG(a):
        for r in (112, 114, 116, 118): a.e(f"v_xor_b32 v{r}, s72, v{r}")
        for r in (113, 115, 117, 119): a.e(f"v_xor_b32 v{r}, s73, v{r}")
        a.e("v_or_b32 v112, v112, v113"); a.e("v_or_b32 v114, v114, v115"); a.e("v_or_b32 v116, v116, v117"); a.e("v_or_b32 v118, v118, v119")
        a.e("v_or_b32 v112, v112, v114"); a.e("v_or_b32 v116, v116, v118"); a.e("v_or_b32 v112, v112, v116")
    def checkL(a):
        a.e("v_xor_b32 v120, s72, v120")
        a.e("v_xor_b32 v121, s97, v121")
        a.e("v_or_b32 v120, v120, v121")
    a.e("s_cmp_eq_u32 s3, 7")
    a.e("s_cbranch_scc0 L_POLLDONE")
    a.e("s_mov_b32 s77, 0")
    a.label("L_POLL")
    pollG(a)
    a.e("buffer_load_dwordx2 v[120:121], v123, s[60:63], 0 offen sc1")
    a.e("s_waitcnt vmcnt(0)")
    checkG(a)
    checkL(a)
    a.e("v_cmp_ne_u32 vcc, 0, v120")
    a.e("v_cmp_ne_u32 s[78:79], 0, v112")
    a.e("s_add_u32 s77, s77, 1")
    a.e("s_or_b64 s[78:79], s[78:79], vcc")
    a.e("s_mov_b32 s98, 1")
    a.e("s_cmp_eq_u64 s[78:79], 0")
    a.e("s_cbranch_scc1 L_POLLOUT")
    a.e("s_cmp_eq_u64 vcc, 0")
    a.e("s_cbranch_scc1 L_POLLG")
    a.e(f"s_cmp_lt_u32 s77, {cfg.get('NA', 10)}")
    a.e("s_cbranch_scc1 L_POLL")
    a.e("s_mov_b32 s98, 2")
    a.e("s_branch L_POLLOUT")
    a.label("L_POLLG")
    a.e("s_cmp_lt_u32 s77, 20000")
    a.e("s_cbranch_scc1 L_POLL")
    a.label("L_POLLOUT")
    a.e("v_mov_b32 v120, s98")
    a.e(f"v_mov_b32 v121, {RES}")
    a.e("ds_write_b32 v121, v120")
    a.label("L_POLLDONE")
    a.wait_ds_all()
    a.vm_done = a.vm_issued
    a.stamp(8)
    a.e("s_barrier")
    a.e(f"v_mov_b32 v121, {RES}")
    a.e("ds_read_b32 v120, v121")
    a.e("s_mov_b32 s99, 0")
    a.e("s_waitcnt lgkmcnt(0)")
    a.e("v_readfirstlane_b32 s98, v120")
    a.e("s_nop 3")
    a.e("s_cmp_eq_u32 s98, 1")
    a.e("s_cbranch_scc1 L_FAST")
    a.e("s_cmp_eq_u32 s7, 0")
    a.e("s_cbranch_scc1 L_FBK")
    tr_and_store(" sc1", WS_X2 + WS_XQ, WS_X2 + WS_XKV)
    a.label("L_FBK")
    a.e("s_waitcnt vmcnt(0)")
    a.e("s_barrier")
    a.e("s_cmp_eq_u32 s3, 7")
    a.e("s_cbranch_scc0 L_FB2")
    a.e("v_mov_b32 v120, s72")
    a.e("v_mov_b32 v121, s73")
    a.e("s_lshl_b32 s77, s4, 5")
    a.e("s_add_u32 s77, s77, s5")
    a.e("s_lshl_b32 s77, s77, 3")
    a.e(f"s_add_u32 s78, s77, {WS_GF2}")
    a.e("v_mov_b32 v124, s78")
    a.e("s_mov_b64 exec, 1")
    a.e("buffer_store_dwordx2 v[120:121], v124, s[60:63], 0 offen sc1")
    a.e("s_mov_b64 exec, -1")
    a.e(f"v_add_u32 v124, {WS_GF2 - WS_LF}, v123")
    a.e("s_mov_b32 s77, 0")
    a.label("L_FBPOLL")
    pollG(a)
    a.e("buffer_load_dwordx2 v[120:121], v123, s[60:63], 0 offen sc1")
    a.e("buffer_load_dwordx2 v[126:127], v124, s[60:63], 0 offen sc1")
    a.e("s_waitcnt vmcnt(0)")
    checkG(a)
    checkL(a)
    a.e("v_xor_b32 v126, s72, v126")
    a.e("v_xor_b32 v127, s73, v127")
    a.e("v_or_b32 v126, v126, v127")
    a.e("v_cmp_ne_u32 vcc, 0, v112")
    a.e("s_add_u32 s77, s77, 1")
    a.e("s_cmp_ge_u32 s77, 20000")
    a.e("s_cbranch_scc1 L_FBGIVE")
    a.e("s_cmp_eq_u64 vcc, 0")
    a.e("s_cbranch_scc0 L_FBPOLL")
    a.e("v_cmp_ne_u32 vcc, 0, v120")
    a.e("s_mov_b32 s98, 1")
    a.e("s_nop 3")
    a.e("s_cmp_eq_u64 vcc, 0")
    a.e("s_cbranch_scc1 L_FBOUT")
    a.e("v_cmp_ne_u32 vcc, 0, v126")
    a.e("s_nop 4")
    a.e("s_cmp_eq_u64 vcc, 0")
    a.e("s_cbranch_scc0 L_FBPOLL")
    a.label("L_FBGIVE")
    a.e("s_mov_b32 s98, 2")
    a.label("L_FBOUT")
    a.e("v_mov_b32 v120, s98")
    a.e(f"v_mov_b32 v121, {RES}")
    a.e("ds_write_b32 v121, v120")
    a.e("s_waitcnt lgkmcnt(0)")
    a.label("L_FB2")
    a.e("s_barrier")
    a.e(f"v_mov_b32 v121, {RES}")
    a.e("ds_read_b32 v120, v121")
    a.e("s_waitcnt lgkmcnt(0)")
    a.e("v_readfirstlane_b32 s98, v120")
    a.e("s_nop 3")
    a.e("s_cmp_eq_u32 s98, 2")
    a.e(f"s_cselect_b32 s99, {WS_X2}, 0")
    XL = 72
    a.e(f"buffer_load_dwordx4 v[{XL}:{XL+3}], v13, s[60:63], s99 offen sc1")
    a.e(f"s_add_u32 s77, s99, {WS_XKV}")
    a.e(f"buffer_load_dwordx4 v[{XL+4}:{XL+7}], v13, s[60:63], s77 offen sc1")
    a.e("s_branch L_XISSUED")
    a.label("L_FAST")
    a.e(f"buffer_load_dwordx4 v[{XL}:{XL+3}], v13, s[60:63], 0 offen{XF}")
    a.e(f"s_mov_b32 s77, {WS_XKV}")
    a.e(f"buffer_load_dwordx4 v[{XL+4}:{XL+7}], v13, s[60:63], s77 offen{XF}")
    a.label("L_XISSUED")
    a.ds_done = a.ds_issued; a.vm_done = a.vm_issued
    a.e(f"s_mov_b32 s77, {WS_GP}")
    a.e(f"buffer_load_dwordx4 v[28:31], v4, s[60:63], s77 offen sc1")
    a.e(f"v_add_u32 v5, {GM}, v4")
    a.stamp(9)
    a.e("s_waitcnt vmcnt(1)")
    a.e(f"ds_write_b128 v{vXL}, v[{XL}:{XL+3}] offset:{XRS}")
    a.e(f"ds_write_b128 v{vXL}, v[{XL+4}:{XL+7}]")
    a.e("s_waitcnt lgkmcnt(0)")
    a.ds_done = a.ds_issued; a.vm_done = a.vm_issued
    a.stamp(13)
    a.e("s_barrier")
    a.e("s_cmp_lg_u32 s2, 0")
    a.e("s_cbranch_scc1 L_NOEP")
    a.e("s_cmp_lg_u32 s3, 7")
    a.e("s_cbranch_scc1 L_NOEP")
    a.e("v_mov_b32 v72, s72")
    a.e(f"v_mov_b32 v73, {WS_EP}")
    a.e("s_mov_b64 exec, 1")
    a.e("buffer_store_dword v72, v73, s[60:63], 0 offen")
    a.e("s_mov_b64 exec, -1")
    a.label("L_NOEP")
    a.e("s_cmp_lg_u32 s7, 0")
    a.e("s_cbranch_scc1 L_H1")
    ctx = dict(vB=vB, vX=vX, vQ=vQ, vG=vG, vPX=vPX, vGW=vGW, vCMB=vCMB, vOUT=vOUT, SQL=SQL, SQH=SQH, ONEF=ONEF, SG=SG, DF=DF, MHI=27,
               nostore=cfg.get("nostore"), noepi=cfg.get("noepi"), vA=vA, CPRE=CPRE)
    for kk in ("G1", "G2", "G3", "nobar", "novalu", "bstamp", "NB0", "NB1"):
        if kk in cfg: ctx[kk] = cfg[kk]
    main_loop(a, 0, passes, NB, LOOK, RATE, ctx)
    a.e("s_endpgm")
    a.label("L_H1")
    main_loop(a, 1, passes, NB, LOOK, RATE, ctx)
    a.label("L_END")
    a.e("s_endpgm")
    a.label("L_CODE_END")

def main_loop(a, h, passes, NB, LOOK, RATE, c):
    ACC0 = 32
    BR = 48
    NB = c.get("NB1", 16) if h == 1 else c.get("NB0", 12)
    EP = BR + 4 * NB
    assert EP + (32 if h == 0 else 8) <= 128
    MHI = c["MHI"]
    a.e(f"v_mov_b32 v{MHI}, 0xffff0000")
    def areg(cidx, rho): return 4 * (cidx * 4 + rho)
    n = len(passes)
    accof = {}
    for pi, P in enumerate(passes):
        assert len(P) <= 2
        for k, t in enumerate(P): accof[t] = ACC0 + 8 * (pi % 2) + 4 * k
    G1, G2, G3 = c.get("G1", 2), c.get("G2", 2), c.get("G3", 5)
    mf = []; loads = []; bseq = 0; pstart = []; pend = []; seenA = set(); tokA = {}
    for P in passes:
        thi = max(P)
        pstart.append(len(mf))
        for rho in range(4):
            for dl in range(thi + 1):
                users = [t for t in P if t - dl >= 0]
                if not users: continue
                for t in users:
                    cidx = t - dl
                    if cidx >= c["CPRE"] and (cidx, rho) not in seenA:
                        seenA.add((cidx, rho))
                        loads.append(dict(kind="A", c=cidx, rho=rho, need=max(0, len(mf) - c.get("ALEAD", 10))))
                loads.append(dict(kind="B", dl=dl, rho=rho, need=len(mf), b=bseq))
                for t in users: mf.append(dict(t=t, c=t - dl, rho=rho, b=bseq))
                bseq += 1
        pend.append(len(mf))
    lastuse = {}
    for i, m in enumerate(mf): lastuse[m["b"]] = i
    tokB = {}; st = dict(li=0); started = set(); side = []
    V = (lambda f: None) if c.get("novalu") else (lambda f: side.append(("v", f)))
    X = lambda f: side.append(("x", f))
    def run_side(nv):
        k = 0
        while side:
            it = side[0]
            if it[0] == "gap":
                if it[1] <= 0: side.pop(0); continue
                side[0] = ("gap", it[1] - 1)
                return
            if it[0] == "v":
                if k >= nv: return
                k += 1
            side.pop(0); it[1]()
    def flush_side():
        while side:
            if side[0][0] == "gap": side.pop(0); continue
            run_side(1000)
    def prefetch(i, limit):
        while st["li"] < len(loads):
            L = loads[st["li"]]
            if L["need"] > i + LOOK or L["need"] >= limit: break
            if L["kind"] == "A":
                r = areg(L["c"], L["rho"]); o = 128 * (L["c"] & 1) + 16 * L["rho"]; va = c["vA"][L["c"] >> 1]
                a.e(f"ds_read2_b32 a[{r}:{r+1}], v{va} offset0:{o} offset1:{o+1}")
                tokA[(L["c"], L["rho"])] = a.e(f"ds_read2_b32 a[{r+2}:{r+3}], v{va} offset0:{o+2} offset1:{o+3}")
                st["li"] += 1
                continue
            prev = L["b"] - NB
            if prev >= 0 and lastuse[prev] >= i: break
            r = BR + 4 * (L["b"] % NB)
            tokB[L["b"]] = a.e(f"ds_read_b128 v[{r}:{r+3}], v{c['vB']} offset:{64*L['rho'] + 512*(7-L['dl'])}")
            st["li"] += 1
    def emit_pass(pi, init_tok=None):
        for i in range(pstart[pi], pend[pi]):
            m = mf[i]
            prefetch(i, 10**9)
            a.wait_ds(tokB[m["b"]])
            if (m["c"], m["rho"]) in tokA: a.wait_ds(tokA[(m["c"], m["rho"])])
            ar = areg(m["c"], m["rho"]); br = BR + 4 * (m["b"] % NB); ac = accof[m["t"]]
            if m["t"] in started: src = f"v[{ac}:{ac+3}]"
            else:
                started.add(m["t"])
                if init_tok is not None:
                    a.wait_ds(init_tok[m["t"]]); src = f"v[{ac}:{ac+3}]"
                else: src = "0"
            a.e(f"v_mfma_f32_16x16x32_bf16 v[{ac}:{ac+3}], a[{ar}:{ar+3}], v[{br}:{br+3}], {src}")
            run_side(RATE)
    bcount = [0]
    def barrier():
        if bcount[0] == 0:
            a.e("s_waitcnt vmcnt(0)")
            tg = a.e("ds_write_b128 v5, v[28:31]")
            a.wait_ds(tg)
        if c.get("bstamp"):
            a.raw(f"  s_memtime s[{56 + 0}:{57}]") if False else None
            a.e(f"s_memtime s[{16+2*bcount[0]}:{17+2*bcount[0]}]")
        if not c.get("nobar"): a.e("s_barrier")
        bcount[0] += 1
    def regs_fin(k):
        E = EP + 12 * k
        return E, E + 4, E + 8
    def q_fin_pre(P):
        assert len(P) <= 2
        XO, QM = EP + 24, EP + 26
        for k, t in enumerate(P):
            TT, UU, GG = regs_fin(k)
            tk = {}
            X(lambda t=t: a.e(f"ds_read_b64 v[{XO}:{XO+1}], v{c['vX']} offset:{512*(7-t)}"))
            X(lambda t=t: a.e(f"ds_read_b64 v[{QM}:{QM+1}], v{c['vQ']} offset:{512*(7-t)}"))
            def rg(t=t, GG=GG, tk=tk): tk[0] = a.e(f"ds_read_b128 v[{GG}:{GG+3}], v{c['vG']} offset:{1024*t}")
            X(rg)
            side.append(("gap", G3))
            X(lambda tk=tk: a.wait_ds(tk[0]))
            V(lambda TT=TT: a.e(f"v_lshlrev_b32 v{TT+3}, 16, v{XO}"))
            V(lambda TT=TT: a.e(f"v_and_b32 v{TT+2}, v{MHI}, v{XO}"))
            V(lambda TT=TT: a.e(f"v_lshlrev_b32 v{TT+1}, 16, v{XO+1}"))
            V(lambda TT=TT: a.e(f"v_and_b32 v{TT+0}, v{MHI}, v{XO+1}"))
            V(lambda UU=UU: a.e(f"v_perm_b32 v{UU+3}, v{QM}, v{c['ONEF']}, v{c['SQL']}"))
            V(lambda UU=UU: a.e(f"v_perm_b32 v{UU+2}, v{QM}, v{c['ONEF']}, v{c['SQH']}"))
            V(lambda UU=UU: a.e(f"v_perm_b32 v{UU+1}, v{QM+1}, v{c['ONEF']}, v{c['SQL']}"))
            V(lambda UU=UU: a.e(f"v_perm_b32 v{UU+0}, v{QM+1}, v{c['ONEF']}, v{c['SQH']}"))
            for e in range(4): V(lambda e=e, TT=TT: a.e(f"v_mul_f32 v{TT+e}, v{c['DF']}, v{TT+e}"))
            for e in range(4): V(lambda e=e, GG=GG: a.e(f"v_perm_b32 v{GG+e}, v{GG+e}, v{GG+e}, v{c['SG']}"))
            for e in range(4): V(lambda e=e, TT=TT: a.e(f"v_cvt_pk_bf16_f32 v{TT+e}, 0, v{TT+e}"))
    def q_fin_post(P):
        DD = EP + 28
        def stage(fn):
            for k, t in enumerate(P):
                TT, UU, GG = regs_fin(k); ac = accof[t]
                for e in range(4): V(lambda e=e, ac=ac, TT=TT, UU=UU, GG=GG: fn(e, ac, TT, UU, GG))
        stage(lambda e, ac, TT, UU, GG: a.e(f"v_cvt_pk_bf16_f32 v{ac+e}, 0, v{ac+e}"))
        stage(lambda e, ac, TT, UU, GG: a.e(f"v_add_f32 v{ac+e}, v{ac+e}, v{TT+e}"))
        stage(lambda e, ac, TT, UU, GG: a.e(f"v_cvt_pk_bf16_f32 v{ac+e}, 0, v{ac+e}"))
        stage(lambda e, ac, TT, UU, GG: a.e(f"v_mul_f32 v{ac+e}, v{ac+e}, v{UU+e}"))
        stage(lambda e, ac, TT, UU, GG: a.e(f"v_cvt_pk_bf16_f32 v{ac+e}, 0, v{ac+e}"))
        stage(lambda e, ac, TT, UU, GG: a.e(f"v_mul_f32 v{ac+e}, v{ac+e}, v{GG+e}"))
        for k, t in enumerate(P):
            ac = accof[t]
            V(lambda ac=ac, k=k: a.e(f"v_cvt_pk_bf16_f32 v{DD+2*k}, v{ac+0}, v{ac+1}"))
            V(lambda ac=ac, k=k: a.e(f"v_cvt_pk_bf16_f32 v{DD+2*k+1}, v{ac+2}, v{ac+3}"))
        for k, t in enumerate(P):
            X(lambda t=t, k=k: a.e(f"ds_write_b64 v{c['vGW']}, v[{DD+2*k}:{DD+2*k+1}] offset:{512*t}"))
    def q_combine(P):
        tkc = {}
        for k, t in enumerate(P):
            CM = [EP + 4 * k + i for i in range(4)]
            for cc2 in range(4):
                def rd(cc2=cc2, t=t, CM=CM): tkc[t] = a.e(f"ds_read_u16_d16_hi v{CM[cc2]}, v{c['vCMB']} offset:{4096*cc2+512*t}")
                X(rd)
        side.append(("gap", G3))
        for k, t in enumerate(P):
            CM = [EP + 4 * k + i for i in range(4)]
            X(lambda t=t: a.wait_ds(tkc[t]))
            V(lambda CM=CM: a.e(f"v_add_f32 v{CM[0]}, v{CM[0]}, v{CM[1]}"))
            V(lambda CM=CM: a.e(f"v_add_f32 v{CM[2]}, v{CM[2]}, v{CM[3]}"))
            X(lambda t=t: a.e(f"s_mov_b32 s77, {t*262144}"))
            V(lambda CM=CM: a.e(f"v_cvt_pk_bf16_f32 v{CM[1]}, v{CM[0]}, v{CM[2]}"))
            if not c.get("nostore"): X(lambda CM=CM: a.e(f"buffer_store_dword v{CM[1]}, v{c['vOUT']}, s[64:67], s77 offen"))
    if h == 1:
        for k in range(n):
            if k >= 2: q_combine(passes[k - 2])
            emit_pass(k)
            flush_side()
            tw = None
            for t in passes[k]:
                tw = a.e(f"ds_write_b128 v{c['vPX']}, v[{accof[t]}:{accof[t]+3}] offset:{1024*t}")
            if k + 1 < n: prefetch(pend[k], 10**9)
            a.wait_ds(tw)
            barrier()
        if n >= 2:
            q_combine(passes[n - 2]); flush_side()
        barrier()
        a.stamp(14)
        q_combine(passes[n - 1]); flush_side()
    else:
        barrier_only = True
        prefetch(0, 10**9)
        barrier()
        for k in range(n):
            itok = {}
            for t in passes[k]:
                itok[t] = a.e(f"ds_read_b128 v[{accof[t]}:{accof[t]+3}], v{c['vPX']} offset:{1024*t}")
            q_fin_pre(passes[k])
            emit_pass(k, init_tok=itok)
            flush_side()
            if k + 1 < n: prefetch(pend[k], 10**9)
            q_fin_post(passes[k])
            flush_side()
            a.wait_ds(a.ds_issued - 1)
            barrier()
        a.stamp(14)
    if getattr(a, "stamps", False): a.wait_vm_all()
    a.stamp(15)
    if c.get("bstamp"):
        a.e("s_waitcnt lgkmcnt(0)")
        for i in range(bcount[0]): a.e(f"s_mov_b32 s{81+i}, s{16+2*i}")
    a.dump_stamps(16, 52, 16 << 20, wave="s3")

def build(cfg):
    a = Asm()
    a.stamps = cfg.get("stamps", False)
    a.stamp_sel = cfg.get("stamp_sel", None)
    hdr = open("cdna_kernels/" + NAME + ".s.ref").read().split("\n")
    head = [l for l in hdr if l.startswith(";") and "@launch" not in l and "Override launch" not in l and "grid=ceil" not in l]
    a.raw("\n".join(head[:21]))
    a.raw(f"; @launch grid=(256,1,1) block=(512,1,1) lds={LDS_TOTAL}")
    a.raw('.amdgcn_target "amdgcn-amd-amdhsa--gfx950"\n.text')
    kernel(a, cfg)
    a.raw(f""".section .rodata,"a"
.p2align 6
.amdhsa_kernel {KN}
  .amdhsa_next_free_vgpr 256
  .amdhsa_next_free_sgpr 102
  .amdhsa_accum_offset 128
  .amdhsa_group_segment_fixed_size 0
  .amdhsa_kernarg_size 152
  .amdhsa_user_sgpr_count 2
  .amdhsa_user_sgpr_kernarg_segment_ptr 1
  .amdhsa_system_sgpr_workgroup_id_x 1
.end_amdhsa_kernel""")
    return a.finalize()

DEFAULT = dict(passes=[[0], [1, 2], [3, 4], [5, 6], [7]], NB=8, LOOK=14, RATE=2)
if __name__ == "__main__":
    out = sys.argv[1] if len(sys.argv) > 1 else "cdna_kernels/" + NAME + ".s"
    cfg = dict(DEFAULT)
    for arg in sys.argv[2:]:
        if arg == "stamps": cfg["stamps"] = True
        elif "=" in arg:
            k, v = arg.split("=", 1); cfg[k] = eval(v)
    open(out, "w").write(build(cfg))
    print("wrote", out)
```

```python
import sys, struct
from dsl import Asm

NAME = "gated_mix__ssm_conv_h3__ssm_conv_s4__prompt"
KN = NAME + "_kernel"
LOG2E = 0x3fb8aa3b
WS_XQ = 0
WS_XKV = 2 << 20
WS_X2 = 4 << 20
WS_GP = 8 << 20
WS_GF1 = (8 << 20) + 65536
WS_GF2 = (8 << 20) + 131072
WS_LF = (8 << 20) + 196608
WS_EP = (8 << 20) + 262144
WS_USED = (8 << 20) + 262144 + 4096
FLAGC = 0x5a5a5a5a

KT = 0
QT = KT + 72 * 128
KVT = QT + 8192
SKT = KVT + 8192
PAR = SKT + 512
KC0 = PAR + 3072
KCS = 8320
F0 = KC0 + 4 * KCS
FSZ = 6144
TAB0 = F0 + 2 * FSZ
ENT = 544
TABSZ = 72 * ENT
TABEND = TAB0 + 2 * TABSZ
XRS = 4608
XR0 = TAB0
GM = XR0 + 4 * XRS
PX = GM + 8192
GAB = PX + 32768
assert GAB + 16384 <= TABEND
LDS_TOTAL = TABEND

def fbits(x): return struct.unpack("<I", struct.pack("<f", float(x)))[0]

def cmul(a, dst, w, z, tmp):
    a.e(f"v_pk_mul_f32 v[{tmp}:{tmp+1}], v[{w}:{w+1}], v[{z}:{z+1}] op_sel:[0,0] op_sel_hi:[1,0]")
    a.e(f"v_pk_fma_f32 v[{dst}:{dst+1}], v[{w}:{w+1}], v[{z}:{z+1}], v[{tmp}:{tmp+1}] op_sel:[1,1,0] op_sel_hi:[0,1,1] neg_lo:[1,0,0]")

def cpow(a, dst, rho, phi, m, t0, t1):
    a.e(f"v_mul_f32 v{t0}, 0x{fbits(m):08x}, v{rho}")
    a.e(f"v_mul_f32 v{t1}, 0x{fbits(m):08x}, v{phi}")
    a.e(f"v_exp_f32 v{t0}, v{t0}")
    a.e(f"v_fract_f32 v{t1}, v{t1}")
    a.e(f"v_cos_f32 v{dst}, v{t1}")
    a.e(f"v_sin_f32 v{dst+1}, v{t1}")
    a.e(f"v_mul_f32 v{dst}, v{t0}, v{dst}")
    a.e(f"v_mul_f32 v{dst+1}, v{t0}, v{dst+1}")

def kernel(a, cfg):
    passes, NB, LOOK, RATE = cfg["passes"], cfg["NB"], cfg["LOOK"], cfg["RATE"]
    GLD, EPL, RES = PAR, PAR + 64, PAR + 128
    a.raw(f".globl {KN}\n.p2align 8\n.type {KN},@function\n{KN}:")
    a.e("s_cmp_ge_u32 s2, 256")
    a.e("s_cbranch_scc1 L_END")
    a.stamp(0)
    a.e("s_load_dwordx16 s[16:31], s[0:1], 0")
    a.e("s_load_dwordx16 s[32:47], s[0:1], 64")
    a.e("s_load_dwordx4 s[48:51], s[0:1], 128")
    a.e("s_load_dwordx2 s[52:53], s[0:1], 144")
    a.e("v_lshrrev_b32 v1, 6, v0")
    a.e("v_and_b32 v2, 63, v0")
    a.e("v_readfirstlane_b32 s3, v1")
    a.e("s_and_b32 s4, s2, 7")
    a.e("s_lshr_b32 s5, s2, 3")
    a.e("s_lshl_b32 s10, s4, 6")
    a.e("s_lshl_b32 s11, s5, 1")
    a.e("s_add_u32 s10, s10, s11")
    MQ = 96
    a.e(f"s_and_b32 s{MQ}, s3, 3")
    a.e("s_lshr_b32 s7, s3, 2")
    a.e(f"s_xor_b32 s6, s{MQ}, s7")
    a.e("s_and_b32 s8, s6, 1")
    a.e("s_lshr_b32 s9, s6, 1")
    a.e("v_lshlrev_b32 v69, 4, v2")
    a.e("s_lshl_b32 s11, s5, 16")
    a.e("s_lshl_b32 s12, s4, 7")
    a.e("s_add_u32 s11, s11, s12")
    a.e("s_getreg_b32 s97, hwreg(HW_REG_XCC_ID, 0, 4)")
    a.e("s_cmp_eq_u32 s7, 0")
    a.e("s_cbranch_scc1 L_KISSUE")
    a.e("v_lshrrev_b32 v67, 3, v2")
    a.e("v_and_b32 v68, 7, v2")
    a.e("v_lshlrev_b32 v5, 10, v67")
    a.e("v_lshl_add_u32 v5, v68, 4, v5")
    a.e(f"s_lshl_b32 s12, s{MQ}, 14")
    a.e("s_add_u32 s12, s12, s11")
    a.e("v_add_u32 v5, s12, v5")
    a.e("v_add_u32 v7, 8192, v5")
    a.e("v_subrev_u32 v6, 8192, v5")
    a.e("v_bfe_u32 v70, v0, 3, 5")
    a.e("v_and_b32 v71, 7, v0")
    a.e("v_lshlrev_b32 v72, 11, v70")
    a.e("v_lshl_add_u32 v72, v71, 4, v72")
    a.e("v_add_u32 v72, s11, v72")
    a.e("s_lshl_b32 s14, s4, 9")
    a.e("v_add_u32 v73, s14, v69")
    a.e(f"s_lshl_b32 s13, s{MQ}, 11")
    a.e("s_waitcnt lgkmcnt(0)")
    a.e("s_mov_b32 s56, s18"); a.e("s_and_b32 s57, s19, 0xffff"); a.e("s_mov_b32 s58, 0x200000"); a.e("s_mov_b32 s59, 0x20000")
    VR = 120
    a.e("s_cmp_eq_u32 s3, 4")
    a.e("s_cbranch_scc0 L_X1")
    a.e(f"s_mov_b32 m0, {KT}")
    a.e("s_nop 0")
    a.e("buffer_load_dwordx4 v6, s[56:59], 0 offen lds")
    a.e("s_branch L_X2")
    a.label("L_X1")
    a.e("s_cmp_eq_u32 s3, 5")
    a.e("s_cbranch_scc0 L_X2")
    a.e("s_mov_b32 exec_hi, 0")
    a.e(f"s_mov_b32 m0, {SKT}")
    a.e("s_nop 0")
    a.e("global_load_lds_dwordx4 v73, s[22:23]")
    a.e("s_mov_b32 exec_hi, -1")
    a.label("L_X2")
    a.e(f"s_add_u32 m0, s13, {KT + 1024}")
    a.e("s_nop 0")
    a.e("buffer_load_dwordx4 v5, s[56:59], 0 offen lds")
    a.e(f"s_add_u32 m0, s13, {KT + 2048}")
    a.e("s_nop 0")
    a.e("buffer_load_dwordx4 v7, s[56:59], 0 offen lds")
    a.e(f"global_load_dwordx4 v[{VR}:{VR+3}], v72, s[20:21]")
    a.e(f"global_load_dwordx4 v[{VR+4}:{VR+7}], v72, s[20:21] offset:1024")
    a.e(f"s_add_u32 m0, s13, {QT}")
    a.e("s_nop 0")
    a.e("global_load_lds_dwordx4 v5, s[16:17]")
    a.e(f"s_add_u32 m0, s13, {QT + 1024}")
    a.e("s_nop 0")
    a.e("global_load_lds_dwordx4 v7, s[16:17]")
    a.e("s_branch L_COMMON")
    a.label("L_KISSUE")
    GQ0, GQ1, GW = 100, 104, 108
    EPV = 30
    a.e("s_lshl_b32 s15, s10, 8")
    a.e("v_add_u32 v72, s15, v69")
    a.e("s_lshl_b32 s12, s2, 3")
    a.e(f"s_lshl_b32 s13, s{MQ}, 1")
    a.e("s_add_u32 s12, s12, s13")
    a.e("s_lshl_b32 s13, s12, 10")
    a.e("v_add_u32 v73, s13, v69")
    a.e("s_lshl_b32 s79, s10, 1")
    a.e("s_waitcnt lgkmcnt(0)")
    a.e("s_load_dword s76, s[42:43], s79")
    a.e("s_mov_b32 exec_hi, 0")
    for wv, arrs in enumerate(((0, 1), (2, 3), (4,), (5,))):
        a.e(f"s_cmp_eq_u32 s{MQ}, {wv}")
        a.e(f"s_cbranch_scc0 L_KP{wv}")
        for ar in arrs:
            a.e(f"s_mov_b32 m0, {PAR + 512*ar}")
            a.e("s_nop 0")
            a.e(f"global_load_lds_dwordx4 v72, s[{30+2*ar}:{31+2*ar}]")
        a.e("s_branch L_KP4")
        a.label(f"L_KP{wv}")
    a.label("L_KP4")
    a.e("s_mov_b64 exec, -1")
    a.e(f"global_load_dwordx4 v[{GQ0}:{GQ0+3}], v73, s[16:17]")
    a.e(f"global_load_dwordx4 v[{GQ1}:{GQ1+3}], v73, s[16:17] offset:1024")
    a.e(f"global_load_dwordx4 v[{GW}:{GW+3}], v69, s[46:47]")
    a.e("s_cmp_lt_u32 s3, 2")
    a.e("s_cbranch_scc1 L_COMMON")
    a.e("s_cmp_eq_u32 s3, 3")
    a.e("s_cbranch_scc1 L_KX7")
    a.e("s_getpc_b64 s[74:75]")
    a.label("L_PC")
    a.raw("  .set CODE_REM, L_CODE_END - L_PC")
    a.e("v_lshlrev_b32 v74, 8, v2")
    a.e(f"v_cmp_gt_u32 vcc, CODE_REM, v74")
    a.e(f"v_cndmask_b32 v74, 0, v74, vcc")
    a.e(f"global_load_dword v30, v74, s[74:75]")
    a.e("s_branch L_COMMON")
    a.label("L_KX7")
    a.e("v_subrev_u32 v74, 1, v2")
    a.e("v_lshlrev_b32 v74, 21, v74")
    a.e(f"v_mov_b32 v75, {WS_EP}")
    a.e("v_cmp_eq_u32 vcc, 0, v2")
    a.e("v_cndmask_b32 v74, v74, v75, vcc")
    a.e("s_mov_b64 exec, 7")
    a.e(f"global_load_dword v{EPV}, v74, s[52:53] sc1")
    a.e("s_mov_b64 exec, -1")
    a.label("L_COMMON")
    a.e("s_mov_b32 s60, s52"); a.e("s_and_b32 s61, s53, 0xffff"); a.e(f"s_mov_b32 s62, {WS_USED}"); a.e("s_mov_b32 s63, 0x20000")
    a.e("s_mov_b32 s64, s48"); a.e("s_and_b32 s65, s49, 0xffff"); a.e("s_mov_b32 s66, 0x200000"); a.e("s_mov_b32 s67, 0x20000")
    a.e("s_mov_b32 s68, s24"); a.e("s_and_b32 s69, s25, 0xffff"); a.e("s_mov_b32 s70, 0x200000"); a.e("s_mov_b32 s71, 0x20000")
    a.e("s_lshl_b32 s79, s10, 1")
    a.e("s_load_dword s76, s[42:43], s79")
    a.e("s_load_dword s100, s[26:27], s79")
    a.e("s_load_dword s101, s[44:45], s79")
    ONES, MLO, MHI = 21, 28, 27
    a.e(f"v_mov_b32 v{ONES}, 0x3f803f80")
    a.e(f"v_mov_b32 v{MLO}, 0xffff")
    a.e(f"v_mov_b32 v{MHI}, 0xffff0000")
    J, Q4 = 64, 65
    a.e(f"v_and_b32 v{J}, 15, v2")
    a.e(f"v_lshrrev_b32 v{Q4}, 4, v2")
    a.e("s_lshl_b32 s13, s10, 12")
    a.e("v_lshlrev_b32 v4, 4, v0")
    a.e("v_add_u32 v13, s13, v4")
    vB, vX, vQ, vG, vPX, vGW, vCMB, vOUT = 8, 9, 10, 11, 12, 14, 15, 16
    vA = [17, 18, 19, 20]
    SQL, SQH, ONEF, SG, DF = 22, 23, 24, 25, 26
    vXL = 3
    CPRE = cfg.get("CPRE", 8)
    def areg(cidx, rho): return 4 * (cidx * 4 + rho)
    def aloads():
        for cidx in range(CPRE):
            for rho in range(4):
                r = areg(cidx, rho); o = 128 * (cidx & 1) + 16 * rho; va = vA[cidx >> 1]
                a.e(f"ds_read2_b32 a[{r}:{r+1}], v{va} offset0:{o} offset1:{o+1}")
                a.e(f"ds_read2_b32 a[{r+2}:{r+3}], v{va} offset0:{o+2} offset1:{o+3}")
    a.e(f"s_mul_i32 s77, s6, {XRS}")
    a.e(f"s_add_u32 s77, s77, {XR0}")
    a.e("s_lshl_b32 s78, s7, 8")
    a.e("s_add_u32 s78, s78, s77")
    a.e("s_add_u32 s78, s78, 480")
    a.e(f"v_lshlrev_b32 v62, 5, v{J}")
    a.e(f"v_lshlrev_b32 v{vB}, 4, v{Q4}")
    a.e(f"v_sub_u32 v{vB}, v{vB}, v62")
    a.e(f"v_add_u32 v{vB}, s78, v{vB}")
    a.e(f"v_lshl_add_u32 v63, v{Q4}, 3, v62")
    a.e("s_add_u32 s78, s77, 504")
    a.e(f"v_sub_u32 v{vX}, s78, v63")
    vPAD = 29
    a.e("s_add_u32 s78, s77, 4096")
    a.e(f"v_lshlrev_b32 v{vPAD}, 3, v2")
    a.e(f"v_add_u32 v{vPAD}, s78, v{vPAD}")
    a.e("s_or_b32 s78, s6, 1")
    a.e(f"s_mul_i32 s78, s78, {XRS}")
    a.e(f"s_add_u32 s78, s78, {XR0 + 504}")
    a.e(f"v_sub_u32 v{vQ}, s78, v63")
    a.e(f"v_lshlrev_b32 v62, 1, v63")
    a.e(f"v_add_u32 v{vG}, {GM}, v62")
    a.e("s_lshl_b32 s78, s6, 13")
    a.e(f"s_add_u32 s78, s78, {PX}")
    a.e(f"v_add_u32 v{vPX}, s78, v69")
    a.e("s_lshl_b32 s78, s6, 12")
    a.e(f"s_add_u32 s78, s78, {GAB}")
    a.e(f"v_add_u32 v{vGW}, s78, v63")
    a.e("s_lshl_b32 s78, s6, 6")
    a.e(f"v_add_u32 v62, s78, v2")
    a.e(f"v_lshlrev_b32 v{vCMB}, 1, v62")
    a.e(f"v_add_u32 v{vCMB}, {GAB}, v{vCMB}")
    a.e(f"v_lshlrev_b32 v{vOUT}, 10, v62")
    a.e("s_lshl_b32 s78, s10, 1")
    a.e(f"v_add_u32 v{vOUT}, s78, v{vOUT}")
    a.e("s_lshl_b32 s78, s7, 7")
    a.e("s_sub_u32 s78, s78, 15")
    a.e(f"v_lshl_add_u32 v62, v{Q4}, 3, v{J}")
    a.e("v_add_u32 v62, s78, v62")
    a.e("v_lshlrev_b32 v62, 1, v62")
    a.e(f"s_mul_i32 s78, s6, {KCS}")
    a.e(f"s_add_u32 s78, s78, {KC0 + 32}")
    a.e(f"v_and_b32 v63, 1, v{J}")
    a.e(f"v_cmp_eq_u32 vcc, 1, v63")
    a.e(f"v_mov_b32 v63, {4160 - 2}")
    a.e(f"v_cndmask_b32 v63, v63, 0, vcc")
    a.e(f"v_add3_u32 v{vA[0]}, v62, v63, s78")
    for i in range(1, 4): a.e(f"v_add_u32 v{vA[i]}, {1024*i}, v{vA[0]}")
    a.e("v_lshrrev_b32 v62, 8, v0")
    a.e(f"v_mul_u32_u24 v62, {2*XRS}, v62")
    a.e("v_and_b32 v63, 255, v0")
    a.e(f"v_lshl_add_u32 v{vXL}, v63, 4, v62")
    a.e(f"v_add_u32 v{vXL}, {XR0}, v{vXL}")
    a.e(f"v_mov_b32 v{ONEF}, 1.0")
    a.e("s_cmp_eq_u32 s8, 0")
    a.e("s_mov_b32 s78, 0x03020100")
    a.e("s_cselect_b32 s77, 0x05040c0c, s78");  a.e(f"v_mov_b32 v{SQL}, s77")
    a.e("s_cselect_b32 s77, 0x07060c0c, s78");  a.e(f"v_mov_b32 v{SQH}, s77")
    a.e("s_mov_b32 s78, 0x07060c0c")
    a.e("s_cselect_b32 s77, 0x05040c0c, s78");  a.e(f"v_mov_b32 v{SG}, s77")
    a.e("v_mov_b32 v5, 0") if False else None
    a.e("s_cmp_eq_u32 s7, 0")
    a.e("s_cbranch_scc1 L_KPATH")
    vRC, vSKA, vTR, vXS = 31, 1, 5, 6
    a.e("v_bfe_u32 v70, v0, 3, 5")
    a.e("v_and_b32 v71, 7, v0")
    a.e(f"v_lshlrev_b32 v{vRC}, 8, v70")
    a.e(f"v_lshl_add_u32 v{vRC}, v71, 4, v{vRC}")
    a.e(f"v_lshlrev_b32 v{vSKA}, 6, v71")
    a.e(f"v_lshrrev_b32 v72, 2, v{J}")
    a.e(f"v_and_b32 v73, 3, v{J}")
    a.e(f"v_lshlrev_b32 v75, 3, v{Q4}")
    a.e("v_add_u32 v76, 3, v75")
    a.e("v_sub_u32 v76, v76, v72")
    a.e("v_lshlrev_b32 v76, 7, v76")
    a.e("v_lshl_add_u32 v76, v73, 3, v76")
    a.e(f"s_lshl_b32 s77, s{MQ}, 5")
    a.e(f"v_add_u32 v{vTR}, s77, v76")
    a.e("s_lshl_b32 s77, s4, 18")
    a.e(f"s_lshl_b32 s78, s{MQ}, 16")
    a.e("s_add_u32 s77, s77, s78")
    a.e("s_add_u32 s77, s77, 4016")
    a.e("s_lshl_b32 s78, s5, 7")
    a.e("s_sub_u32 s77, s77, s78")
    a.e(f"v_lshlrev_b32 v{vXS}, 12, v{J}")
    a.e("v_lshlrev_b32 v76, 1, v75")
    a.e(f"v_sub_u32 v{vXS}, v{vXS}, v76")
    a.e(f"v_add_u32 v{vXS}, s77, v{vXS}")
    a.e("v_and_b32 v32, 127, v0")
    a.e("v_bfe_u32 v33, v0, 7, 1")
    a.e("v_lshlrev_b32 v34, 8, v33")
    a.e("v_lshl_add_u32 v34, v32, 1, v34")
    TA = 35
    a.e(f"v_mul_u32_u24 v{TA}, {TABSZ}, v33")
    a.e(f"v_lshl_add_u32 v{TA}, v32, 2, v{TA}")
    a.e(f"v_add_u32 v{TA}, {TAB0}, v{TA}")
    a.e("s_waitcnt lgkmcnt(0)")
    a.stamp(1)
    a.e("s_barrier")
    PR = 66
    for i in range(6): tp = a.e(f"ds_read_u16_d16_hi v{PR+i}, v34 offset:{PAR + 512*i}")
    Are, Aim, Bre, Bim, Cre, Cim = [PR + i for i in range(6)]
    DT, RHO, PHI = 72, 73, 74
    C = 76
    a.e("v_bfe_u32 v75, v0, 7, 1")
    a.e("v_lshlrev_b32 v75, 4, v75")
    a.e(f"v_lshrrev_b32 v{DT}, v75, s76") if False else None
    a.e(f"v_mov_b32 v{DT}, s76")
    a.e(f"v_lshrrev_b32 v{DT}, v75, v{DT}")
    a.e(f"v_lshlrev_b32 v{DT}, 16, v{DT}")
    a.e(f"v_mul_f32 v{DT}, 0x{LOG2E:08x}, v{DT}")
    a.e(f"v_exp_f32 v{DT}, v{DT}")
    a.e(f"v_cvt_pk_bf16_f32 v{DT}, 0, v{DT}")
    a.wait_ds(tp)
    a.e(f"v_mul_f32 v{RHO}, v{DT}, v{Are}")
    a.e(f"v_mul_f32 v{PHI}, v{DT}, v{Aim}")
    a.e(f"v_mul_f32 v{RHO}, 0x{LOG2E:08x}, v{RHO}")
    a.e(f"v_mul_f32 v{PHI}, 0.15915494, v{PHI}")
    a.e(f"v_mul_f32 v{Bre}, v{DT}, v{Bre}")
    a.e(f"v_mul_f32 v{Bim}, v{DT}, v{Bim}")
    a.e(f"v_mul_f32 v{C}, v{Cre}, v{Bre}")
    a.e(f"v_mul_f32 v{C+1}, v{Cre}, v{Bim}")
    a.e(f"v_fma_f32 v{C}, -v{Cim}, v{Bim}, v{C}")
    a.e(f"v_fma_f32 v{C+1}, v{Cim}, v{Bre}, v{C+1}")
    Z4, Z128, S3, Z8, W = 80, 84, 86, 88, 90
    TMP = [100, 102, 104, 106, 108, 110]
    PT = [112, 113, 114, 115]
    pw = [(Z4, 4), (Z128, 128), (S3, 1024)]
    for i, (dst, m) in enumerate(pw):
        a.e(f"v_mul_f32 v{TMP[0]+i}, 0x{fbits(m):08x}, v{RHO}")
        a.e(f"v_mul_f32 v{TMP[3]+i}, 0x{fbits(m):08x}, v{PHI}")
    for i, (dst, m) in enumerate(pw):
        a.e(f"v_exp_f32 v{TMP[0]+i}, v{TMP[0]+i}")
        a.e(f"v_fract_f32 v{TMP[3]+i}, v{TMP[3]+i}")
    for i, (dst, m) in enumerate(pw):
        a.e(f"v_cos_f32 v{dst}, v{TMP[3]+i}")
        a.e(f"v_sin_f32 v{dst+1}, v{TMP[3]+i}")
    for i, (dst, m) in enumerate(pw):
        a.e(f"v_mul_f32 v{dst}, v{TMP[0]+i}, v{dst}")
        a.e(f"v_mul_f32 v{dst+1}, v{TMP[0]+i}, v{dst+1}")
    pti2 = [0]
    def putx(entry, pair, neg):
        tmp = PT[pti2[0] % 4]; pti2[0] += 1
        a.e(f"v_cvt_pk_bf16_f32 v{tmp}, v{pair}, {'-' if neg else ''}v{pair+1}")
        a.e(f"ds_write_b32 v{TA}, v{tmp} offset:{entry*ENT}")
    cmul(a, Z8, Z4, Z4, TMP[0])
    cmul(a, S3, S3, C, TMP[1])
    W1 = 92
    a.e(f"v_mov_b32 v{W}, 1.0"); a.e(f"v_mov_b32 v{W+1}, 0")
    a.e(f"v_mov_b32 v{W1}, v{Z4}"); a.e(f"v_mov_b32 v{W1+1}, v{Z4+1}")
    putx(0, W, False); putx(1, W1, False); putx(24 + 32, S3, True)
    for st in range(1, 16):
        cmul(a, W, W, Z8, TMP[0])
        if st <= 7: cmul(a, W1, W1, Z8, TMP[2])
        if st <= 8: cmul(a, S3, S3, Z128, TMP[1])
        putx(2 * st if st < 8 else 16 + (st - 8), W, False)
        if st <= 7: putx(2 * st + 1, W1, False)
        if st <= 8: putx(24 + 32 + st, S3, True)
    a.e("s_waitcnt vmcnt(2) lgkmcnt(0)")
    a.ds_done = a.ds_issued
    a.stamp(2)
    a.e("s_barrier")
    KR, SK, MK, PA, PB, XX = 32, 52, 68, 100, 108, 52
    for i in range(5): a.e(f"ds_read_b128 v[{KR+4*i}:{KR+4*i+3}], v{vRC} offset:{KT + (5+i)*128}")
    for i in range(4): tsk = a.e(f"ds_read_b128 v[{SK+4*i}:{SK+4*i+3}], v{vSKA} offset:{SKT + 16*i}")
    a.e("s_cmp_eq_u32 s8, 0")
    a.e("s_cselect_b32 s77, s100, s101")
    a.e("s_lshl_b32 s78, s9, 4")
    a.e("s_lshr_b32 s77, s77, s78")
    a.e("s_lshl_b32 s77, s77, 16")
    a.e(f"v_mov_b32 v{DF}, s77")
    a.wait_ds(tsk)
    chains = [(m, ci) for m in range(4) for ci in range(2)]
    for tau in range(4):
        for idx, (m, ci) in enumerate(chains):
            cch = 2 * m + ci; src = SK + 2 * cch + (tau >> 1); dst = MK + 8 * tau + idx
            if ci == 0:
                if tau & 1: a.e(f"v_lshrrev_b32 v{dst}, 16, v{src}")
                else: a.e(f"v_and_b32 v{dst}, v{MLO}, v{src}")
            else:
                if tau & 1: a.e(f"v_and_b32 v{dst}, v{MHI}, v{src}")
                else: a.e(f"v_lshlrev_b32 v{dst}, 16, v{src}")
    for row in range(2):
        def prod(dst, tau):
            for idx, (m, ci) in enumerate(chains):
                a.e(f"v_dot2_f32_bf16 v{dst+idx}, v{KR+4*(3-tau+row)+m}, v{MK+8*tau+idx}, 0")
        prod(PA, 3)
        for tau in (2, 1, 0):
            prod(PB, tau)
            for idx in range(8): a.e(f"v_cvt_pk_bf16_f32 v{XX+idx}, v{PA+idx}, v{PB+idx}")
            for idx in range(8): a.e(f"v_dot2_f32_bf16 v{PA+idx}, v{XX+idx}, v{ONES}, 0")
        Vr = VR + 4 * row
        for m in range(4):
            a.e(f"v_and_b32 v{XX+2*m}, v{MLO}, v{Vr+m}")
            a.e(f"v_and_b32 v{XX+2*m+1}, v{MHI}, v{Vr+m}")
        for m in range(4): a.e(f"v_cvt_pk_bf16_f32 v{PB+m}, v{PA+2*m}, v{PA+2*m+1}")
        for m in range(4):
            a.e(f"v_dot2_f32_bf16 v{PA+2*m}, v{PB+m}, v{XX+2*m}, 0")
            a.e(f"v_dot2_f32_bf16 v{PA+2*m+1}, v{PB+m}, v{XX+2*m+1}, 0")
        KVR = 116
        for m in range(4): a.e(f"v_cvt_pk_bf16_f32 v{KVR+m}, v{PA+2*m}, v{PA+2*m+1}")
        a.e(f"ds_write_b128 v{vRC}, v[{KVR}:{KVR+3}] offset:{KVT + 128*row}")
    a.e("s_waitcnt vmcnt(0) lgkmcnt(0)")
    a.ds_done = a.ds_issued
    a.stamp(3)
    a.e("s_barrier")
    XO = 32
    def tr_and_store(sc, base_q, base_kv):
        toks = []
        for ai, T in enumerate((KVT, QT)):
            for blk in range(2):
                r = XO + 8 * ai + 4 * blk
                a.e(f"ds_read_b64_tr_b16 v[{r}:{r+1}], v{vTR} offset:{T + 4096*blk + 512}")
                toks.append(a.e(f"ds_read_b64_tr_b16 v[{r+2}:{r+3}], v{vTR} offset:{T + 4096*blk}"))
        a.e(f"s_mov_b32 s77, {base_kv}")
        a.e(f"s_mov_b32 s78, {base_q}")
        for ai in range(2):
            for blk in range(2):
                r = XO + 8 * ai + 4 * blk
                a.wait_ds(toks[2 * ai + blk])
                a.e(f"buffer_store_dwordx4 v[{r}:{r+3}], v{vXS}, s[60:63], s{77+ai} offen offset:{64*(1-blk)}{sc}")
    tr_and_store("", WS_XQ, WS_XKV)
    a.e("s_cmp_eq_u32 s8, 0")
    a.e("s_cbranch_scc0 L_XNOAL")
    aloads()
    a.label("L_XNOAL")
    a.e("s_waitcnt vmcnt(0)")
    a.stamp(4)
    a.e("s_barrier")
    a.e("s_branch L_JOIN")
    a.label("L_KPATH")
    a.e("v_mov_b32 v5, 0"); a.e("v_mov_b32 v6, -1")
    a.e("v_and_b32 v32, 127, v0")
    a.e("v_bfe_u32 v33, v0, 7, 1")
    a.e("v_lshlrev_b32 v34, 8, v33")
    a.e("v_lshl_add_u32 v34, v32, 1, v34")
    TA = 35
    a.e(f"v_mul_u32_u24 v{TA}, {TABSZ}, v33")
    a.e(f"v_lshl_add_u32 v{TA}, v32, 2, v{TA}")
    a.e(f"v_add_u32 v{TA}, {TAB0}, v{TA}")
    XA = 36
    a.e("v_and_b32 v45, 255, v0")
    a.e("v_lshlrev_b32 v45, 3, v45")
    for k in range(5):
        a.e(f"v_add_u32 v46, {2*k}, v45")
        a.e(f"v_add_u32 v47, {2*k+1}, v45")
        a.e("v_cvt_f32_u32 v46, v46")
        a.e("v_cvt_f32_u32 v47, v47")
        a.e("v_cvt_pk_bf16_f32 v46, v46, v47")
        a.e(f"v_and_b32 v47, v{MHI}, v46")
        a.e("v_lshlrev_b32 v46, 16, v46")
        a.e("v_cvt_u32_f32 v46, v46")
        a.e(f"v_lshlrev_b32 v{XA+2*k}, 1, v46")
        a.e(f"v_add_u32 v{XA+2*k}, {F0}, v{XA+2*k}")
        if k < 4:
            a.e("v_cvt_u32_f32 v47, v47")
            a.e(f"v_lshlrev_b32 v{XA+2*k+1}, 1, v47")
            a.e(f"v_add_u32 v{XA+2*k+1}, {F0}, v{XA+2*k+1}")
    vKW = 31
    a.e(f"v_lshlrev_b32 v{vKW}, 1, v45")
    a.e(f"v_add_u32 v{vKW}, {KC0+32}, v{vKW}")
    vSS = 46
    a.e(f"v_lshlrev_b32 v{vSS}, 1, v45")
    a.e(f"v_add_u32 v{vSS}, s13, v{vSS}")
    a.e("s_cmp_lt_u32 s3, 2")
    a.e("s_cbranch_scc1 L_KW1")
    a.e("s_waitcnt vmcnt(4) lgkmcnt(0)")
    a.e("s_branch L_KW2")
    a.label("L_KW1")
    a.e("s_waitcnt vmcnt(3) lgkmcnt(0)")
    a.label("L_KW2")
    a.stamp(1)
    a.e("s_barrier")
    T0a, T1a, T0b, T1b = 48, 52, 56, 60
    a.e(f"buffer_load_dwordx4 v[{T0a}:{T0a+3}], v{vSS}, s[68:71], 0 offen")
    a.e(f"buffer_load_dwordx4 v[{T1a}:{T1a+3}], v{vSS}, s[68:71], 0 offen offset:4")
    a.e("s_mov_b32 s77, 4096")
    a.e(f"buffer_load_dwordx4 v[{T0b}:{T0b+3}], v{vSS}, s[68:71], s77 offen")
    a.e(f"buffer_load_dwordx4 v[{T1b}:{T1b+3}], v{vSS}, s[68:71], s77 offen offset:4")
    PR = 66
    for i in range(6): tp = a.e(f"ds_read_u16_d16_hi v{PR+i}, v34 offset:{PAR + 512*i}")
    Are, Aim, Bre, Bim, Cre, Cim = [PR + i for i in range(6)]
    DT, RHO, PHI = 72, 73, 74
    C = 76
    a.e("v_bfe_u32 v75, v0, 7, 1")
    a.e("v_lshlrev_b32 v75, 4, v75")
    a.e(f"v_lshrrev_b32 v{DT}, v75, s76") if False else None
    a.e(f"v_mov_b32 v{DT}, s76")
    a.e(f"v_lshrrev_b32 v{DT}, v75, v{DT}")
    a.e(f"v_lshlrev_b32 v{DT}, 16, v{DT}")
    a.e(f"v_mul_f32 v{DT}, 0x{LOG2E:08x}, v{DT}")
    a.e(f"v_exp_f32 v{DT}, v{DT}")
    a.e(f"v_cvt_pk_bf16_f32 v{DT}, 0, v{DT}")
    a.wait_ds(tp)
    a.e(f"v_mul_f32 v{RHO}, v{DT}, v{Are}")
    a.e(f"v_mul_f32 v{PHI}, v{DT}, v{Aim}")
    a.e(f"v_mul_f32 v{RHO}, 0x{LOG2E:08x}, v{RHO}")
    a.e(f"v_mul_f32 v{PHI}, 0.15915494, v{PHI}")
    a.e(f"v_mul_f32 v{Bre}, v{DT}, v{Bre}")
    a.e(f"v_mul_f32 v{Bim}, v{DT}, v{Bim}")
    a.e(f"v_mul_f32 v{C}, v{Cre}, v{Bre}")
    a.e(f"v_mul_f32 v{C+1}, v{Cre}, v{Bim}")
    a.e(f"v_fma_f32 v{C}, -v{Cim}, v{Bim}, v{C}")
    a.e(f"v_fma_f32 v{C+1}, v{Cim}, v{Bre}, v{C+1}")
    Z1, Z64 = 78, 82
    VV = [92, 94, 96, 98]
    TMP = [112, 114, 116, 118, 120, 122]
    PT = [124, 125, 126, 127]
    pw = [(Z1, 1), (Z64, 64)]
    for i, (dst, m) in enumerate(pw):
        a.e(f"v_mul_f32 v{TMP[0]+i}, 0x{fbits(m):08x}, v{RHO}")
        a.e(f"v_mul_f32 v{TMP[3]+i}, 0x{fbits(m):08x}, v{PHI}")
    for i, (dst, m) in enumerate(pw):
        a.e(f"v_exp_f32 v{TMP[0]+i}, v{TMP[0]+i}")
        a.e(f"v_fract_f32 v{TMP[3]+i}, v{TMP[3]+i}")
    for i, (dst, m) in enumerate(pw):
        a.e(f"v_cos_f32 v{dst}, v{TMP[3]+i}")
        a.e(f"v_sin_f32 v{dst+1}, v{TMP[3]+i}")
    for i, (dst, m) in enumerate(pw):
        a.e(f"v_mul_f32 v{dst}, v{TMP[0]+i}, v{dst}")
        a.e(f"v_mul_f32 v{dst+1}, v{TMP[0]+i}, v{dst+1}")
    pti = [0]
    def put(entry, pair, neg):
        tmp = PT[pti[0] % 4]; pti[0] += 1
        a.e(f"v_cvt_pk_bf16_f32 v{tmp}, v{pair}, {'-' if neg else ''}v{pair+1}")
        a.e(f"ds_write_b32 v{TA}, v{tmp} offset:{entry*ENT}")
    a.e(f"v_mov_b32 v{VV[0]}, v{C}"); a.e(f"v_mov_b32 v{VV[0]+1}, v{C+1}")
    cmul(a, VV[1], VV[0], Z1, TMP[2])
    cmul(a, VV[2], VV[1], Z1, TMP[2])
    cmul(a, VV[3], VV[2], Z1, TMP[2])
    for i in range(16):
        ps = [0, 1, 2, 3] if i < 4 else ([0, 2] if i < 8 else [0])
        if i > 0:
            for p in ps: cmul(a, VV[p], VV[p], Z64, TMP[2 + p])
        for p in ps:
            if i < 4: ent = 24 + 4 * i + p
            elif i < 8: ent = 24 + 16 + 2 * (i - 4) + p // 2
            else: ent = 24 + 16 + i
            put(ent, VV[p], True)
    a.e("s_waitcnt vmcnt(4)")
    T = 66
    for m in range(4):
        a.e(f"v_and_b32 v{T+2*m}, v{MLO}, v{GW+m}")
        a.e(f"v_and_b32 v{T+2*m+1}, v{MHI}, v{GW+m}")
    GA = [90, 91]
    for ri, GQ in enumerate((GQ0, GQ1)):
        U = 74 + 8 * ri
        for m in range(4):
            a.e(f"v_dot2_f32_bf16 v{U+2*m}, v{GQ+m}, v{T+2*m}, 0")
            a.e(f"v_dot2_f32_bf16 v{U+2*m+1}, v{GQ+m}, v{T+2*m+1}, 0")
    for ri in range(2):
        U = 74 + 8 * ri
        for m in range(4): a.e(f"v_cvt_pk_bf16_f32 v{92+4*ri+m}, v{U+2*m}, v{U+2*m+1}")
    for ri in range(2):
        U = 74 + 8 * ri
        for m in range(4):
            a.e(f"v_lshlrev_b32 v{U+2*m}, 16, v{92+4*ri+m}")
            a.e(f"v_and_b32 v{U+2*m+1}, v{MHI}, v{92+4*ri+m}")
    for ri in range(2):
        U = 74 + 8 * ri
        for m in range(4): a.e(f"v_add_f32 v{U+2*m}, v{U+2*m}, v{U+2*m+1}")
    for ri in range(2):
        U = 74 + 8 * ri
        a.e(f"v_add_f32 v{U}, v{U}, v{U+2}")
        a.e(f"v_add_f32 v{U+4}, v{U+4}, v{U+6}")
    for ri in range(2):
        U = 74 + 8 * ri
        a.e(f"v_add_f32 v{GA[ri]}, v{U}, v{U+4}")
    for sh in (1, 2, 4, 8):
        for ri in range(2): a.e(f"v_add_f32_dpp v{GA[ri]}, v{GA[ri]}, v{GA[ri]} row_shr:{sh} row_mask:0xf bank_mask:0xf bound_ctrl:0")
    for ri in range(2): a.e(f"v_add_f32_dpp v{GA[ri]}, v{GA[ri]}, v{GA[ri]} row_bcast:15 row_mask:0xa bank_mask:0xf")
    for ri in range(2): a.e(f"v_add_f32_dpp v{GA[ri]}, v{GA[ri]}, v{GA[ri]} row_bcast:31 row_mask:0xc bank_mask:0xf")
    for ri in range(2): a.e(f"v_cvt_pk_bf16_f32 v{GA[ri]}, 0, v{GA[ri]}")
    for ri in range(2): a.e(f"v_mul_f32 v{GA[ri]}, 0x{LOG2E ^ 0x80000000:08x}, v{GA[ri]}")
    for ri in range(2): a.e(f"v_exp_f32 v{GA[ri]}, v{GA[ri]}")
    for ri in range(2): a.e(f"v_add_f32 v{GA[ri]}, 1.0, v{GA[ri]}")
    for ri in range(2): a.e(f"v_rcp_f32 v{GA[ri]}, v{GA[ri]}")
    for ri in range(2): a.e(f"v_cvt_pk_bf16_f32 v{GA[ri]}, 0, v{GA[ri]}")
    for ri in range(2): a.e(f"v_sub_f32 v{92+ri}, 1.0, v{GA[ri]}")
    for ri in range(2): a.e(f"v_cvt_pk_bf16_f32 v{94+ri}, v{GA[ri]}, v{92+ri}")
    a.e("s_lshl_b32 s77, s12, 2")
    a.e(f"s_add_u32 s77, s77, {WS_GP}")
    a.e("v_mov_b32 v96, s77")
    a.e("s_mov_b32 exec_lo, 0")
    a.e("s_mov_b32 exec_hi, 0x80000000")
    a.e("buffer_store_dwordx2 v[94:95], v96, s[60:63], 0 offen sc1")
    a.e("s_mov_b64 exec, -1")
    a.wait_ds_all()
    a.stamp(2)
    a.e("s_barrier")
    if cfg.get("pretouch", True):
        a.e("s_cmp_eq_u32 s3, 1")
        a.e("s_cbranch_scc0 L_NOPT")
        a.e("s_lshl_b32 s77, s4, 18")
        a.e("s_add_u32 s77, s77, 3968")
        a.e("s_lshl_b32 s78, s5, 7")
        a.e("s_sub_u32 s77, s77, s78")
        a.e("v_lshlrev_b32 v66, 12, v2")
        a.e("v_add_u32 v66, s77, v66")
        a.e(f"s_mov_b32 s78, {WS_XKV}")
        a.e("buffer_load_dword v112, v66, s[60:63], 0 offen sc1")
        a.e("buffer_load_dword v113, v66, s[60:63], s78 offen sc1")
        a.label("L_NOPT")
    a.e(f"s_and_b32 s77, s{MQ}, 1")
    a.e(f"s_mul_i32 s78, s77, {FSZ}")
    a.e(f"s_add_u32 s79, s78, {F0}")
    a.e(f"s_mul_i32 s77, s77, {TABSZ}")
    a.e(f"s_add_u32 s77, s77, {TAB0}")
    a.e(f"v_mul_u32_u24 v66, {ENT}, v{J}")
    a.e(f"v_lshl_add_u32 v66, v{Q4}, 4, v66")
    a.e("v_add_u32 v66, s77, v66")
    a.e(f"s_cmp_gt_u32 s{MQ}, 1")
    a.e("s_cbranch_scc1 L_JOB2")
    toks = []
    for ks in range(8):
        a.e(f"ds_read_b128 a[{4*ks}:{4*ks+3}], v66 offset:{64*ks}")
        a.e(f"ds_read_b128 a[{32+4*ks}:{32+4*ks+3}], v66 offset:{24*ENT + 64*ks}")
        toks.append(a.e(f"ds_read_b128 a[{64+4*ks}:{64+4*ks+3}], v66 offset:{40*ENT + 64*ks}"))
    a.e(f"v_lshlrev_b32 v68, 6, v{Q4}")
    a.e(f"v_lshl_add_u32 v68, v{J}, 2, v68")
    a.e("v_lshlrev_b32 v68, 1, v68")
    a.e("v_add_u32 v68, s79, v68")
    a.e(f"v_cmp_gt_u32 vcc, 2, v{Q4}")
    a.e(f"v_lshlrev_b32 v74, 7, v{Q4}")
    a.e("v_add_u32 v74, 256, v74")
    a.e(f"v_lshlrev_b32 v75, 8, v{Q4}")
    a.e(f"v_cndmask_b32 v70, v75, v74, vcc")
    a.e(f"v_lshl_add_u32 v70, v{J}, 2, v70")
    for e, (o1, o2) in enumerate(((2, 64), (64, 128), (66, 192)), start=1):
        a.e(f"v_mov_b32 v74, {o2}")
        a.e(f"v_mov_b32 v75, {o1}")
        a.e(f"v_cndmask_b32 v74, v74, v75, vcc")
        a.e(f"v_add_u32 v{70+e}, v70, v74")
    for e in range(4):
        a.e(f"v_lshlrev_b32 v{70+e}, 1, v{70+e}")
        a.e(f"v_add_u32 v{70+e}, s79, v{70+e}")
    for ks in range(8):
        a.wait_ds(toks[ks])
        s0 = "0" if ks == 0 else "v[76:79]"; s1 = "0" if ks == 0 else "v[80:83]"
        a.e(f"v_mfma_f32_16x16x32_bf16 v[76:79], a[{32+4*ks}:{32+4*ks+3}], a[{4*ks}:{4*ks+3}], {s0}")
        a.e(f"v_mfma_f32_16x16x32_bf16 v[80:83], a[{64+4*ks}:{64+4*ks+3}], a[{4*ks}:{4*ks+3}], {s1}")
    a.e("v_cvt_pk_bf16_f32 v84, v76, v77")
    a.e("v_cvt_pk_bf16_f32 v85, v78, v79")
    a.e("ds_write_b64 v68, v[84:85]")
    a.e("v_cvt_pk_bf16_f32 v86, v80, v81")
    a.e("v_cvt_pk_bf16_f32 v87, v82, v83")
    a.e("ds_write_b16 v70, v86")
    a.e("ds_write_b16_d16_hi v71, v86")
    a.e("ds_write_b16 v72, v87")
    a.e("ds_write_b16_d16_hi v73, v87")
    a.e("s_branch L_JOBD")
    a.label("L_JOB2")
    a.ds_done = a.ds_issued
    a.e(f"v_lshlrev_b32 v67, 1, v{J}")
    a.e(f"v_add_u32 v68, 8, v{J}")
    a.e(f"v_cmp_gt_u32 vcc, 8, v{J}")
    a.e("v_cndmask_b32 v67, v68, v67, vcc")
    a.e(f"v_mul_u32_u24 v67, {ENT}, v67")
    a.e(f"v_lshl_add_u32 v67, v{Q4}, 4, v67")
    a.e("v_add_u32 v67, s77, v67")
    toks = []
    for ks in range(8):
        a.e(f"ds_read_b128 a[{4*ks}:{4*ks+3}], v67 offset:{64*ks}")
        toks.append(a.e(f"ds_read_b128 a[{32+4*ks}:{32+4*ks+3}], v66 offset:{56*ENT + 64*ks}"))
    a.e(f"v_lshlrev_b32 v70, 9, v{Q4}")
    a.e(f"v_lshl_add_u32 v70, v{J}, 3, v70")
    a.e("v_add_u32 v70, 1024, v70")
    a.e("v_lshlrev_b32 v70, 1, v70")
    a.e("v_add_u32 v70, s79, v70")
    for ks in range(8):
        a.wait_ds(toks[ks])
        s0 = "0" if ks == 0 else "v[76:79]"
        a.e(f"v_mfma_f32_16x16x32_bf16 v[76:79], a[{32+4*ks}:{32+4*ks+3}], a[{4*ks}:{4*ks+3}], {s0}")
    a.e("v_cvt_pk_bf16_f32 v84, v76, v77")
    a.e("v_cvt_pk_bf16_f32 v85, v78, v79")
    a.e("ds_write_b16 v70, v84")
    a.e("ds_write_b16_d16_hi v70, v84 offset:256")
    a.e("ds_write_b16 v70, v85 offset:512")
    a.e("ds_write_b16_d16_hi v70, v85 offset:768")
    a.label("L_JOBD")
    a.e("s_cmp_eq_u32 s3, 1")
    a.e("s_cbranch_scc1 L_WT6")
    a.e("s_waitcnt vmcnt(0)")
    a.e("s_branch L_WTD")
    a.label("L_WT6")
    a.e("s_waitcnt vmcnt(2)") if cfg.get("pretouch", True) else a.e("s_waitcnt vmcnt(0)")
    a.label("L_WTD")
    for chn, (T0, T1) in enumerate(((T0a, T1a), (T0b, T1b))):
        O = 104 + 4 * chn
        for jx in range(4): a.e(f"v_alignbit_b32 v{O+jx}, v{T1+jx}, v{T0+jx}, 16")
        a.e(f"ds_write_b128 v{vKW}, v[{T0}:{T0+3}] offset:{KCS*2*chn}")
        a.e(f"ds_write_b128 v{vKW}, v[{O}:{O+3}] offset:{KCS*2*chn+4160}")
    def pads(items, lab):
        a.e("s_cmp_eq_u32 s3, 0")
        a.e(f"s_cbranch_scc0 {lab}")
        a.e("v_lshlrev_b32 v112, 2, v2")
        a.e(f"v_add_u32 v112, {KC0}, v112")
        a.e("v_mov_b32 v113, 0")
        a.e("v_cmp_eq_u32 vcc, 7, v2")
        for ccx, reg in items:
            a.e(f"v_readfirstlane_b32 s77, v{reg}")
            a.e("s_nop 3")
            a.e("s_lshl_b32 s77, s77, 16")
            a.e("v_mov_b32 v114, s77")
            a.e("v_cndmask_b32 v114, 0, v114, vcc")
            a.e("s_mov_b64 exec, 0xff")
            a.e(f"ds_write_b32 v112, v113 offset:{KCS*ccx}")
            a.e(f"ds_write_b32 v112, v114 offset:{KCS*ccx+4160}")
            a.e("s_mov_b64 exec, -1")
        a.label(lab)
    pads(((0, T0a), (2, T0b)), "L_NOPADA")
    a.e("s_cmp_eq_u32 s3, 3")
    a.e("s_cbranch_scc0 L_NOEPW")
    a.e(f"v_readfirstlane_b32 s72, v{EPV}")
    a.e("s_add_u32 s72, s72, 1")
    a.e("v_mov_b32 v84, s72")
    a.e(f"v_mov_b32 v85, {EPL}")
    a.e("ds_write_b32 v85, v84")
    a.label("L_NOEPW")
    a.wait_ds_all()
    a.stamp(3)
    a.e("s_barrier")
    a.e("s_cmp_eq_u32 s3, 2")
    a.e("s_cbranch_scc0 L_NOGST")
    a.e(f"v_mov_b32 v67, {EPL}")
    a.e("ds_read_b32 v66, v67")
    a.e("s_lshl_b32 s77, s2, 3")
    a.e(f"s_add_u32 s77, s77, {WS_GF1}")
    a.e("v_mov_b32 v68, s77")
    a.e("s_waitcnt lgkmcnt(0)")
    a.e(f"v_xor_b32 v67, 0x{FLAGC:08x}, v66")
    a.e("s_mov_b64 exec, 1")
    a.e("buffer_store_dwordx2 v[66:67], v68, s[60:63], 0 offen sc1")
    a.e("s_mov_b64 exec, -1")
    a.label("L_NOGST")
    a.ds_done = a.ds_issued
    for chn in range(2):
        EL = 66 + 10 * chn
        for e in range(9): te = a.e(f"ds_read_u16 v{EL+e}, v{XA+e} offset:{FSZ*chn}")
    a.wait_ds(te)
    for chn in range(2):
        EL = 66 + 10 * chn; EE = 88 + 8 * chn; OO = EE + 4
        for k in range(4):
            a.e(f"v_lshl_or_b32 v{EE+k}, v{EL+2*k+1}, 16, v{EL+2*k}")
            a.e(f"v_lshl_or_b32 v{OO+k}, v{EL+2*k+2}, 16, v{EL+2*k+1}")
        a.e(f"ds_write_b128 v{vKW}, v[{EE}:{EE+3}] offset:{KCS*(2*chn+1)}")
        a.e(f"ds_write_b128 v{vKW}, v[{OO}:{OO+3}] offset:{KCS*(2*chn+1)+4160}")
    pads(((1, 66), (3, 76)), "L_NOPADB")
    a.e("s_cmp_eq_u32 s8, 0")
    a.e("s_cbranch_scc0 L_KNOAL")
    aloads()
    a.e("s_waitcnt lgkmcnt(15)")
    a.e("s_branch L_KAL2")
    a.label("L_KNOAL")
    a.e("s_waitcnt lgkmcnt(0)")
    a.label("L_KAL2")
    a.e("s_cmp_eq_u32 s8, 0")
    a.e("s_cselect_b32 s77, s100, s101")
    a.e("s_lshl_b32 s78, s9, 4")
    a.e("s_lshr_b32 s77, s77, s78")
    a.e("s_lshl_b32 s77, s77, 16")
    a.e(f"v_mov_b32 v{DF}, s77")
    a.stamp(4)
    a.e("s_barrier")
    a.label("L_JOIN")
    a.ds_done = a.ds_issued; a.vm_done = a.vm_issued
    a.e(f"v_mov_b32 v101, {EPL}")
    a.e("ds_read_b32 v100, v101")
    a.e("v_mov_b32 v104, 0"); a.e("v_mov_b32 v105, 0")
    a.e(f"ds_write_b64 v{vPAD}, v[104:105]")
    a.e("s_waitcnt lgkmcnt(0)")
    a.e("v_readfirstlane_b32 s72, v100")
    a.e("s_nop 3")
    a.e(f"s_xor_b32 s73, s72, 0x{FLAGC:08x}")
    a.e("s_add_u32 s97, s97, s73") if not cfg.get("force_fb") else a.e("s_add_u32 s97, s2, s73")
    a.e("s_cmp_eq_u32 s3, 7")
    a.e("s_cbranch_scc0 L_NOFLAG2")
    a.e("v_mov_b32 v120, s72")
    a.e("v_mov_b32 v121, s97")
    a.e("s_lshl_b32 s77, s4, 5")
    a.e("s_add_u32 s77, s77, s5")
    a.e("s_lshl_b32 s77, s77, 3")
    a.e(f"s_add_u32 s78, s77, {WS_LF}")
    a.e("v_mov_b32 v124, s78")
    a.e("s_mov_b64 exec, 1")
    a.e("buffer_store_dwordx2 v[120:121], v124, s[60:63], 0 offen")
    a.e("s_mov_b64 exec, -1")
    a.label("L_NOFLAG2")
    a.e("v_lshlrev_b32 v122, 5, v2")
    a.e(f"v_add_u32 v122, {WS_GF1}, v122")
    a.e("v_and_b32 v123, 31, v2")
    a.e("v_lshlrev_b32 v123, 3, v123")
    a.e("s_lshl_b32 s77, s4, 8")
    a.e(f"s_add_u32 s77, s77, {WS_LF}")
    a.e("v_add_u32 v123, s77, v123")
    a.e("s_cmp_eq_u32 s8, 0")
    a.e("s_cbranch_scc1 L_SKIPAL")
    aloads()
    a.label("L_SKIPAL")
    a.stamp(5)
    XF = cfg.get("xflag", " sc1")
    def pollG(a):
        a.e("buffer_load_dwordx4 v[112:115], v122, s[60:63], 0 offen sc1")
        a.e("buffer_load_dwordx4 v[116:119], v122, s[60:63], 0 offen offset:16 sc1")
    def checkG(a):
        for r in (112, 114, 116, 118): a.e(f"v_xor_b32 v{r}, s72, v{r}")
        for r in (113, 115, 117, 119): a.e(f"v_xor_b32 v{r}, s73, v{r}")
        a.e("v_or_b32 v112, v112, v113"); a.e("v_or_b32 v114, v114, v115"); a.e("v_or_b32 v116, v116, v117"); a.e("v_or_b32 v118, v118, v119")
        a.e("v_or_b32 v112, v112, v114"); a.e("v_or_b32 v116, v116, v118"); a.e("v_or_b32 v112, v112, v116")
    def checkL(a):
        a.e("v_xor_b32 v120, s72, v120")
        a.e("v_xor_b32 v121, s97, v121")
        a.e("v_or_b32 v120, v120, v121")
    a.e("s_cmp_eq_u32 s3, 7")
    a.e("s_cbranch_scc0 L_POLLDONE")
    a.e("s_mov_b32 s77, 0")
    a.label("L_POLL")
    pollG(a)
    a.e("buffer_load_dwordx2 v[120:121], v123, s[60:63], 0 offen sc1")
    a.e("s_waitcnt vmcnt(0)")
    checkG(a)
    checkL(a)
    a.e("v_cmp_ne_u32 vcc, 0, v120")
    a.e("v_cmp_ne_u32 s[78:79], 0, v112")
    a.e("s_add_u32 s77, s77, 1")
    a.e("s_or_b64 s[78:79], s[78:79], vcc")
    a.e("s_mov_b32 s98, 1")
    a.e("s_cmp_eq_u64 s[78:79], 0")
    a.e("s_cbranch_scc1 L_POLLOUT")
    a.e("s_cmp_eq_u64 vcc, 0")
    a.e("s_cbranch_scc1 L_POLLG")
    a.e(f"s_cmp_lt_u32 s77, {cfg.get('NA', 10)}")
    a.e("s_cbranch_scc1 L_POLL")
    a.e("s_mov_b32 s98, 2")
    a.e("s_branch L_POLLOUT")
    a.label("L_POLLG")
    a.e("s_cmp_lt_u32 s77, 20000")
    a.e("s_cbranch_scc1 L_POLL")
    a.label("L_POLLOUT")
    a.e("v_mov_b32 v120, s98")
    a.e(f"v_mov_b32 v121, {RES}")
    a.e("ds_write_b32 v121, v120")
    a.label("L_POLLDONE")
    a.wait_ds_all()
    a.vm_done = a.vm_issued
    a.stamp(8)
    a.e("s_barrier")
    a.e(f"v_mov_b32 v121, {RES}")
    a.e("ds_read_b32 v120, v121")
    a.e("s_mov_b32 s99, 0")
    a.e("s_waitcnt lgkmcnt(0)")
    a.e("v_readfirstlane_b32 s98, v120")
    a.e("s_nop 3")
    a.e("s_cmp_eq_u32 s98, 1")
    a.e("s_cbranch_scc1 L_FAST")
    a.e("s_cmp_eq_u32 s7, 0")
    a.e("s_cbranch_scc1 L_FBK")
    tr_and_store(" sc1", WS_X2 + WS_XQ, WS_X2 + WS_XKV)
    a.label("L_FBK")
    a.e("s_waitcnt vmcnt(0)")
    a.e("s_barrier")
    a.e("s_cmp_eq_u32 s3, 7")
    a.e("s_cbranch_scc0 L_FB2")
    a.e("v_mov_b32 v120, s72")
    a.e("v_mov_b32 v121, s73")
    a.e("s_lshl_b32 s77, s4, 5")
    a.e("s_add_u32 s77, s77, s5")
    a.e("s_lshl_b32 s77, s77, 3")
    a.e(f"s_add_u32 s78, s77, {WS_GF2}")
    a.e("v_mov_b32 v124, s78")
    a.e("s_mov_b64 exec, 1")
    a.e("buffer_store_dwordx2 v[120:121], v124, s[60:63], 0 offen sc1")
    a.e("s_mov_b64 exec, -1")
    a.e(f"v_add_u32 v124, {WS_GF2 - WS_LF}, v123")
    a.e("s_mov_b32 s77, 0")
    a.label("L_FBPOLL")
    pollG(a)
    a.e("buffer_load_dwordx2 v[120:121], v123, s[60:63], 0 offen sc1")
    a.e("buffer_load_dwordx2 v[126:127], v124, s[60:63], 0 offen sc1")
    a.e("s_waitcnt vmcnt(0)")
    checkG(a)
    checkL(a)
    a.e("v_xor_b32 v126, s72, v126")
    a.e("v_xor_b32 v127, s73, v127")
    a.e("v_or_b32 v126, v126, v127")
    a.e("v_cmp_ne_u32 vcc, 0, v112")
    a.e("s_add_u32 s77, s77, 1")
    a.e("s_cmp_ge_u32 s77, 20000")
    a.e("s_cbranch_scc1 L_FBGIVE")
    a.e("s_cmp_eq_u64 vcc, 0")
    a.e("s_cbranch_scc0 L_FBPOLL")
    a.e("v_cmp_ne_u32 vcc, 0, v120")
    a.e("s_mov_b32 s98, 1")
    a.e("s_nop 3")
    a.e("s_cmp_eq_u64 vcc, 0")
    a.e("s_cbranch_scc1 L_FBOUT")
    a.e("v_cmp_ne_u32 vcc, 0, v126")
    a.e("s_nop 4")
    a.e("s_cmp_eq_u64 vcc, 0")
    a.e("s_cbranch_scc0 L_FBPOLL")
    a.label("L_FBGIVE")
    a.e("s_mov_b32 s98, 2")
    a.label("L_FBOUT")
    a.e("v_mov_b32 v120, s98")
    a.e(f"v_mov_b32 v121, {RES}")
    a.e("ds_write_b32 v121, v120")
    a.e("s_waitcnt lgkmcnt(0)")
    a.label("L_FB2")
    a.e("s_barrier")
    a.e(f"v_mov_b32 v121, {RES}")
    a.e("ds_read_b32 v120, v121")
    a.e("s_waitcnt lgkmcnt(0)")
    a.e("v_readfirstlane_b32 s98, v120")
    a.e("s_nop 3")
    a.e("s_cmp_eq_u32 s98, 2")
    a.e(f"s_cselect_b32 s99, {WS_X2}, 0")
    XL = 72
    a.e(f"buffer_load_dwordx4 v[{XL}:{XL+3}], v13, s[60:63], s99 offen sc1")
    a.e(f"s_add_u32 s77, s99, {WS_XKV}")
    a.e(f"buffer_load_dwordx4 v[{XL+4}:{XL+7}], v13, s[60:63], s77 offen sc1")
    a.e("s_branch L_XISSUED")
    a.label("L_FAST")
    a.e(f"buffer_load_dwordx4 v[{XL}:{XL+3}], v13, s[60:63], 0 offen{XF}")
    a.e(f"s_mov_b32 s77, {WS_XKV}")
    a.e(f"buffer_load_dwordx4 v[{XL+4}:{XL+7}], v13, s[60:63], s77 offen{XF}")
    a.label("L_XISSUED")
    a.ds_done = a.ds_issued; a.vm_done = a.vm_issued
    a.e(f"s_mov_b32 s77, {WS_GP}")
    a.e(f"buffer_load_dwordx4 v[28:31], v4, s[60:63], s77 offen sc1")
    a.e(f"v_add_u32 v5, {GM}, v4")
    a.stamp(9)
    a.e("s_waitcnt vmcnt(1)")
    a.e(f"ds_write_b128 v{vXL}, v[{XL}:{XL+3}] offset:{XRS}")
    a.e(f"ds_write_b128 v{vXL}, v[{XL+4}:{XL+7}]")
    a.e("s_waitcnt lgkmcnt(0)")
    a.ds_done = a.ds_issued; a.vm_done = a.vm_issued
    a.stamp(13)
    a.e("s_barrier")
    a.e("s_cmp_lg_u32 s2, 0")
    a.e("s_cbranch_scc1 L_NOEP")
    a.e("s_cmp_lg_u32 s3, 7")
    a.e("s_cbranch_scc1 L_NOEP")
    a.e("v_mov_b32 v72, s72")
    a.e(f"v_mov_b32 v73, {WS_EP}")
    a.e("s_mov_b64 exec, 1")
    a.e("buffer_store_dword v72, v73, s[60:63], 0 offen")
    a.e("s_mov_b64 exec, -1")
    a.label("L_NOEP")
    a.e("s_cmp_lg_u32 s7, 0")
    a.e("s_cbranch_scc1 L_H1")
    ctx = dict(vB=vB, vX=vX, vQ=vQ, vG=vG, vPX=vPX, vGW=vGW, vCMB=vCMB, vOUT=vOUT, SQL=SQL, SQH=SQH, ONEF=ONEF, SG=SG, DF=DF, MHI=27,
               nostore=cfg.get("nostore"), noepi=cfg.get("noepi"), vA=vA, CPRE=CPRE)
    for kk in ("G1", "G2", "G3", "nobar", "novalu", "bstamp", "NB0", "NB1"):
        if kk in cfg: ctx[kk] = cfg[kk]
    main_loop(a, 0, passes, NB, LOOK, RATE, ctx)
    a.e("s_endpgm")
    a.label("L_H1")
    main_loop(a, 1, passes, NB, LOOK, RATE, ctx)
    a.label("L_END")
    a.e("s_endpgm")
    a.label("L_CODE_END")

def main_loop(a, h, passes, NB, LOOK, RATE, c):
    ACC0 = 32
    BR = 48
    NB = c.get("NB1", 16) if h == 1 else c.get("NB0", 12)
    EP = BR + 4 * NB
    assert EP + (32 if h == 0 else 8) <= 128
    MHI = c["MHI"]
    a.e(f"v_mov_b32 v{MHI}, 0xffff0000")
    def areg(cidx, rho): return 4 * (cidx * 4 + rho)
    n = len(passes)
    accof = {}
    for pi, P in enumerate(passes):
        assert len(P) <= 2
        for k, t in enumerate(P): accof[t] = ACC0 + 8 * (pi % 2) + 4 * k
    G1, G2, G3 = c.get("G1", 2), c.get("G2", 2), c.get("G3", 5)
    mf = []; loads = []; bseq = 0; pstart = []; pend = []; seenA = set(); tokA = {}
    for P in passes:
        thi = max(P)
        pstart.append(len(mf))
        for rho in range(4):
            for dl in range(thi + 1):
                users = [t for t in P if t - dl >= 0]
                if not users: continue
                for t in users:
                    cidx = t - dl
                    if cidx >= c["CPRE"] and (cidx, rho) not in seenA:
                        seenA.add((cidx, rho))
                        loads.append(dict(kind="A", c=cidx, rho=rho, need=max(0, len(mf) - c.get("ALEAD", 10))))
                loads.append(dict(kind="B", dl=dl, rho=rho, need=len(mf), b=bseq))
                for t in users: mf.append(dict(t=t, c=t - dl, rho=rho, b=bseq))
                bseq += 1
        pend.append(len(mf))
    lastuse = {}
    for i, m in enumerate(mf): lastuse[m["b"]] = i
    tokB = {}; st = dict(li=0); started = set(); side = []
    V = (lambda f: None) if c.get("novalu") else (lambda f: side.append(("v", f)))
    X = lambda f: side.append(("x", f))
    def run_side(nv):
        k = 0
        while side:
            it = side[0]
            if it[0] == "gap":
                if it[1] <= 0: side.pop(0); continue
                side[0] = ("gap", it[1] - 1)
                return
            if it[0] == "v":
                if k >= nv: return
                k += 1
            side.pop(0); it[1]()
    def flush_side():
        while side:
            if side[0][0] == "gap": side.pop(0); continue
            run_side(1000)
    def prefetch(i, limit):
        while st["li"] < len(loads):
            L = loads[st["li"]]
            if L["need"] > i + LOOK or L["need"] >= limit: break
            if L["kind"] == "A":
                r = areg(L["c"], L["rho"]); o = 128 * (L["c"] & 1) + 16 * L["rho"]; va = c["vA"][L["c"] >> 1]
                a.e(f"ds_read2_b32 a[{r}:{r+1}], v{va} offset0:{o} offset1:{o+1}")
                tokA[(L["c"], L["rho"])] = a.e(f"ds_read2_b32 a[{r+2}:{r+3}], v{va} offset0:{o+2} offset1:{o+3}")
                st["li"] += 1
                continue
            prev = L["b"] - NB
            if prev >= 0 and lastuse[prev] >= i: break
            r = BR + 4 * (L["b"] % NB)
            tokB[L["b"]] = a.e(f"ds_read_b128 v[{r}:{r+3}], v{c['vB']} offset:{64*L['rho'] + 512*(7-L['dl'])}")
            st["li"] += 1
    def emit_pass(pi, init_tok=None):
        for i in range(pstart[pi], pend[pi]):
            m = mf[i]
            prefetch(i, 10**9)
            a.wait_ds(tokB[m["b"]])
            if (m["c"], m["rho"]) in tokA: a.wait_ds(tokA[(m["c"], m["rho"])])
            ar = areg(m["c"], m["rho"]); br = BR + 4 * (m["b"] % NB); ac = accof[m["t"]]
            if m["t"] in started: src = f"v[{ac}:{ac+3}]"
            else:
                started.add(m["t"])
                if init_tok is not None:
                    a.wait_ds(init_tok[m["t"]]); src = f"v[{ac}:{ac+3}]"
                else: src = "0"
            a.e(f"v_mfma_f32_16x16x32_bf16 v[{ac}:{ac+3}], a[{ar}:{ar+3}], v[{br}:{br+3}], {src}")
            run_side(RATE)
    bcount = [0]
    def barrier():
        if bcount[0] == 0:
            a.e("s_waitcnt vmcnt(0)")
            tg = a.e("ds_write_b128 v5, v[28:31]")
            a.wait_ds(tg)
        if c.get("bstamp"):
            a.raw(f"  s_memtime s[{56 + 0}:{57}]") if False else None
            a.e(f"s_memtime s[{16+2*bcount[0]}:{17+2*bcount[0]}]")
        if not c.get("nobar"): a.e("s_barrier")
        bcount[0] += 1
    def regs_fin(k):
        E = EP + 12 * k
        return E, E + 4, E + 8
    def q_fin_pre(P):
        assert len(P) <= 2
        XO, QM = EP + 24, EP + 26
        for k, t in enumerate(P):
            TT, UU, GG = regs_fin(k)
            tk = {}
            X(lambda t=t: a.e(f"ds_read_b64 v[{XO}:{XO+1}], v{c['vX']} offset:{512*(7-t)}"))
            X(lambda t=t: a.e(f"ds_read_b64 v[{QM}:{QM+1}], v{c['vQ']} offset:{512*(7-t)}"))
            def rg(t=t, GG=GG, tk=tk): tk[0] = a.e(f"ds_read_b128 v[{GG}:{GG+3}], v{c['vG']} offset:{1024*t}")
            X(rg)
            side.append(("gap", G3))
            X(lambda tk=tk: a.wait_ds(tk[0]))
            V(lambda TT=TT: a.e(f"v_lshlrev_b32 v{TT+3}, 16, v{XO}"))
            V(lambda TT=TT: a.e(f"v_and_b32 v{TT+2}, v{MHI}, v{XO}"))
            V(lambda TT=TT: a.e(f"v_lshlrev_b32 v{TT+1}, 16, v{XO+1}"))
            V(lambda TT=TT: a.e(f"v_and_b32 v{TT+0}, v{MHI}, v{XO+1}"))
            V(lambda UU=UU: a.e(f"v_perm_b32 v{UU+3}, v{QM}, v{c['ONEF']}, v{c['SQL']}"))
            V(lambda UU=UU: a.e(f"v_perm_b32 v{UU+2}, v{QM}, v{c['ONEF']}, v{c['SQH']}"))
            V(lambda UU=UU: a.e(f"v_perm_b32 v{UU+1}, v{QM+1}, v{c['ONEF']}, v{c['SQL']}"))
            V(lambda UU=UU: a.e(f"v_perm_b32 v{UU+0}, v{QM+1}, v{c['ONEF']}, v{c['SQH']}"))
            for e in range(4): V(lambda e=e, TT=TT: a.e(f"v_mul_f32 v{TT+e}, v{c['DF']}, v{TT+e}"))
            for e in range(4): V(lambda e=e, GG=GG: a.e(f"v_perm_b32 v{GG+e}, v{GG+e}, v{GG+e}, v{c['SG']}"))
            for e in range(4): V(lambda e=e, TT=TT: a.e(f"v_cvt_pk_bf16_f32 v{TT+e}, 0, v{TT+e}"))
    def q_fin_post(P):
        DD = EP + 28
        def stage(fn):
            for k, t in enumerate(P):
                TT, UU, GG = regs_fin(k); ac = accof[t]
                for e in range(4): V(lambda e=e, ac=ac, TT=TT, UU=UU, GG=GG: fn(e, ac, TT, UU, GG))
        stage(lambda e, ac, TT, UU, GG: a.e(f"v_cvt_pk_bf16_f32 v{ac+e}, 0, v{ac+e}"))
        stage(lambda e, ac, TT, UU, GG: a.e(f"v_add_f32 v{ac+e}, v{ac+e}, v{TT+e}"))
        stage(lambda e, ac, TT, UU, GG: a.e(f"v_cvt_pk_bf16_f32 v{ac+e}, 0, v{ac+e}"))
        stage(lambda e, ac, TT, UU, GG: a.e(f"v_mul_f32 v{ac+e}, v{ac+e}, v{UU+e}"))
        stage(lambda e, ac, TT, UU, GG: a.e(f"v_cvt_pk_bf16_f32 v{ac+e}, 0, v{ac+e}"))
        stage(lambda e, ac, TT, UU, GG: a.e(f"v_mul_f32 v{ac+e}, v{ac+e}, v{GG+e}"))
        for k, t in enumerate(P):
            ac = accof[t]
            V(lambda ac=ac, k=k: a.e(f"v_cvt_pk_bf16_f32 v{DD+2*k}, v{ac+0}, v{ac+1}"))
            V(lambda ac=ac, k=k: a.e(f"v_cvt_pk_bf16_f32 v{DD+2*k+1}, v{ac+2}, v{ac+3}"))
        for k, t in enumerate(P):
            X(lambda t=t, k=k: a.e(f"ds_write_b64 v{c['vGW']}, v[{DD+2*k}:{DD+2*k+1}] offset:{512*t}"))
    def q_combine(P):
        tkc = {}
        for k, t in enumerate(P):
            CM = [EP + 4 * k + i for i in range(4)]
            for cc2 in range(4):
                def rd(cc2=cc2, t=t, CM=CM): tkc[t] = a.e(f"ds_read_u16_d16_hi v{CM[cc2]}, v{c['vCMB']} offset:{4096*cc2+512*t}")
                X(rd)
        side.append(("gap", G3))
        for k, t in enumerate(P):
            CM = [EP + 4 * k + i for i in range(4)]
            X(lambda t=t: a.wait_ds(tkc[t]))
            V(lambda CM=CM: a.e(f"v_add_f32 v{CM[0]}, v{CM[0]}, v{CM[1]}"))
            V(lambda CM=CM: a.e(f"v_add_f32 v{CM[2]}, v{CM[2]}, v{CM[3]}"))
            X(lambda t=t: a.e(f"s_mov_b32 s77, {t*262144}"))
            V(lambda CM=CM: a.e(f"v_cvt_pk_bf16_f32 v{CM[1]}, v{CM[0]}, v{CM[2]}"))
            if not c.get("nostore"): X(lambda CM=CM: a.e(f"buffer_store_dword v{CM[1]}, v{c['vOUT']}, s[64:67], s77 offen"))
    if h == 1:
        for k in range(n):
            if k >= 2: q_combine(passes[k - 2])
            emit_pass(k)
            flush_side()
            tw = None
            for t in passes[k]:
                tw = a.e(f"ds_write_b128 v{c['vPX']}, v[{accof[t]}:{accof[t]+3}] offset:{1024*t}")
            if k + 1 < n: prefetch(pend[k], 10**9)
            a.wait_ds(tw)
            barrier()
        if n >= 2:
            q_combine(passes[n - 2]); flush_side()
        barrier()
        a.stamp(14)
        q_combine(passes[n - 1]); flush_side()
    else:
        barrier_only = True
        prefetch(0, 10**9)
        barrier()
        for k in range(n):
            itok = {}
            for t in passes[k]:
                itok[t] = a.e(f"ds_read_b128 v[{accof[t]}:{accof[t]+3}], v{c['vPX']} offset:{1024*t}")
            q_fin_pre(passes[k])
            emit_pass(k, init_tok=itok)
            flush_side()
            if k + 1 < n: prefetch(pend[k], 10**9)
            q_fin_post(passes[k])
            flush_side()
            a.wait_ds(a.ds_issued - 1)
            barrier()
        a.stamp(14)
    if getattr(a, "stamps", False): a.wait_vm_all()
    a.stamp(15)
    if c.get("bstamp"):
        a.e("s_waitcnt lgkmcnt(0)")
        for i in range(bcount[0]): a.e(f"s_mov_b32 s{81+i}, s{16+2*i}")
    a.dump_stamps(16, 52, 16 << 20, wave="s3")

def build(cfg):
    a = Asm()
    a.stamps = cfg.get("stamps", False)
    a.stamp_sel = cfg.get("stamp_sel", None)
    hdr = open("cdna_kernels/" + NAME + ".s.ref").read().split("\n")
    head = [l for l in hdr if l.startswith(";") and "@launch" not in l and "Override launch" not in l and "grid=ceil" not in l]
    a.raw("\n".join(head[:21]))
    a.raw(f"; @launch grid=(256,1,1) block=(512,1,1) lds={LDS_TOTAL}")
    a.raw('.amdgcn_target "amdgcn-amd-amdhsa--gfx950"\n.text')
    kernel(a, cfg)
    a.raw(f""".section .rodata,"a"
.p2align 6
.amdhsa_kernel {KN}
  .amdhsa_next_free_vgpr 256
  .amdhsa_next_free_sgpr 102
  .amdhsa_accum_offset 128
  .amdhsa_group_segment_fixed_size 0
  .amdhsa_kernarg_size 152
  .amdhsa_user_sgpr_count 2
  .amdhsa_user_sgpr_kernarg_segment_ptr 1
  .amdhsa_system_sgpr_workgroup_id_x 1
.end_amdhsa_kernel""")
    return a.finalize()

DEFAULT = dict(passes=[[0], [1, 2], [3, 4], [5, 6], [7]], NB=8, LOOK=14, RATE=2)
if __name__ == "__main__":
    out = sys.argv[1] if len(sys.argv) > 1 else "cdna_kernels/" + NAME + ".s"
    cfg = dict(DEFAULT)
    for arg in sys.argv[2:]:
        if arg == "stamps": cfg["stamps"] = True
        elif "=" in arg:
            k, v = arg.split("=", 1); cfg[k] = eval(v)
    open(out, "w").write(build(cfg))
    print("wrote", out)
```

```python
import sys, struct
from dsl import Asm

NAME = "gated_mix__ssm_conv_h3__ssm_conv_s4__prompt"
KN = NAME + "_kernel"
LOG2E = 0x3fb8aa3b
WS_XQ = 0
WS_XKV = 2 << 20
WS_X2 = 4 << 20
WS_GP = 8 << 20
WS_GF1 = (8 << 20) + 65536
WS_GF2 = (8 << 20) + 131072
WS_LF = (8 << 20) + 196608
WS_EP = (8 << 20) + 262144
WS_USED = (8 << 20) + 262144 + 4096
FLAGC = 0x5a5a5a5a

KT = 0
QT = KT + 72 * 128
KVT = QT + 8192
SKT = KVT + 8192
PAR = SKT + 512
KC0 = PAR + 3072
KCS = 8320
F0 = KC0 + 4 * KCS
FSZ = 6144
TAB0 = F0 + 2 * FSZ
ENT = 544
TABSZ = 72 * ENT
TABEND = TAB0 + 2 * TABSZ
XRS = 4608
XR0 = TAB0
GM = XR0 + 4 * XRS
PX = GM + 8192
GAB = PX + 32768
assert GAB + 16384 <= TABEND
LDS_TOTAL = TABEND

def fbits(x): return struct.unpack("<I", struct.pack("<f", float(x)))[0]

def cmul(a, dst, w, z, tmp):
    a.e(f"v_pk_mul_f32 v[{tmp}:{tmp+1}], v[{w}:{w+1}], v[{z}:{z+1}] op_sel:[0,0] op_sel_hi:[1,0]")
    a.e(f"v_pk_fma_f32 v[{dst}:{dst+1}], v[{w}:{w+1}], v[{z}:{z+1}], v[{tmp}:{tmp+1}] op_sel:[1,1,0] op_sel_hi:[0,1,1] neg_lo:[1,0,0]")

def cpow(a, dst, rho, phi, m, t0, t1):
    a.e(f"v_mul_f32 v{t0}, 0x{fbits(m):08x}, v{rho}")
    a.e(f"v_mul_f32 v{t1}, 0x{fbits(m):08x}, v{phi}")
    a.e(f"v_exp_f32 v{t0}, v{t0}")
    a.e(f"v_fract_f32 v{t1}, v{t1}")
    a.e(f"v_cos_f32 v{dst}, v{t1}")
    a.e(f"v_sin_f32 v{dst+1}, v{t1}")
    a.e(f"v_mul_f32 v{dst}, v{t0}, v{dst}")
    a.e(f"v_mul_f32 v{dst+1}, v{t0}, v{dst+1}")

def kernel(a, cfg):
    passes, NB, LOOK, RATE = cfg["passes"], cfg["NB"], cfg["LOOK"], cfg["RATE"]
    GLD, EPL, RES = PAR, PAR + 64, PAR + 128
    a.raw(f".globl {KN}\n.p2align 8\n.type {KN},@function\n{KN}:")
    a.e("s_cmp_ge_u32 s2, 256")
    a.e("s_cbranch_scc1 L_END")
    a.stamp(0)
    a.e("s_load_dwordx16 s[16:31], s[0:1], 0")
    a.e("s_load_dwordx16 s[32:47], s[0:1], 64")
    a.e("s_load_dwordx4 s[48:51], s[0:1], 128")
    a.e("s_load_dwordx2 s[52:53], s[0:1], 144")
    a.e("v_lshrrev_b32 v1, 6, v0")
    a.e("v_and_b32 v2, 63, v0")
    a.e("v_readfirstlane_b32 s3, v1")
    a.e("s_and_b32 s4, s2, 7")
    a.e("s_lshr_b32 s5, s2, 3")
    a.e("s_lshl_b32 s10, s4, 6")
    a.e("s_lshl_b32 s11, s5, 1")
    a.e("s_add_u32 s10, s10, s11")
    MQ = 96
    a.e(f"s_and_b32 s{MQ}, s3, 3")
    a.e("s_lshr_b32 s7, s3, 2")
    a.e(f"s_xor_b32 s6, s{MQ}, s7")
    a.e("s_and_b32 s8, s6, 1")
    a.e("s_lshr_b32 s9, s6, 1")
    a.e("v_lshlrev_b32 v69, 4, v2")
    a.e("s_lshl_b32 s11, s5, 16")
    a.e("s_lshl_b32 s12, s4, 7")
    a.e("s_add_u32 s11, s11, s12")
    a.e("s_getreg_b32 s97, hwreg(HW_REG_XCC_ID, 0, 4)")
    a.e("s_cmp_eq_u32 s7, 0")
    a.e("s_cbranch_scc1 L_KISSUE")
    a.e("v_lshrrev_b32 v67, 3, v2")
    a.e("v_and_b32 v68, 7, v2")
    a.e("v_lshlrev_b32 v5, 10, v67")
    a.e("v_lshl_add_u32 v5, v68, 4, v5")
    a.e(f"s_lshl_b32 s12, s{MQ}, 14")
    a.e("s_add_u32 s12, s12, s11")
    a.e("v_add_u32 v5, s12, v5")
    a.e("v_add_u32 v7, 8192, v5")
    a.e("v_subrev_u32 v6, 8192, v5")
    a.e("v_bfe_u32 v70, v0, 3, 5")
    a.e("v_and_b32 v71, 7, v0")
    a.e("v_lshlrev_b32 v72, 11, v70")
    a.e("v_lshl_add_u32 v72, v71, 4, v72")
    a.e("v_add_u32 v72, s11, v72")
    a.e("s_lshl_b32 s14, s4, 9")
    a.e("v_add_u32 v73, s14, v69")
    a.e(f"s_lshl_b32 s13, s{MQ}, 11")
    a.e("s_waitcnt lgkmcnt(0)")
    a.e("s_mov_b32 s56, s18"); a.e("s_and_b32 s57, s19, 0xffff"); a.e("s_mov_b32 s58, 0x200000"); a.e("s_mov_b32 s59, 0x20000")
    VR = 120
    a.e("s_cmp_eq_u32 s3, 4")
    a.e("s_cbranch_scc0 L_X1")
    a.e(f"s_mov_b32 m0, {KT}")
    a.e("s_nop 0")
    a.e("buffer_load_dwordx4 v6, s[56:59], 0 offen lds")
    a.e("s_branch L_X2")
    a.label("L_X1")
    a.e("s_cmp_eq_u32 s3, 5")
    a.e("s_cbranch_scc0 L_X2")
    a.e("s_mov_b32 exec_hi, 0")
    a.e(f"s_mov_b32 m0, {SKT}")
    a.e("s_nop 0")
    a.e("global_load_lds_dwordx4 v73, s[22:23]")
    a.e("s_mov_b32 exec_hi, -1")
    a.label("L_X2")
    a.e(f"s_add_u32 m0, s13, {KT + 1024}")
    a.e("s_nop 0")
    a.e("buffer_load_dwordx4 v5, s[56:59], 0 offen lds")
    a.e(f"s_add_u32 m0, s13, {KT + 2048}")
    a.e("s_nop 0")
    a.e("buffer_load_dwordx4 v7, s[56:59], 0 offen lds")
    a.e(f"global_load_dwordx4 v[{VR}:{VR+3}], v72, s[20:21]")
    a.e(f"global_load_dwordx4 v[{VR+4}:{VR+7}], v72, s[20:21] offset:1024")
    a.e(f"s_add_u32 m0, s13, {QT}")
    a.e("s_nop 0")
    a.e("global_load_lds_dwordx4 v5, s[16:17]")
    a.e(f"s_add_u32 m0, s13, {QT + 1024}")
    a.e("s_nop 0")
    a.e("global_load_lds_dwordx4 v7, s[16:17]")
    a.e("s_branch L_COMMON")
    a.label("L_KISSUE")
    GQ0, GQ1, GW = 100, 104, 108
    EPV = 30
    a.e("s_lshl_b32 s15, s10, 8")
    a.e("v_add_u32 v72, s15, v69")
    a.e("s_lshl_b32 s12, s2, 3")
    a.e(f"s_lshl_b32 s13, s{MQ}, 1")
    a.e("s_add_u32 s12, s12, s13")
    a.e("s_lshl_b32 s13, s12, 10")
    a.e("v_add_u32 v73, s13, v69")
    a.e("s_lshl_b32 s79, s10, 1")
    a.e("s_waitcnt lgkmcnt(0)")
    a.e("s_load_dword s76, s[42:43], s79")
    a.e("s_mov_b32 exec_hi, 0")
    for wv, arrs in enumerate(((0, 1), (2, 3), (4,), (5,))):
        a.e(f"s_cmp_eq_u32 s{MQ}, {wv}")
        a.e(f"s_cbranch_scc0 L_KP{wv}")
        for ar in arrs:
            a.e(f"s_mov_b32 m0, {PAR + 512*ar}")
            a.e("s_nop 0")
            a.e(f"global_load_lds_dwordx4 v72, s[{30+2*ar}:{31+2*ar}]")
        a.e("s_branch L_KP4")
        a.label(f"L_KP{wv}")
    a.label("L_KP4")
    a.e("s_mov_b64 exec, -1")
    a.e(f"global_load_dwordx4 v[{GQ0}:{GQ0+3}], v73, s[16:17]")
    a.e(f"global_load_dwordx4 v[{GQ1}:{GQ1+3}], v73, s[16:17] offset:1024")
    a.e(f"global_load_dwordx4 v[{GW}:{GW+3}], v69, s[46:47]")
    a.e("s_cmp_lt_u32 s3, 2")
    a.e("s_cbranch_scc1 L_COMMON")
    a.e("s_cmp_eq_u32 s3, 3")
    a.e("s_cbranch_scc1 L_KX7")
    a.e("s_getpc_b64 s[74:75]")
    a.label("L_PC")
    a.raw("  .set CODE_REM, L_CODE_END - L_PC")
    NPF = cfg.get("NPF", 3)
    a.e("v_lshlrev_b32 v74, 7, v2")
    for i in range(NPF):
        a.e(f"v_add_u32 v75, {8192*i}, v74")
        a.e(f"v_cmp_gt_u32 vcc, CODE_REM, v75")
        a.e(f"v_cndmask_b32 v75, 0, v75, vcc")
        a.e(f"global_load_dword v30, v75, s[74:75]")
    a.e("s_branch L_COMMON")
    a.label("L_KX7")
    a.e("v_subrev_u32 v74, 1, v2")
    a.e("v_lshlrev_b32 v74, 21, v74")
    a.e(f"v_mov_b32 v75, {WS_EP}")
    a.e("v_cmp_eq_u32 vcc, 0, v2")
    a.e("v_cndmask_b32 v74, v74, v75, vcc")
    a.e("s_mov_b64 exec, 7")
    a.e(f"global_load_dword v{EPV}, v74, s[52:53] sc1")
    a.e("s_mov_b64 exec, -1")
    a.label("L_COMMON")
    a.e("s_mov_b32 s60, s52"); a.e("s_and_b32 s61, s53, 0xffff"); a.e(f"s_mov_b32 s62, {WS_USED}"); a.e("s_mov_b32 s63, 0x20000")
    a.e("s_mov_b32 s64, s48"); a.e("s_and_b32 s65, s49, 0xffff"); a.e("s_mov_b32 s66, 0x200000"); a.e("s_mov_b32 s67, 0x20000")
    a.e("s_mov_b32 s68, s24"); a.e("s_and_b32 s69, s25, 0xffff"); a.e("s_mov_b32 s70, 0x200000"); a.e("s_mov_b32 s71, 0x20000")
    a.e("s_lshl_b32 s79, s10, 1")
    a.e("s_load_dword s76, s[42:43], s79")
    a.e("s_load_dword s100, s[26:27], s79")
    a.e("s_load_dword s101, s[44:45], s79")
    ONES, MLO, MHI = 21, 28, 27
    a.e(f"v_mov_b32 v{ONES}, 0x3f803f80")
    a.e(f"v_mov_b32 v{MLO}, 0xffff")
    a.e(f"v_mov_b32 v{MHI}, 0xffff0000")
    J, Q4 = 64, 65
    a.e(f"v_and_b32 v{J}, 15, v2")
    a.e(f"v_lshrrev_b32 v{Q4}, 4, v2")
    a.e("s_lshl_b32 s13, s10, 12")
    a.e("v_lshlrev_b32 v4, 4, v0")
    a.e("v_add_u32 v13, s13, v4")
    vB, vX, vQ, vG, vPX, vGW, vCMB, vOUT = 8, 9, 10, 11, 12, 14, 15, 16
    vA = [17, 18, 19, 20]
    SQL, SQH, ONEF, SG, DF = 22, 23, 24, 25, 26
    vXL = 3
    CPRE = cfg.get("CPRE", 8)
    def areg(cidx, rho): return 4 * (cidx * 4 + rho)
    def aloads():
        for cidx in range(CPRE):
            for rho in range(4):
                r = areg(cidx, rho); o = 128 * (cidx & 1) + 16 * rho; va = vA[cidx >> 1]
                a.e(f"ds_read2_b32 a[{r}:{r+1}], v{va} offset0:{o} offset1:{o+1}")
                a.e(f"ds_read2_b32 a[{r+2}:{r+3}], v{va} offset0:{o+2} offset1:{o+3}")
    a.e(f"s_mul_i32 s77, s6, {XRS}")
    a.e(f"s_add_u32 s77, s77, {XR0}")
    a.e("s_lshl_b32 s78, s7, 8")
    a.e("s_add_u32 s78, s78, s77")
    a.e("s_add_u32 s78, s78, 480")
    a.e(f"v_lshlrev_b32 v62, 5, v{J}")
    a.e(f"v_lshlrev_b32 v{vB}, 4, v{Q4}")
    a.e(f"v_sub_u32 v{vB}, v{vB}, v62")
    a.e(f"v_add_u32 v{vB}, s78, v{vB}")
    a.e(f"v_lshl_add_u32 v63, v{Q4}, 3, v62")
    a.e("s_add_u32 s78, s77, 504")
    a.e(f"v_sub_u32 v{vX}, s78, v63")
    vPAD = 29
    a.e("s_add_u32 s78, s77, 4096")
    a.e(f"v_lshlrev_b32 v{vPAD}, 3, v2")
    a.e(f"v_add_u32 v{vPAD}, s78, v{vPAD}")
    a.e("s_or_b32 s78, s6, 1")
    a.e(f"s_mul_i32 s78, s78, {XRS}")
    a.e(f"s_add_u32 s78, s78, {XR0 + 504}")
    a.e(f"v_sub_u32 v{vQ}, s78, v63")
    a.e(f"v_lshlrev_b32 v62, 1, v63")
    a.e(f"v_add_u32 v{vG}, {GM}, v62")
    a.e("s_lshl_b32 s78, s6, 13")
    a.e(f"s_add_u32 s78, s78, {PX}")
    a.e(f"v_add_u32 v{vPX}, s78, v69")
    a.e("s_lshl_b32 s78, s6, 12")
    a.e(f"s_add_u32 s78, s78, {GAB}")
    a.e(f"v_add_u32 v{vGW}, s78, v63")
    a.e("s_lshl_b32 s78, s6, 6")
    a.e(f"v_add_u32 v62, s78, v2")
    a.e(f"v_lshlrev_b32 v{vCMB}, 1, v62")
    a.e(f"v_add_u32 v{vCMB}, {GAB}, v{vCMB}")
    a.e(f"v_lshlrev_b32 v{vOUT}, 10, v62")
    a.e("s_lshl_b32 s78, s10, 1")
    a.e(f"v_add_u32 v{vOUT}, s78, v{vOUT}")
    a.e("s_lshl_b32 s78, s7, 7")
    a.e("s_sub_u32 s78, s78, 15")
    a.e(f"v_lshl_add_u32 v62, v{Q4}, 3, v{J}")
    a.e("v_add_u32 v62, s78, v62")
    a.e("v_lshlrev_b32 v62, 1, v62")
    a.e(f"s_mul_i32 s78, s6, {KCS}")
    a.e(f"s_add_u32 s78, s78, {KC0 + 32}")
    a.e(f"v_and_b32 v63, 1, v{J}")
    a.e(f"v_cmp_eq_u32 vcc, 1, v63")
    a.e(f"v_mov_b32 v63, {4160 - 2}")
    a.e(f"v_cndmask_b32 v63, v63, 0, vcc")
    a.e(f"v_add3_u32 v{vA[0]}, v62, v63, s78")
    for i in range(1, 4): a.e(f"v_add_u32 v{vA[i]}, {1024*i}, v{vA[0]}")
    a.e("v_lshrrev_b32 v62, 8, v0")
    a.e(f"v_mul_u32_u24 v62, {2*XRS}, v62")
    a.e("v_and_b32 v63, 255, v0")
    a.e(f"v_lshl_add_u32 v{vXL}, v63, 4, v62")
    a.e(f"v_add_u32 v{vXL}, {XR0}, v{vXL}")
    a.e(f"v_mov_b32 v{ONEF}, 1.0")
    a.e("s_cmp_eq_u32 s8, 0")
    a.e("s_mov_b32 s78, 0x03020100")
    a.e("s_cselect_b32 s77, 0x05040c0c, s78");  a.e(f"v_mov_b32 v{SQL}, s77")
    a.e("s_cselect_b32 s77, 0x07060c0c, s78");  a.e(f"v_mov_b32 v{SQH}, s77")
    a.e("s_mov_b32 s78, 0x07060c0c")
    a.e("s_cselect_b32 s77, 0x05040c0c, s78");  a.e(f"v_mov_b32 v{SG}, s77")
    a.e("v_mov_b32 v5, 0") if False else None
    a.e("s_cmp_eq_u32 s7, 0")
    a.e("s_cbranch_scc1 L_KPATH")
    vRC, vSKA, vTR, vXS = 31, 1, 5, 6
    a.e("v_bfe_u32 v70, v0, 3, 5")
    a.e("v_and_b32 v71, 7, v0")
    a.e(f"v_lshlrev_b32 v{vRC}, 8, v70")
    a.e(f"v_lshl_add_u32 v{vRC}, v71, 4, v{vRC}")
    a.e(f"v_lshlrev_b32 v{vSKA}, 6, v71")
    a.e(f"v_lshrrev_b32 v72, 2, v{J}")
    a.e(f"v_and_b32 v73, 3, v{J}")
    a.e(f"v_lshlrev_b32 v75, 3, v{Q4}")
    a.e("v_add_u32 v76, 3, v75")
    a.e("v_sub_u32 v76, v76, v72")
    a.e("v_lshlrev_b32 v76, 7, v76")
    a.e("v_lshl_add_u32 v76, v73, 3, v76")
    a.e(f"s_lshl_b32 s77, s{MQ}, 5")
    a.e(f"v_add_u32 v{vTR}, s77, v76")
    a.e("s_lshl_b32 s77, s4, 18")
    a.e(f"s_lshl_b32 s78, s{MQ}, 16")
    a.e("s_add_u32 s77, s77, s78")
    a.e("s_add_u32 s77, s77, 4016")
    a.e("s_lshl_b32 s78, s5, 7")
    a.e("s_sub_u32 s77, s77, s78")
    a.e(f"v_lshlrev_b32 v{vXS}, 12, v{J}")
    a.e("v_lshlrev_b32 v76, 1, v75")
    a.e(f"v_sub_u32 v{vXS}, v{vXS}, v76")
    a.e(f"v_add_u32 v{vXS}, s77, v{vXS}")
    a.e("v_and_b32 v32, 127, v0")
    a.e("v_bfe_u32 v33, v0, 7, 1")
    a.e("v_lshlrev_b32 v34, 8, v33")
    a.e("v_lshl_add_u32 v34, v32, 1, v34")
    TA = 35
    a.e(f"v_mul_u32_u24 v{TA}, {TABSZ}, v33")
    a.e(f"v_lshl_add_u32 v{TA}, v32, 2, v{TA}")
    a.e(f"v_add_u32 v{TA}, {TAB0}, v{TA}")
    a.e("s_waitcnt lgkmcnt(0)")
    a.stamp(1)
    a.e("s_barrier")
    PR = 66
    for i in range(6): tp = a.e(f"ds_read_u16_d16_hi v{PR+i}, v34 offset:{PAR + 512*i}")
    Are, Aim, Bre, Bim, Cre, Cim = [PR + i for i in range(6)]
    DT, RHO, PHI = 72, 73, 74
    C = 76
    a.e("v_bfe_u32 v75, v0, 7, 1")
    a.e("v_lshlrev_b32 v75, 4, v75")
    a.e(f"v_lshrrev_b32 v{DT}, v75, s76") if False else None
    a.e(f"v_mov_b32 v{DT}, s76")
    a.e(f"v_lshrrev_b32 v{DT}, v75, v{DT}")
    a.e(f"v_lshlrev_b32 v{DT}, 16, v{DT}")
    a.e(f"v_mul_f32 v{DT}, 0x{LOG2E:08x}, v{DT}")
    a.e(f"v_exp_f32 v{DT}, v{DT}")
    a.e(f"v_cvt_pk_bf16_f32 v{DT}, 0, v{DT}")
    a.wait_ds(tp)
    a.e(f"v_mul_f32 v{RHO}, v{DT}, v{Are}")
    a.e(f"v_mul_f32 v{PHI}, v{DT}, v{Aim}")
    a.e(f"v_mul_f32 v{RHO}, 0x{LOG2E:08x}, v{RHO}")
    a.e(f"v_mul_f32 v{PHI}, 0.15915494, v{PHI}")
    a.e(f"v_mul_f32 v{Bre}, v{DT}, v{Bre}")
    a.e(f"v_mul_f32 v{Bim}, v{DT}, v{Bim}")
    a.e(f"v_mul_f32 v{C}, v{Cre}, v{Bre}")
    a.e(f"v_mul_f32 v{C+1}, v{Cre}, v{Bim}")
    a.e(f"v_fma_f32 v{C}, -v{Cim}, v{Bim}, v{C}")
    a.e(f"v_fma_f32 v{C+1}, v{Cim}, v{Bre}, v{C+1}")
    Z4, Z128, S3, Z8, W = 80, 84, 86, 88, 90
    TMP = [100, 102, 104, 106, 108, 110]
    PT = [112, 113, 114, 115]
    pw = [(Z4, 4), (Z128, 128), (S3, 1024)]
    for i, (dst, m) in enumerate(pw):
        a.e(f"v_mul_f32 v{TMP[0]+i}, 0x{fbits(m):08x}, v{RHO}")
        a.e(f"v_mul_f32 v{TMP[3]+i}, 0x{fbits(m):08x}, v{PHI}")
    for i, (dst, m) in enumerate(pw):
        a.e(f"v_exp_f32 v{TMP[0]+i}, v{TMP[0]+i}")
        a.e(f"v_fract_f32 v{TMP[3]+i}, v{TMP[3]+i}")
    for i, (dst, m) in enumerate(pw):
        a.e(f"v_cos_f32 v{dst}, v{TMP[3]+i}")
        a.e(f"v_sin_f32 v{dst+1}, v{TMP[3]+i}")
    for i, (dst, m) in enumerate(pw):
        a.e(f"v_mul_f32 v{dst}, v{TMP[0]+i}, v{dst}")
        a.e(f"v_mul_f32 v{dst+1}, v{TMP[0]+i}, v{dst+1}")
    pti2 = [0]
    def putx(entry, pair, neg):
        tmp = PT[pti2[0] % 4]; pti2[0] += 1
        a.e(f"v_cvt_pk_bf16_f32 v{tmp}, v{pair}, {'-' if neg else ''}v{pair+1}")
        a.e(f"ds_write_b32 v{TA}, v{tmp} offset:{entry*ENT}")
    cmul(a, Z8, Z4, Z4, TMP[0])
    cmul(a, S3, S3, C, TMP[1])
    W1 = 92
    a.e(f"v_mov_b32 v{W}, 1.0"); a.e(f"v_mov_b32 v{W+1}, 0")
    a.e(f"v_mov_b32 v{W1}, v{Z4}"); a.e(f"v_mov_b32 v{W1+1}, v{Z4+1}")
    putx(0, W, False); putx(1, W1, False); putx(24 + 32, S3, True)
    for st in range(1, 16):
        cmul(a, W, W, Z8, TMP[0])
        if st <= 7: cmul(a, W1, W1, Z8, TMP[2])
        if st <= 8: cmul(a, S3, S3, Z128, TMP[1])
        putx(2 * st if st < 8 else 16 + (st - 8), W, False)
        if st <= 7: putx(2 * st + 1, W1, False)
        if st <= 8: putx(24 + 32 + st, S3, True)
    a.e("s_waitcnt vmcnt(2) lgkmcnt(0)")
    a.ds_done = a.ds_issued
    a.stamp(2)
    a.e("s_barrier")
    KR, SK, MK, PA, PB, XX = 32, 52, 68, 100, 108, 52
    for i in range(5): a.e(f"ds_read_b128 v[{KR+4*i}:{KR+4*i+3}], v{vRC} offset:{KT + (5+i)*128}")
    for i in range(4): tsk = a.e(f"ds_read_b128 v[{SK+4*i}:{SK+4*i+3}], v{vSKA} offset:{SKT + 16*i}")
    a.e("s_cmp_eq_u32 s8, 0")
    a.e("s_cselect_b32 s77, s100, s101")
    a.e("s_lshl_b32 s78, s9, 4")
    a.e("s_lshr_b32 s77, s77, s78")
    a.e("s_lshl_b32 s77, s77, 16")
    a.e(f"v_mov_b32 v{DF}, s77")
    a.wait_ds(tsk)
    chains = [(m, ci) for m in range(4) for ci in range(2)]
    for tau in range(4):
        for idx, (m, ci) in enumerate(chains):
            cch = 2 * m + ci; src = SK + 2 * cch + (tau >> 1); dst = MK + 8 * tau + idx
            if ci == 0:
                if tau & 1: a.e(f"v_lshrrev_b32 v{dst}, 16, v{src}")
                else: a.e(f"v_and_b32 v{dst}, v{MLO}, v{src}")
            else:
                if tau & 1: a.e(f"v_and_b32 v{dst}, v{MHI}, v{src}")
                else: a.e(f"v_lshlrev_b32 v{dst}, 16, v{src}")
    for row in range(2):
        def prod(dst, tau):
            for idx, (m, ci) in enumerate(chains):
                a.e(f"v_dot2_f32_bf16 v{dst+idx}, v{KR+4*(3-tau+row)+m}, v{MK+8*tau+idx}, 0")
        prod(PA, 3)
        for tau in (2, 1, 0):
            prod(PB, tau)
            for idx in range(8): a.e(f"v_cvt_pk_bf16_f32 v{XX+idx}, v{PA+idx}, v{PB+idx}")
            for idx in range(8): a.e(f"v_dot2_f32_bf16 v{PA+idx}, v{XX+idx}, v{ONES}, 0")
        Vr = VR + 4 * row
        for m in range(4):
            a.e(f"v_and_b32 v{XX+2*m}, v{MLO}, v{Vr+m}")
            a.e(f"v_and_b32 v{XX+2*m+1}, v{MHI}, v{Vr+m}")
        for m in range(4): a.e(f"v_cvt_pk_bf16_f32 v{PB+m}, v{PA+2*m}, v{PA+2*m+1}")
        for m in range(4):
            a.e(f"v_dot2_f32_bf16 v{PA+2*m}, v{PB+m}, v{XX+2*m}, 0")
            a.e(f"v_dot2_f32_bf16 v{PA+2*m+1}, v{PB+m}, v{XX+2*m+1}, 0")
        KVR = 116
        for m in range(4): a.e(f"v_cvt_pk_bf16_f32 v{KVR+m}, v{PA+2*m}, v{PA+2*m+1}")
        a.e(f"ds_write_b128 v{vRC}, v[{KVR}:{KVR+3}] offset:{KVT + 128*row}")
    a.e("s_waitcnt vmcnt(0) lgkmcnt(0)")
    a.ds_done = a.ds_issued
    a.stamp(3)
    a.e("s_barrier")
    XO = 32
    def tr_and_store(sc, base_q, base_kv):
        toks = []
        for ai, T in enumerate((KVT, QT)):
            for blk in range(2):
                r = XO + 8 * ai + 4 * blk
                a.e(f"ds_read_b64_tr_b16 v[{r}:{r+1}], v{vTR} offset:{T + 4096*blk + 512}")
                toks.append(a.e(f"ds_read_b64_tr_b16 v[{r+2}:{r+3}], v{vTR} offset:{T + 4096*blk}"))
        a.e(f"s_mov_b32 s77, {base_kv}")
        a.e(f"s_mov_b32 s78, {base_q}")
        for ai in range(2):
            for blk in range(2):
                r = XO + 8 * ai + 4 * blk
                a.wait_ds(toks[2 * ai + blk])
                a.e(f"buffer_store_dwordx4 v[{r}:{r+3}], v{vXS}, s[60:63], s{77+ai} offen offset:{64*(1-blk)}{sc}")
    tr_and_store("", WS_XQ, WS_XKV)
    a.e("s_cmp_eq_u32 s8, 0")
    a.e("s_cbranch_scc0 L_XNOAL")
    aloads()
    a.label("L_XNOAL")
    a.e("s_waitcnt vmcnt(0)")
    a.stamp(4)
    a.e("s_barrier")
    a.e("s_branch L_JOIN")
    a.label("L_KPATH")
    a.e("v_mov_b32 v5, 0"); a.e("v_mov_b32 v6, -1")
    a.e("v_and_b32 v32, 127, v0")
    a.e("v_bfe_u32 v33, v0, 7, 1")
    a.e("v_lshlrev_b32 v34, 8, v33")
    a.e("v_lshl_add_u32 v34, v32, 1, v34")
    TA = 35
    a.e(f"v_mul_u32_u24 v{TA}, {TABSZ}, v33")
    a.e(f"v_lshl_add_u32 v{TA}, v32, 2, v{TA}")
    a.e(f"v_add_u32 v{TA}, {TAB0}, v{TA}")
    XA = 36
    a.e("v_and_b32 v45, 255, v0")
    a.e("v_lshlrev_b32 v45, 3, v45")
    for k in range(5):
        a.e(f"v_add_u32 v46, {2*k}, v45")
        a.e(f"v_add_u32 v47, {2*k+1}, v45")
        a.e("v_cvt_f32_u32 v46, v46")
        a.e("v_cvt_f32_u32 v47, v47")
        a.e("v_cvt_pk_bf16_f32 v46, v46, v47")
        a.e(f"v_and_b32 v47, v{MHI}, v46")
        a.e("v_lshlrev_b32 v46, 16, v46")
        a.e("v_cvt_u32_f32 v46, v46")
        a.e(f"v_lshlrev_b32 v{XA+2*k}, 1, v46")
        a.e(f"v_add_u32 v{XA+2*k}, {F0}, v{XA+2*k}")
        if k < 4:
            a.e("v_cvt_u32_f32 v47, v47")
            a.e(f"v_lshlrev_b32 v{XA+2*k+1}, 1, v47")
            a.e(f"v_add_u32 v{XA+2*k+1}, {F0}, v{XA+2*k+1}")
    vKW = 31
    a.e(f"v_lshlrev_b32 v{vKW}, 1, v45")
    a.e(f"v_add_u32 v{vKW}, {KC0+32}, v{vKW}")
    vSS = 46
    a.e(f"v_lshlrev_b32 v{vSS}, 1, v45")
    a.e(f"v_add_u32 v{vSS}, s13, v{vSS}")
    a.e("s_cmp_lt_u32 s3, 2")
    a.e("s_cbranch_scc1 L_KW1")
    a.e("s_cmp_eq_u32 s3, 3")
    a.e("s_cbranch_scc1 L_KW3")
    a.e(f"s_waitcnt vmcnt({3+NPF}) lgkmcnt(0)")
    a.e("s_branch L_KW2")
    a.label("L_KW3")
    a.e("s_waitcnt vmcnt(4) lgkmcnt(0)")
    a.e("s_branch L_KW2")
    a.label("L_KW1")
    a.e("s_waitcnt vmcnt(3) lgkmcnt(0)")
    a.label("L_KW2")
    a.stamp(1)
    a.e("s_barrier")
    T0a, T1a, T0b, T1b = 48, 52, 56, 60
    a.e(f"buffer_load_dwordx4 v[{T0a}:{T0a+3}], v{vSS}, s[68:71], 0 offen")
    a.e(f"buffer_load_dwordx4 v[{T1a}:{T1a+3}], v{vSS}, s[68:71], 0 offen offset:4")
    a.e("s_mov_b32 s77, 4096")
    a.e(f"buffer_load_dwordx4 v[{T0b}:{T0b+3}], v{vSS}, s[68:71], s77 offen")
    a.e(f"buffer_load_dwordx4 v[{T1b}:{T1b+3}], v{vSS}, s[68:71], s77 offen offset:4")
    PR = 66
    for i in range(6): tp = a.e(f"ds_read_u16_d16_hi v{PR+i}, v34 offset:{PAR + 512*i}")
    Are, Aim, Bre, Bim, Cre, Cim = [PR + i for i in range(6)]
    DT, RHO, PHI = 72, 73, 74
    C = 76
    a.e("v_bfe_u32 v75, v0, 7, 1")
    a.e("v_lshlrev_b32 v75, 4, v75")
    a.e(f"v_lshrrev_b32 v{DT}, v75, s76") if False else None
    a.e(f"v_mov_b32 v{DT}, s76")
    a.e(f"v_lshrrev_b32 v{DT}, v75, v{DT}")
    a.e(f"v_lshlrev_b32 v{DT}, 16, v{DT}")
    a.e(f"v_mul_f32 v{DT}, 0x{LOG2E:08x}, v{DT}")
    a.e(f"v_exp_f32 v{DT}, v{DT}")
    a.e(f"v_cvt_pk_bf16_f32 v{DT}, 0, v{DT}")
    a.wait_ds(tp)
    a.e(f"v_mul_f32 v{RHO}, v{DT}, v{Are}")
    a.e(f"v_mul_f32 v{PHI}, v{DT}, v{Aim}")
    a.e(f"v_mul_f32 v{RHO}, 0x{LOG2E:08x}, v{RHO}")
    a.e(f"v_mul_f32 v{PHI}, 0.15915494, v{PHI}")
    a.e(f"v_mul_f32 v{Bre}, v{DT}, v{Bre}")
    a.e(f"v_mul_f32 v{Bim}, v{DT}, v{Bim}")
    a.e(f"v_mul_f32 v{C}, v{Cre}, v{Bre}")
    a.e(f"v_mul_f32 v{C+1}, v{Cre}, v{Bim}")
    a.e(f"v_fma_f32 v{C}, -v{Cim}, v{Bim}, v{C}")
    a.e(f"v_fma_f32 v{C+1}, v{Cim}, v{Bre}, v{C+1}")
    Z1, Z64 = 78, 82
    VV = [92, 94, 96, 98]
    TMP = [112, 114, 116, 118, 120, 122]
    PT = [124, 125, 126, 127]
    pw = [(Z1, 1), (Z64, 64)]
    for i, (dst, m) in enumerate(pw):
        a.e(f"v_mul_f32 v{TMP[0]+i}, 0x{fbits(m):08x}, v{RHO}")
        a.e(f"v_mul_f32 v{TMP[3]+i}, 0x{fbits(m):08x}, v{PHI}")
    for i, (dst, m) in enumerate(pw):
        a.e(f"v_exp_f32 v{TMP[0]+i}, v{TMP[0]+i}")
        a.e(f"v_fract_f32 v{TMP[3]+i}, v{TMP[3]+i}")
    for i, (dst, m) in enumerate(pw):
        a.e(f"v_cos_f32 v{dst}, v{TMP[3]+i}")
        a.e(f"v_sin_f32 v{dst+1}, v{TMP[3]+i}")
    for i, (dst, m) in enumerate(pw):
        a.e(f"v_mul_f32 v{dst}, v{TMP[0]+i}, v{dst}")
        a.e(f"v_mul_f32 v{dst+1}, v{TMP[0]+i}, v{dst+1}")
    pti = [0]
    def put(entry, pair, neg):
        tmp = PT[pti[0] % 4]; pti[0] += 1
        a.e(f"v_cvt_pk_bf16_f32 v{tmp}, v{pair}, {'-' if neg else ''}v{pair+1}")
        a.e(f"ds_write_b32 v{TA}, v{tmp} offset:{entry*ENT}")
    a.e(f"v_mov_b32 v{VV[0]}, v{C}"); a.e(f"v_mov_b32 v{VV[0]+1}, v{C+1}")
    cmul(a, VV[1], VV[0], Z1, TMP[2])
    cmul(a, VV[2], VV[1], Z1, TMP[2])
    cmul(a, VV[3], VV[2], Z1, TMP[2])
    for i in range(16):
        ps = [0, 1, 2, 3] if i < 4 else ([0, 2] if i < 8 else [0])
        if i > 0:
            for p in ps: cmul(a, VV[p], VV[p], Z64, TMP[2 + p])
        for p in ps:
            if i < 4: ent = 24 + 4 * i + p
            elif i < 8: ent = 24 + 16 + 2 * (i - 4) + p // 2
            else: ent = 24 + 16 + i
            put(ent, VV[p], True)
    a.e("s_waitcnt vmcnt(4)")
    T = 66
    for m in range(4):
        a.e(f"v_and_b32 v{T+2*m}, v{MLO}, v{GW+m}")
        a.e(f"v_and_b32 v{T+2*m+1}, v{MHI}, v{GW+m}")
    GA = [90, 91]
    for ri, GQ in enumerate((GQ0, GQ1)):
        U = 74 + 8 * ri
        for m in range(4):
            a.e(f"v_dot2_f32_bf16 v{U+2*m}, v{GQ+m}, v{T+2*m}, 0")
            a.e(f"v_dot2_f32_bf16 v{U+2*m+1}, v{GQ+m}, v{T+2*m+1}, 0")
    for ri in range(2):
        U = 74 + 8 * ri
        for m in range(4): a.e(f"v_cvt_pk_bf16_f32 v{92+4*ri+m}, v{U+2*m}, v{U+2*m+1}")
    for ri in range(2):
        U = 74 + 8 * ri
        for m in range(4):
            a.e(f"v_lshlrev_b32 v{U+2*m}, 16, v{92+4*ri+m}")
            a.e(f"v_and_b32 v{U+2*m+1}, v{MHI}, v{92+4*ri+m}")
    for ri in range(2):
        U = 74 + 8 * ri
        for m in range(4): a.e(f"v_add_f32 v{U+2*m}, v{U+2*m}, v{U+2*m+1}")
    for ri in range(2):
        U = 74 + 8 * ri
        a.e(f"v_add_f32 v{U}, v{U}, v{U+2}")
        a.e(f"v_add_f32 v{U+4}, v{U+4}, v{U+6}")
    for ri in range(2):
        U = 74 + 8 * ri
        a.e(f"v_add_f32 v{GA[ri]}, v{U}, v{U+4}")
    for sh in (1, 2, 4, 8):
        for ri in range(2): a.e(f"v_add_f32_dpp v{GA[ri]}, v{GA[ri]}, v{GA[ri]} row_shr:{sh} row_mask:0xf bank_mask:0xf bound_ctrl:0")
    for ri in range(2): a.e(f"v_add_f32_dpp v{GA[ri]}, v{GA[ri]}, v{GA[ri]} row_bcast:15 row_mask:0xa bank_mask:0xf")
    for ri in range(2): a.e(f"v_add_f32_dpp v{GA[ri]}, v{GA[ri]}, v{GA[ri]} row_bcast:31 row_mask:0xc bank_mask:0xf")
    for ri in range(2): a.e(f"v_cvt_pk_bf16_f32 v{GA[ri]}, 0, v{GA[ri]}")
    for ri in range(2): a.e(f"v_mul_f32 v{GA[ri]}, 0x{LOG2E ^ 0x80000000:08x}, v{GA[ri]}")
    for ri in range(2): a.e(f"v_exp_f32 v{GA[ri]}, v{GA[ri]}")
    for ri in range(2): a.e(f"v_add_f32 v{GA[ri]}, 1.0, v{GA[ri]}")
    for ri in range(2): a.e(f"v_rcp_f32 v{GA[ri]}, v{GA[ri]}")
    for ri in range(2): a.e(f"v_cvt_pk_bf16_f32 v{GA[ri]}, 0, v{GA[ri]}")
    for ri in range(2): a.e(f"v_sub_f32 v{92+ri}, 1.0, v{GA[ri]}")
    for ri in range(2): a.e(f"v_cvt_pk_bf16_f32 v{94+ri}, v{GA[ri]}, v{92+ri}")
    a.e("s_lshl_b32 s77, s12, 2")
    a.e(f"s_add_u32 s77, s77, {WS_GP}")
    a.e("v_mov_b32 v96, s77")
    a.e("s_mov_b32 exec_lo, 0")
    a.e("s_mov_b32 exec_hi, 0x80000000")
    a.e("buffer_store_dwordx2 v[94:95], v96, s[60:63], 0 offen sc1")
    a.e("s_mov_b64 exec, -1")
    a.wait_ds_all()
    a.stamp(2)
    a.e("s_barrier")
    if cfg.get("pretouch", True):
        a.e("s_cmp_eq_u32 s3, 1")
        a.e("s_cbranch_scc0 L_NOPT")
        a.e("s_lshl_b32 s77, s4, 18")
        a.e("s_add_u32 s77, s77, 3968")
        a.e("s_lshl_b32 s78, s5, 7")
        a.e("s_sub_u32 s77, s77, s78")
        a.e("v_lshlrev_b32 v66, 12, v2")
        a.e("v_add_u32 v66, s77, v66")
        a.e(f"s_mov_b32 s78, {WS_XKV}")
        a.e("buffer_load_dword v112, v66, s[60:63], 0 offen sc1")
        a.e("buffer_load_dword v113, v66, s[60:63], s78 offen sc1")
        a.label("L_NOPT")
    a.e(f"s_and_b32 s77, s{MQ}, 1")
    a.e(f"s_mul_i32 s78, s77, {FSZ}")
    a.e(f"s_add_u32 s79, s78, {F0}")
    a.e(f"s_mul_i32 s77, s77, {TABSZ}")
    a.e(f"s_add_u32 s77, s77, {TAB0}")
    a.e(f"v_mul_u32_u24 v66, {ENT}, v{J}")
    a.e(f"v_lshl_add_u32 v66, v{Q4}, 4, v66")
    a.e("v_add_u32 v66, s77, v66")
    a.e(f"s_cmp_gt_u32 s{MQ}, 1")
    a.e("s_cbranch_scc1 L_JOB2")
    toks = []
    for ks in range(8):
        a.e(f"ds_read_b128 a[{4*ks}:{4*ks+3}], v66 offset:{64*ks}")
        a.e(f"ds_read_b128 a[{32+4*ks}:{32+4*ks+3}], v66 offset:{24*ENT + 64*ks}")
        toks.append(a.e(f"ds_read_b128 a[{64+4*ks}:{64+4*ks+3}], v66 offset:{40*ENT + 64*ks}"))
    a.e(f"v_lshlrev_b32 v68, 6, v{Q4}")
    a.e(f"v_lshl_add_u32 v68, v{J}, 2, v68")
    a.e("v_lshlrev_b32 v68, 1, v68")
    a.e("v_add_u32 v68, s79, v68")
    a.e(f"v_cmp_gt_u32 vcc, 2, v{Q4}")
    a.e(f"v_lshlrev_b32 v74, 7, v{Q4}")
    a.e("v_add_u32 v74, 256, v74")
    a.e(f"v_lshlrev_b32 v75, 8, v{Q4}")
    a.e(f"v_cndmask_b32 v70, v75, v74, vcc")
    a.e(f"v_lshl_add_u32 v70, v{J}, 2, v70")
    for e, (o1, o2) in enumerate(((2, 64), (64, 128), (66, 192)), start=1):
        a.e(f"v_mov_b32 v74, {o2}")
        a.e(f"v_mov_b32 v75, {o1}")
        a.e(f"v_cndmask_b32 v74, v74, v75, vcc")
        a.e(f"v_add_u32 v{70+e}, v70, v74")
    for e in range(4):
        a.e(f"v_lshlrev_b32 v{70+e}, 1, v{70+e}")
        a.e(f"v_add_u32 v{70+e}, s79, v{70+e}")
    for ks in range(8):
        a.wait_ds(toks[ks])
        s0 = "0" if ks == 0 else "v[76:79]"; s1 = "0" if ks == 0 else "v[80:83]"
        a.e(f"v_mfma_f32_16x16x32_bf16 v[76:79], a[{32+4*ks}:{32+4*ks+3}], a[{4*ks}:{4*ks+3}], {s0}")
        a.e(f"v_mfma_f32_16x16x32_bf16 v[80:83], a[{64+4*ks}:{64+4*ks+3}], a[{4*ks}:{4*ks+3}], {s1}")
    a.e("v_cvt_pk_bf16_f32 v84, v76, v77")
    a.e("v_cvt_pk_bf16_f32 v85, v78, v79")
    a.e("ds_write_b64 v68, v[84:85]")
    a.e("v_cvt_pk_bf16_f32 v86, v80, v81")
    a.e("v_cvt_pk_bf16_f32 v87, v82, v83")
    a.e("ds_write_b16 v70, v86")
    a.e("ds_write_b16_d16_hi v71, v86")
    a.e("ds_write_b16 v72, v87")
    a.e("ds_write_b16_d16_hi v73, v87")
    a.e("s_branch L_JOBD")
    a.label("L_JOB2")
    a.ds_done = a.ds_issued
    a.e(f"v_lshlrev_b32 v67, 1, v{J}")
    a.e(f"v_add_u32 v68, 8, v{J}")
    a.e(f"v_cmp_gt_u32 vcc, 8, v{J}")
    a.e("v_cndmask_b32 v67, v68, v67, vcc")
    a.e(f"v_mul_u32_u24 v67, {ENT}, v67")
    a.e(f"v_lshl_add_u32 v67, v{Q4}, 4, v67")
    a.e("v_add_u32 v67, s77, v67")
    toks = []
    for ks in range(8):
        a.e(f"ds_read_b128 a[{4*ks}:{4*ks+3}], v67 offset:{64*ks}")
        toks.append(a.e(f"ds_read_b128 a[{32+4*ks}:{32+4*ks+3}], v66 offset:{56*ENT + 64*ks}"))
    a.e(f"v_lshlrev_b32 v70, 9, v{Q4}")
    a.e(f"v_lshl_add_u32 v70, v{J}, 3, v70")
    a.e("v_add_u32 v70, 1024, v70")
    a.e("v_lshlrev_b32 v70, 1, v70")
    a.e("v_add_u32 v70, s79, v70")
    for ks in range(8):
        a.wait_ds(toks[ks])
        s0 = "0" if ks == 0 else "v[76:79]"
        a.e(f"v_mfma_f32_16x16x32_bf16 v[76:79], a[{32+4*ks}:{32+4*ks+3}], a[{4*ks}:{4*ks+3}], {s0}")
    a.e("v_cvt_pk_bf16_f32 v84, v76, v77")
    a.e("v_cvt_pk_bf16_f32 v85, v78, v79")
    a.e("ds_write_b16 v70, v84")
    a.e("ds_write_b16_d16_hi v70, v84 offset:256")
    a.e("ds_write_b16 v70, v85 offset:512")
    a.e("ds_write_b16_d16_hi v70, v85 offset:768")
    a.label("L_JOBD")
    a.e("s_cmp_eq_u32 s3, 1")
    a.e("s_cbranch_scc1 L_WT6")
    a.e("s_waitcnt vmcnt(0)")
    a.e("s_branch L_WTD")
    a.label("L_WT6")
    a.e("s_waitcnt vmcnt(2)") if cfg.get("pretouch", True) else a.e("s_waitcnt vmcnt(0)")
    a.label("L_WTD")
    for chn, (T0, T1) in enumerate(((T0a, T1a), (T0b, T1b))):
        O = 104 + 4 * chn
        for jx in range(4): a.e(f"v_alignbit_b32 v{O+jx}, v{T1+jx}, v{T0+jx}, 16")
        a.e(f"ds_write_b128 v{vKW}, v[{T0}:{T0+3}] offset:{KCS*2*chn}")
        a.e(f"ds_write_b128 v{vKW}, v[{O}:{O+3}] offset:{KCS*2*chn+4160}")
    def pads(items, lab):
        a.e("s_cmp_eq_u32 s3, 0")
        a.e(f"s_cbranch_scc0 {lab}")
        a.e("v_lshlrev_b32 v112, 2, v2")
        a.e(f"v_add_u32 v112, {KC0}, v112")
        a.e("v_mov_b32 v113, 0")
        a.e("v_cmp_eq_u32 vcc, 7, v2")
        for ccx, reg in items:
            a.e(f"v_readfirstlane_b32 s77, v{reg}")
            a.e("s_nop 3")
            a.e("s_lshl_b32 s77, s77, 16")
            a.e("v_mov_b32 v114, s77")
            a.e("v_cndmask_b32 v114, 0, v114, vcc")
            a.e("s_mov_b64 exec, 0xff")
            a.e(f"ds_write_b32 v112, v113 offset:{KCS*ccx}")
            a.e(f"ds_write_b32 v112, v114 offset:{KCS*ccx+4160}")
            a.e("s_mov_b64 exec, -1")
        a.label(lab)
    pads(((0, T0a), (2, T0b)), "L_NOPADA")
    a.e("s_cmp_eq_u32 s3, 3")
    a.e("s_cbranch_scc0 L_NOEPW")
    a.e(f"v_readfirstlane_b32 s72, v{EPV}")
    a.e("s_add_u32 s72, s72, 1")
    a.e("v_mov_b32 v84, s72")
    a.e(f"v_mov_b32 v85, {EPL}")
    a.e("ds_write_b32 v85, v84")
    a.label("L_NOEPW")
    a.wait_ds_all()
    a.stamp(3)
    a.e("s_barrier")
    a.e("s_cmp_eq_u32 s3, 2")
    a.e("s_cbranch_scc0 L_NOGST")
    a.e(f"v_mov_b32 v67, {EPL}")
    a.e("ds_read_b32 v66, v67")
    a.e("s_lshl_b32 s77, s2, 3")
    a.e(f"s_add_u32 s77, s77, {WS_GF1}")
    a.e("v_mov_b32 v68, s77")
    a.e("s_waitcnt lgkmcnt(0)")
    a.e(f"v_xor_b32 v67, 0x{FLAGC:08x}, v66")
    a.e("s_mov_b64 exec, 1")
    a.e("buffer_store_dwordx2 v[66:67], v68, s[60:63], 0 offen sc1")
    a.e("s_mov_b64 exec, -1")
    a.label("L_NOGST")
    a.ds_done = a.ds_issued
    for chn in range(2):
        EL = 66 + 10 * chn
        for e in range(9): te = a.e(f"ds_read_u16 v{EL+e}, v{XA+e} offset:{FSZ*chn}")
    a.wait_ds(te)
    for chn in range(2):
        EL = 66 + 10 * chn; EE = 88 + 8 * chn; OO = EE + 4
        for k in range(4):
            a.e(f"v_lshl_or_b32 v{EE+k}, v{EL+2*k+1}, 16, v{EL+2*k}")
            a.e(f"v_lshl_or_b32 v{OO+k}, v{EL+2*k+2}, 16, v{EL+2*k+1}")
        a.e(f"ds_write_b128 v{vKW}, v[{EE}:{EE+3}] offset:{KCS*(2*chn+1)}")
        a.e(f"ds_write_b128 v{vKW}, v[{OO}:{OO+3}] offset:{KCS*(2*chn+1)+4160}")
    pads(((1, 66), (3, 76)), "L_NOPADB")
    a.e("s_cmp_eq_u32 s8, 0")
    a.e("s_cbranch_scc0 L_KNOAL")
    aloads()
    a.e("s_waitcnt lgkmcnt(15)")
    a.e("s_branch L_KAL2")
    a.label("L_KNOAL")
    a.e("s_waitcnt lgkmcnt(0)")
    a.label("L_KAL2")
    a.e("s_cmp_eq_u32 s8, 0")
    a.e("s_cselect_b32 s77, s100, s101")
    a.e("s_lshl_b32 s78, s9, 4")
    a.e("s_lshr_b32 s77, s77, s78")
    a.e("s_lshl_b32 s77, s77, 16")
    a.e(f"v_mov_b32 v{DF}, s77")
    a.stamp(4)
    a.e("s_barrier")
    a.label("L_JOIN")
    a.ds_done = a.ds_issued; a.vm_done = a.vm_issued
    a.e(f"v_mov_b32 v101, {EPL}")
    a.e("ds_read_b32 v100, v101")
    a.e("v_mov_b32 v104, 0"); a.e("v_mov_b32 v105, 0")
    a.e(f"ds_write_b64 v{vPAD}, v[104:105]")
    a.e("s_waitcnt lgkmcnt(0)")
    a.e("v_readfirstlane_b32 s72, v100")
    a.e("s_nop 3")
    a.e(f"s_xor_b32 s73, s72, 0x{FLAGC:08x}")
    a.e("s_add_u32 s97, s97, s73") if not cfg.get("force_fb") else a.e("s_add_u32 s97, s2, s73")
    a.e("s_cmp_eq_u32 s3, 7")
    a.e("s_cbranch_scc0 L_NOFLAG2")
    a.e("v_mov_b32 v120, s72")
    a.e("v_mov_b32 v121, s97")
    a.e("s_lshl_b32 s77, s4, 5")
    a.e("s_add_u32 s77, s77, s5")
    a.e("s_lshl_b32 s77, s77, 3")
    a.e(f"s_add_u32 s78, s77, {WS_LF}")
    a.e("v_mov_b32 v124, s78")
    a.e("s_mov_b64 exec, 1")
    a.e("buffer_store_dwordx2 v[120:121], v124, s[60:63], 0 offen")
    a.e("s_mov_b64 exec, -1")
    a.label("L_NOFLAG2")
    a.e("v_lshlrev_b32 v122, 5, v2")
    a.e(f"v_add_u32 v122, {WS_GF1}, v122")
    a.e("v_and_b32 v123, 31, v2")
    a.e("v_lshlrev_b32 v123, 3, v123")
    a.e("s_lshl_b32 s77, s4, 8")
    a.e(f"s_add_u32 s77, s77, {WS_LF}")
    a.e("v_add_u32 v123, s77, v123")
    a.e("s_cmp_eq_u32 s8, 0")
    a.e("s_cbranch_scc1 L_SKIPAL")
    aloads()
    a.label("L_SKIPAL")
    a.stamp(5)
    XF = cfg.get("xflag", " sc1")
    def pollG(a):
        a.e("buffer_load_dwordx4 v[112:115], v122, s[60:63], 0 offen sc1")
        a.e("buffer_load_dwordx4 v[116:119], v122, s[60:63], 0 offen offset:16 sc1")
    def checkG(a):
        for r in (112, 114, 116, 118): a.e(f"v_xor_b32 v{r}, s72, v{r}")
        for r in (113, 115, 117, 119): a.e(f"v_xor_b32 v{r}, s73, v{r}")
        a.e("v_or_b32 v112, v112, v113"); a.e("v_or_b32 v114, v114, v115"); a.e("v_or_b32 v116, v116, v117"); a.e("v_or_b32 v118, v118, v119")
        a.e("v_or_b32 v112, v112, v114"); a.e("v_or_b32 v116, v116, v118"); a.e("v_or_b32 v112, v112, v116")
    def checkL(a):
        a.e("v_xor_b32 v120, s72, v120")
        a.e("v_xor_b32 v121, s97, v121")
        a.e("v_or_b32 v120, v120, v121")
    a.e("s_cmp_eq_u32 s3, 7")
    a.e("s_cbranch_scc0 L_POLLDONE")
    a.e("s_mov_b32 s77, 0")
    a.label("L_POLL")
    pollG(a)
    a.e("buffer_load_dwordx2 v[120:121], v123, s[60:63], 0 offen sc1")
    a.e("s_waitcnt vmcnt(0)")
    checkG(a)
    checkL(a)
    a.e("v_cmp_ne_u32 vcc, 0, v120")
    a.e("v_cmp_ne_u32 s[78:79], 0, v112")
    a.e("s_add_u32 s77, s77, 1")
    a.e("s_or_b64 s[78:79], s[78:79], vcc")
    a.e("s_mov_b32 s98, 1")
    a.e("s_cmp_eq_u64 s[78:79], 0")
    a.e("s_cbranch_scc1 L_POLLOUT")
    a.e("s_cmp_eq_u64 vcc, 0")
    a.e("s_cbranch_scc1 L_POLLG")
    a.e(f"s_cmp_lt_u32 s77, {cfg.get('NA', 10)}")
    a.e("s_cbranch_scc1 L_POLL")
    a.e("s_mov_b32 s98, 2")
    a.e("s_branch L_POLLOUT")
    a.label("L_POLLG")
    a.e("s_cmp_lt_u32 s77, 20000")
    a.e("s_cbranch_scc1 L_POLL")
    a.label("L_POLLOUT")
    a.e("v_mov_b32 v120, s98")
    a.e(f"v_mov_b32 v121, {RES}")
    a.e("ds_write_b32 v121, v120")
    a.label("L_POLLDONE")
    a.wait_ds_all()
    a.vm_done = a.vm_issued
    a.stamp(8)
    a.e("s_barrier")
    a.e(f"v_mov_b32 v121, {RES}")
    a.e("ds_read_b32 v120, v121")
    a.e("s_mov_b32 s99, 0")
    a.e("s_waitcnt lgkmcnt(0)")
    a.e("v_readfirstlane_b32 s98, v120")
    a.e("s_nop 3")
    a.e("s_cmp_eq_u32 s98, 1")
    a.e("s_cbranch_scc1 L_FAST")
    a.e("s_cmp_eq_u32 s7, 0")
    a.e("s_cbranch_scc1 L_FBK")
    tr_and_store(" sc1", WS_X2 + WS_XQ, WS_X2 + WS_XKV)
    a.label("L_FBK")
    a.e("s_waitcnt vmcnt(0)")
    a.e("s_barrier")
    a.e("s_cmp_eq_u32 s3, 7")
    a.e("s_cbranch_scc0 L_FB2")
    a.e("v_mov_b32 v120, s72")
    a.e("v_mov_b32 v121, s73")
    a.e("s_lshl_b32 s77, s4, 5")
    a.e("s_add_u32 s77, s77, s5")
    a.e("s_lshl_b32 s77, s77, 3")
    a.e(f"s_add_u32 s78, s77, {WS_GF2}")
    a.e("v_mov_b32 v124, s78")
    a.e("s_mov_b64 exec, 1")
    a.e("buffer_store_dwordx2 v[120:121], v124, s[60:63], 0 offen sc1")
    a.e("s_mov_b64 exec, -1")
    a.e(f"v_add_u32 v124, {WS_GF2 - WS_LF}, v123")
    a.e("s_mov_b32 s77, 0")
    a.label("L_FBPOLL")
    pollG(a)
    a.e("buffer_load_dwordx2 v[120:121], v123, s[60:63], 0 offen sc1")
    a.e("buffer_load_dwordx2 v[126:127], v124, s[60:63], 0 offen sc1")
    a.e("s_waitcnt vmcnt(0)")
    checkG(a)
    checkL(a)
    a.e("v_xor_b32 v126, s72, v126")
    a.e("v_xor_b32 v127, s73, v127")
    a.e("v_or_b32 v126, v126, v127")
    a.e("v_cmp_ne_u32 vcc, 0, v112")
    a.e("s_add_u32 s77, s77, 1")
    a.e("s_cmp_ge_u32 s77, 20000")
    a.e("s_cbranch_scc1 L_FBGIVE")
    a.e("s_cmp_eq_u64 vcc, 0")
    a.e("s_cbranch_scc0 L_FBPOLL")
    a.e("v_cmp_ne_u32 vcc, 0, v120")
    a.e("s_mov_b32 s98, 1")
    a.e("s_nop 3")
    a.e("s_cmp_eq_u64 vcc, 0")
    a.e("s_cbranch_scc1 L_FBOUT")
    a.e("v_cmp_ne_u32 vcc, 0, v126")
    a.e("s_nop 4")
    a.e("s_cmp_eq_u64 vcc, 0")
    a.e("s_cbranch_scc0 L_FBPOLL")
    a.label("L_FBGIVE")
    a.e("s_mov_b32 s98, 2")
    a.label("L_FBOUT")
    a.e("v_mov_b32 v120, s98")
    a.e(f"v_mov_b32 v121, {RES}")
    a.e("ds_write_b32 v121, v120")
    a.e("s_waitcnt lgkmcnt(0)")
    a.label("L_FB2")
    a.e("s_barrier")
    a.e(f"v_mov_b32 v121, {RES}")
    a.e("ds_read_b32 v120, v121")
    a.e("s_waitcnt lgkmcnt(0)")
    a.e("v_readfirstlane_b32 s98, v120")
    a.e("s_nop 3")
    a.e("s_cmp_eq_u32 s98, 2")
    a.e(f"s_cselect_b32 s99, {WS_X2}, 0")
    XL = 72
    a.e(f"buffer_load_dwordx4 v[{XL}:{XL+3}], v13, s[60:63], s99 offen sc1")
    a.e(f"s_add_u32 s77, s99, {WS_XKV}")
    a.e(f"buffer_load_dwordx4 v[{XL+4}:{XL+7}], v13, s[60:63], s77 offen sc1")
    a.e("s_branch L_XISSUED")
    a.label("L_FAST")
    a.e(f"buffer_load_dwordx4 v[{XL}:{XL+3}], v13, s[60:63], 0 offen{XF}")
    a.e(f"s_mov_b32 s77, {WS_XKV}")
    a.e(f"buffer_load_dwordx4 v[{XL+4}:{XL+7}], v13, s[60:63], s77 offen{XF}")
    a.label("L_XISSUED")
    a.ds_done = a.ds_issued; a.vm_done = a.vm_issued
    a.e(f"s_mov_b32 s77, {WS_GP}")
    a.e(f"buffer_load_dwordx4 v[28:31], v4, s[60:63], s77 offen sc1")
    a.e(f"v_add_u32 v5, {GM}, v4")
    a.stamp(9)
    a.e("s_waitcnt vmcnt(1)")
    a.e(f"ds_write_b128 v{vXL}, v[{XL}:{XL+3}] offset:{XRS}")
    a.e(f"ds_write_b128 v{vXL}, v[{XL+4}:{XL+7}]")
    a.e("s_waitcnt lgkmcnt(0)")
    a.ds_done = a.ds_issued; a.vm_done = a.vm_issued
    a.stamp(13)
    a.e("s_barrier")
    a.e("s_cmp_lg_u32 s2, 0")
    a.e("s_cbranch_scc1 L_NOEP")
    a.e("s_cmp_lg_u32 s3, 7")
    a.e("s_cbranch_scc1 L_NOEP")
    a.e("v_mov_b32 v72, s72")
    a.e(f"v_mov_b32 v73, {WS_EP}")
    a.e("s_mov_b64 exec, 1")
    a.e("buffer_store_dword v72, v73, s[60:63], 0 offen")
    a.e("s_mov_b64 exec, -1")
    a.label("L_NOEP")
    a.e("s_cmp_lg_u32 s7, 0")
    a.e("s_cbranch_scc1 L_H1")
    ctx = dict(vB=vB, vX=vX, vQ=vQ, vG=vG, vPX=vPX, vGW=vGW, vCMB=vCMB, vOUT=vOUT, SQL=SQL, SQH=SQH, ONEF=ONEF, SG=SG, DF=DF, MHI=27,
               nostore=cfg.get("nostore"), noepi=cfg.get("noepi"), vA=vA, CPRE=CPRE)
    for kk in ("G1", "G2", "G3", "nobar", "novalu", "bstamp", "NB0", "NB1"):
        if kk in cfg: ctx[kk] = cfg[kk]
    main_loop(a, 0, passes, NB, LOOK, RATE, ctx)
    a.e("s_endpgm")
    a.label("L_H1")
    main_loop(a, 1, passes, NB, LOOK, RATE, ctx)
    a.label("L_END")
    a.e("s_endpgm")
    a.label("L_CODE_END")

def main_loop(a, h, passes, NB, LOOK, RATE, c):
    ACC0 = 32
    BR = 48
    NB = c.get("NB1", 16) if h == 1 else c.get("NB0", 12)
    EP = BR + 4 * NB
    assert EP + (32 if h == 0 else 8) <= 128
    MHI = c["MHI"]
    a.e(f"v_mov_b32 v{MHI}, 0xffff0000")
    def areg(cidx, rho): return 4 * (cidx * 4 + rho)
    n = len(passes)
    accof = {}
    for pi, P in enumerate(passes):
        assert len(P) <= 2
        for k, t in enumerate(P): accof[t] = ACC0 + 8 * (pi % 2) + 4 * k
    G1, G2, G3 = c.get("G1", 2), c.get("G2", 2), c.get("G3", 5)
    mf = []; loads = []; bseq = 0; pstart = []; pend = []; seenA = set(); tokA = {}
    for P in passes:
        thi = max(P)
        pstart.append(len(mf))
        for rho in range(4):
            for dl in range(thi + 1):
                users = [t for t in P if t - dl >= 0]
                if not users: continue
                for t in users:
                    cidx = t - dl
                    if cidx >= c["CPRE"] and (cidx, rho) not in seenA:
                        seenA.add((cidx, rho))
                        loads.append(dict(kind="A", c=cidx, rho=rho, need=max(0, len(mf) - c.get("ALEAD", 10))))
                loads.append(dict(kind="B", dl=dl, rho=rho, need=len(mf), b=bseq))
                for t in users: mf.append(dict(t=t, c=t - dl, rho=rho, b=bseq))
                bseq += 1
        pend.append(len(mf))
    lastuse = {}
    for i, m in enumerate(mf): lastuse[m["b"]] = i
    tokB = {}; st = dict(li=0); started = set(); side = []
    V = (lambda f: None) if c.get("novalu") else (lambda f: side.append(("v", f)))
    X = lambda f: side.append(("x", f))
    def run_side(nv):
        k = 0
        while side:
            it = side[0]
            if it[0] == "gap":
                if it[1] <= 0: side.pop(0); continue
                side[0] = ("gap", it[1] - 1)
                return
            if it[0] == "v":
                if k >= nv: return
                k += 1
            side.pop(0); it[1]()
    def flush_side():
        while side:
            if side[0][0] == "gap": side.pop(0); continue
            run_side(1000)
    def prefetch(i, limit):
        while st["li"] < len(loads):
            L = loads[st["li"]]
            if L["need"] > i + LOOK or L["need"] >= limit: break
            if L["kind"] == "A":
                r = areg(L["c"], L["rho"]); o = 128 * (L["c"] & 1) + 16 * L["rho"]; va = c["vA"][L["c"] >> 1]
                a.e(f"ds_read2_b32 a[{r}:{r+1}], v{va} offset0:{o} offset1:{o+1}")
                tokA[(L["c"], L["rho"])] = a.e(f"ds_read2_b32 a[{r+2}:{r+3}], v{va} offset0:{o+2} offset1:{o+3}")
                st["li"] += 1
                continue
            prev = L["b"] - NB
            if prev >= 0 and lastuse[prev] >= i: break
            r = BR + 4 * (L["b"] % NB)
            tokB[L["b"]] = a.e(f"ds_read_b128 v[{r}:{r+3}], v{c['vB']} offset:{64*L['rho'] + 512*(7-L['dl'])}")
            st["li"] += 1
    def emit_pass(pi, init_tok=None):
        for i in range(pstart[pi], pend[pi]):
            m = mf[i]
            prefetch(i, 10**9)
            a.wait_ds(tokB[m["b"]])
            if (m["c"], m["rho"]) in tokA: a.wait_ds(tokA[(m["c"], m["rho"])])
            ar = areg(m["c"], m["rho"]); br = BR + 4 * (m["b"] % NB); ac = accof[m["t"]]
            if m["t"] in started: src = f"v[{ac}:{ac+3}]"
            else:
                started.add(m["t"])
                if init_tok is not None:
                    a.wait_ds(init_tok[m["t"]]); src = f"v[{ac}:{ac+3}]"
                else: src = "0"
            a.e(f"v_mfma_f32_16x16x32_bf16 v[{ac}:{ac+3}], a[{ar}:{ar+3}], v[{br}:{br+3}], {src}")
            run_side(RATE)
    bcount = [0]
    def barrier():
        if bcount[0] == 0:
            a.e("s_waitcnt vmcnt(0)")
            tg = a.e("ds_write_b128 v5, v[28:31]")
            a.wait_ds(tg)
        if c.get("bstamp"):
            a.raw(f"  s_memtime s[{56 + 0}:{57}]") if False else None
            a.e(f"s_memtime s[{16+2*bcount[0]}:{17+2*bcount[0]}]")
        if not c.get("nobar"): a.e("s_barrier")
        bcount[0] += 1
    def regs_fin(k):
        E = EP + 12 * k
        return E, E + 4, E + 8
    def q_fin_pre(P):
        assert len(P) <= 2
        XO, QM = EP + 24, EP + 26
        for k, t in enumerate(P):
            TT, UU, GG = regs_fin(k)
            tk = {}
            X(lambda t=t: a.e(f"ds_read_b64 v[{XO}:{XO+1}], v{c['vX']} offset:{512*(7-t)}"))
            X(lambda t=t: a.e(f"ds_read_b64 v[{QM}:{QM+1}], v{c['vQ']} offset:{512*(7-t)}"))
            def rg(t=t, GG=GG, tk=tk): tk[0] = a.e(f"ds_read_b128 v[{GG}:{GG+3}], v{c['vG']} offset:{1024*t}")
            X(rg)
            side.append(("gap", G3))
            X(lambda tk=tk: a.wait_ds(tk[0]))
            V(lambda TT=TT: a.e(f"v_lshlrev_b32 v{TT+3}, 16, v{XO}"))
            V(lambda TT=TT: a.e(f"v_and_b32 v{TT+2}, v{MHI}, v{XO}"))
            V(lambda TT=TT: a.e(f"v_lshlrev_b32 v{TT+1}, 16, v{XO+1}"))
            V(lambda TT=TT: a.e(f"v_and_b32 v{TT+0}, v{MHI}, v{XO+1}"))
            V(lambda UU=UU: a.e(f"v_perm_b32 v{UU+3}, v{QM}, v{c['ONEF']}, v{c['SQL']}"))
            V(lambda UU=UU: a.e(f"v_perm_b32 v{UU+2}, v{QM}, v{c['ONEF']}, v{c['SQH']}"))
            V(lambda UU=UU: a.e(f"v_perm_b32 v{UU+1}, v{QM+1}, v{c['ONEF']}, v{c['SQL']}"))
            V(lambda UU=UU: a.e(f"v_perm_b32 v{UU+0}, v{QM+1}, v{c['ONEF']}, v{c['SQH']}"))
            for e in range(4): V(lambda e=e, TT=TT: a.e(f"v_mul_f32 v{TT+e}, v{c['DF']}, v{TT+e}"))
            for e in range(4): V(lambda e=e, GG=GG: a.e(f"v_perm_b32 v{GG+e}, v{GG+e}, v{GG+e}, v{c['SG']}"))
            for e in range(4): V(lambda e=e, TT=TT: a.e(f"v_cvt_pk_bf16_f32 v{TT+e}, 0, v{TT+e}"))
    def q_fin_post(P):
        DD = EP + 28
        def stage(fn):
            for k, t in enumerate(P):
                TT, UU, GG = regs_fin(k); ac = accof[t]
                for e in range(4): V(lambda e=e, ac=ac, TT=TT, UU=UU, GG=GG: fn(e, ac, TT, UU, GG))
        stage(lambda e, ac, TT, UU, GG: a.e(f"v_cvt_pk_bf16_f32 v{ac+e}, 0, v{ac+e}"))
        stage(lambda e, ac, TT, UU, GG: a.e(f"v_add_f32 v{ac+e}, v{ac+e}, v{TT+e}"))
        stage(lambda e, ac, TT, UU, GG: a.e(f"v_cvt_pk_bf16_f32 v{ac+e}, 0, v{ac+e}"))
        stage(lambda e, ac, TT, UU, GG: a.e(f"v_mul_f32 v{ac+e}, v{ac+e}, v{UU+e}"))
        stage(lambda e, ac, TT, UU, GG: a.e(f"v_cvt_pk_bf16_f32 v{ac+e}, 0, v{ac+e}"))
        stage(lambda e, ac, TT, UU, GG: a.e(f"v_mul_f32 v{ac+e}, v{ac+e}, v{GG+e}"))
        for k, t in enumerate(P):
            ac = accof[t]
            V(lambda ac=ac, k=k: a.e(f"v_cvt_pk_bf16_f32 v{DD+2*k}, v{ac+0}, v{ac+1}"))
            V(lambda ac=ac, k=k: a.e(f"v_cvt_pk_bf16_f32 v{DD+2*k+1}, v{ac+2}, v{ac+3}"))
        for k, t in enumerate(P):
            X(lambda t=t, k=k: a.e(f"ds_write_b64 v{c['vGW']}, v[{DD+2*k}:{DD+2*k+1}] offset:{512*t}"))
    def q_combine(P):
        tkc = {}
        for k, t in enumerate(P):
            CM = [EP + 4 * k + i for i in range(4)]
            for cc2 in range(4):
                def rd(cc2=cc2, t=t, CM=CM): tkc[t] = a.e(f"ds_read_u16_d16_hi v{CM[cc2]}, v{c['vCMB']} offset:{4096*cc2+512*t}")
                X(rd)
        side.append(("gap", G3))
        for k, t in enumerate(P):
            CM = [EP + 4 * k + i for i in range(4)]
            X(lambda t=t: a.wait_ds(tkc[t]))
            V(lambda CM=CM: a.e(f"v_add_f32 v{CM[0]}, v{CM[0]}, v{CM[1]}"))
            V(lambda CM=CM: a.e(f"v_add_f32 v{CM[2]}, v{CM[2]}, v{CM[3]}"))
            X(lambda t=t: a.e(f"s_mov_b32 s77, {t*262144}"))
            V(lambda CM=CM: a.e(f"v_cvt_pk_bf16_f32 v{CM[1]}, v{CM[0]}, v{CM[2]}"))
            if not c.get("nostore"): X(lambda CM=CM: a.e(f"buffer_store_dword v{CM[1]}, v{c['vOUT']}, s[64:67], s77 offen"))
    if h == 1:
        for k in range(n):
            if k >= 2: q_combine(passes[k - 2])
            emit_pass(k)
            flush_side()
            tw = None
            for t in passes[k]:
                tw = a.e(f"ds_write_b128 v{c['vPX']}, v[{accof[t]}:{accof[t]+3}] offset:{1024*t}")
            if k + 1 < n: prefetch(pend[k], 10**9)
            a.wait_ds(tw)
            barrier()
        if n >= 2:
            q_combine(passes[n - 2]); flush_side()
        barrier()
        a.stamp(14)
        q_combine(passes[n - 1]); flush_side()
    else:
        barrier_only = True
        prefetch(0, 10**9)
        barrier()
        for k in range(n):
            itok = {}
            for t in passes[k]:
                itok[t] = a.e(f"ds_read_b128 v[{accof[t]}:{accof[t]+3}], v{c['vPX']} offset:{1024*t}")
            q_fin_pre(passes[k])
            emit_pass(k, init_tok=itok)
            flush_side()
            if k + 1 < n: prefetch(pend[k], 10**9)
            q_fin_post(passes[k])
            flush_side()
            a.wait_ds(a.ds_issued - 1)
            barrier()
        a.stamp(14)
    if getattr(a, "stamps", False): a.wait_vm_all()
    a.stamp(15)
    if c.get("bstamp"):
        a.e("s_waitcnt lgkmcnt(0)")
        for i in range(bcount[0]): a.e(f"s_mov_b32 s{81+i}, s{16+2*i}")
    a.dump_stamps(16, 52, 16 << 20, wave="s3")

def build(cfg):
    a = Asm()
    a.stamps = cfg.get("stamps", False)
    a.stamp_sel = cfg.get("stamp_sel", None)
    hdr = open("cdna_kernels/" + NAME + ".s.ref").read().split("\n")
    head = [l for l in hdr if l.startswith(";") and "@launch" not in l and "Override launch" not in l and "grid=ceil" not in l]
    a.raw("\n".join(head[:21]))
    a.raw(f"; @launch grid=(256,1,1) block=(512,1,1) lds={LDS_TOTAL}")
    a.raw('.amdgcn_target "amdgcn-amd-amdhsa--gfx950"\n.text')
    kernel(a, cfg)
    a.raw(f""".section .rodata,"a"
.p2align 6
.amdhsa_kernel {KN}
  .amdhsa_next_free_vgpr 256
  .amdhsa_next_free_sgpr 102
  .amdhsa_accum_offset 128
  .amdhsa_group_segment_fixed_size 0
  .amdhsa_kernarg_size 152
  .amdhsa_user_sgpr_count 2
  .amdhsa_user_sgpr_kernarg_segment_ptr 1
  .amdhsa_system_sgpr_workgroup_id_x 1
.end_amdhsa_kernel""")
    return a.finalize()

DEFAULT = dict(passes=[[0], [1, 2], [3, 4], [5, 6], [7]], NB=8, LOOK=14, RATE=2)
if __name__ == "__main__":
    out = sys.argv[1] if len(sys.argv) > 1 else "cdna_kernels/" + NAME + ".s"
    cfg = dict(DEFAULT)
    for arg in sys.argv[2:]:
        if arg == "stamps": cfg["stamps"] = True
        elif "=" in arg:
            k, v = arg.split("=", 1); cfg[k] = eval(v)
    open(out, "w").write(build(cfg))
    print("wrote", out)
```

```python
import sys, struct
from dsl import Asm

NAME = "gated_mix__ssm_conv_h3__ssm_conv_s4__prompt"
KN = NAME + "_kernel"
LOG2E = 0x3fb8aa3b
WS_XQ = 0
WS_XKV = 2 << 20
WS_X2 = 4 << 20
WS_GP = 8 << 20
WS_GF1 = (8 << 20) + 65536
WS_GF2 = (8 << 20) + 131072
WS_LF = (8 << 20) + 196608
WS_EP = (8 << 20) + 262144
WS_USED = (8 << 20) + 262144 + 4096
FLAGC = 0x5a5a5a5a

KT = 0
QT = KT + 72 * 128
KVT = QT + 8192
SKT = KVT + 8192
PAR = SKT + 512
KC0 = PAR + 3072
KCS = 8320
F0 = KC0 + 4 * KCS
FSZ = 6144
TAB0 = F0 + 2 * FSZ
ENT = 544
TABSZ = 72 * ENT
TABEND = TAB0 + 2 * TABSZ
XRS = 4608
XR0 = TAB0
GM = XR0 + 4 * XRS
PX = GM + 8192
GAB = PX + 32768
assert GAB + 16384 <= TABEND
LDS_TOTAL = TABEND

def fbits(x): return struct.unpack("<I", struct.pack("<f", float(x)))[0]

def cmul(a, dst, w, z, tmp):
    a.e(f"v_pk_mul_f32 v[{tmp}:{tmp+1}], v[{w}:{w+1}], v[{z}:{z+1}] op_sel:[0,0] op_sel_hi:[1,0]")
    a.e(f"v_pk_fma_f32 v[{dst}:{dst+1}], v[{w}:{w+1}], v[{z}:{z+1}], v[{tmp}:{tmp+1}] op_sel:[1,1,0] op_sel_hi:[0,1,1] neg_lo:[1,0,0]")

def cpow(a, dst, rho, phi, m, t0, t1):
    a.e(f"v_mul_f32 v{t0}, 0x{fbits(m):08x}, v{rho}")
    a.e(f"v_mul_f32 v{t1}, 0x{fbits(m):08x}, v{phi}")
    a.e(f"v_exp_f32 v{t0}, v{t0}")
    a.e(f"v_fract_f32 v{t1}, v{t1}")
    a.e(f"v_cos_f32 v{dst}, v{t1}")
    a.e(f"v_sin_f32 v{dst+1}, v{t1}")
    a.e(f"v_mul_f32 v{dst}, v{t0}, v{dst}")
    a.e(f"v_mul_f32 v{dst+1}, v{t0}, v{dst+1}")

def kernel(a, cfg):
    passes, NB, LOOK, RATE = cfg["passes"], cfg["NB"], cfg["LOOK"], cfg["RATE"]
    GLD, EPL, RES = PAR, PAR + 64, PAR + 128
    a.raw(f".globl {KN}\n.p2align 8\n.type {KN},@function\n{KN}:")
    a.e("s_cmp_ge_u32 s2, 256")
    a.e("s_cbranch_scc1 L_END")
    a.stamp(0)
    a.e("s_load_dwordx16 s[16:31], s[0:1], 0")
    a.e("s_load_dwordx16 s[32:47], s[0:1], 64")
    a.e("s_load_dwordx4 s[48:51], s[0:1], 128")
    a.e("s_load_dwordx2 s[52:53], s[0:1], 144")
    a.e("v_lshrrev_b32 v1, 6, v0")
    a.e("v_and_b32 v2, 63, v0")
    a.e("v_readfirstlane_b32 s3, v1")
    a.e("s_and_b32 s4, s2, 7")
    a.e("s_lshr_b32 s5, s2, 3")
    if cfg.get("epf", True):
        PFW = cfg.get("pfwave", 7)
        a.e(f"s_cmp_eq_u32 s3, {PFW}")
        a.e("s_cbranch_scc0 L_NOPF")
        a.e("s_getpc_b64 s[74:75]")
        a.label("L_PC")
        a.raw("  .set CODE_REM, L_CODE_END - L_PC")
        a.e("s_mul_i32 s76, s5, 5")
        a.e("v_add_u32 v74, s76, v2")
        a.e("v_lshlrev_b32 v74, 7, v74")
        a.e(f"v_cmp_gt_u32 vcc, CODE_REM, v74")
        a.e("v_cndmask_b32 v74, 0, v74, vcc")
        a.e("s_mov_b64 exec, 31")
        a.e(f"global_load_dword v30, v74, s[74:75]")
        a.e("s_mov_b64 exec, -1")
        a.label("L_NOPF")
    a.e("s_lshl_b32 s10, s4, 6")
    a.e("s_lshl_b32 s11, s5, 1")
    a.e("s_add_u32 s10, s10, s11")
    MQ = 96
    a.e(f"s_and_b32 s{MQ}, s3, 3")
    a.e("s_lshr_b32 s7, s3, 2")
    a.e(f"s_xor_b32 s6, s{MQ}, s7")
    a.e("s_and_b32 s8, s6, 1")
    a.e("s_lshr_b32 s9, s6, 1")
    a.e("v_lshlrev_b32 v69, 4, v2")
    a.e("s_lshl_b32 s11, s5, 16")
    a.e("s_lshl_b32 s12, s4, 7")
    a.e("s_add_u32 s11, s11, s12")
    a.e("s_getreg_b32 s97, hwreg(HW_REG_XCC_ID, 0, 4)")
    a.e("s_cmp_eq_u32 s7, 0")
    a.e("s_cbranch_scc1 L_KISSUE")
    a.e("v_lshrrev_b32 v67, 3, v2")
    a.e("v_and_b32 v68, 7, v2")
    a.e("v_lshlrev_b32 v5, 10, v67")
    a.e("v_lshl_add_u32 v5, v68, 4, v5")
    a.e(f"s_lshl_b32 s12, s{MQ}, 14")
    a.e("s_add_u32 s12, s12, s11")
    a.e("v_add_u32 v5, s12, v5")
    a.e("v_add_u32 v7, 8192, v5")
    a.e("v_subrev_u32 v6, 8192, v5")
    a.e("v_bfe_u32 v70, v0, 3, 5")
    a.e("v_and_b32 v71, 7, v0")
    a.e("v_lshlrev_b32 v72, 11, v70")
    a.e("v_lshl_add_u32 v72, v71, 4, v72")
    a.e("v_add_u32 v72, s11, v72")
    a.e("s_lshl_b32 s14, s4, 9")
    a.e("v_add_u32 v73, s14, v69")
    a.e(f"s_lshl_b32 s13, s{MQ}, 11")
    a.e("s_waitcnt lgkmcnt(0)")
    a.e("s_mov_b32 s56, s18"); a.e("s_and_b32 s57, s19, 0xffff"); a.e("s_mov_b32 s58, 0x200000"); a.e("s_mov_b32 s59, 0x20000")
    VR = 120
    a.e("s_cmp_eq_u32 s3, 4")
    a.e("s_cbranch_scc0 L_X1")
    a.e(f"s_mov_b32 m0, {KT}")
    a.e("s_nop 0")
    a.e("buffer_load_dwordx4 v6, s[56:59], 0 offen lds")
    a.e("s_branch L_X2")
    a.label("L_X1")
    a.e("s_cmp_eq_u32 s3, 5")
    a.e("s_cbranch_scc0 L_X2")
    a.e("s_mov_b32 exec_hi, 0")
    a.e(f"s_mov_b32 m0, {SKT}")
    a.e("s_nop 0")
    a.e("global_load_lds_dwordx4 v73, s[22:23]")
    a.e("s_mov_b32 exec_hi, -1")
    a.label("L_X2")
    a.e(f"s_add_u32 m0, s13, {KT + 1024}")
    a.e("s_nop 0")
    a.e("buffer_load_dwordx4 v5, s[56:59], 0 offen lds")
    a.e(f"s_add_u32 m0, s13, {KT + 2048}")
    a.e("s_nop 0")
    a.e("buffer_load_dwordx4 v7, s[56:59], 0 offen lds")
    a.e(f"global_load_dwordx4 v[{VR}:{VR+3}], v72, s[20:21]")
    a.e(f"global_load_dwordx4 v[{VR+4}:{VR+7}], v72, s[20:21] offset:1024")
    a.e(f"s_add_u32 m0, s13, {QT}")
    a.e("s_nop 0")
    a.e("global_load_lds_dwordx4 v5, s[16:17]")
    a.e(f"s_add_u32 m0, s13, {QT + 1024}")
    a.e("s_nop 0")
    a.e("global_load_lds_dwordx4 v7, s[16:17]")
    a.e("s_branch L_COMMON")
    a.label("L_KISSUE")
    GQ0, GQ1, GW = 100, 104, 108
    EPV = 30
    a.e("s_lshl_b32 s15, s10, 8")
    a.e("v_add_u32 v72, s15, v69")
    a.e("s_lshl_b32 s12, s2, 3")
    a.e(f"s_lshl_b32 s13, s{MQ}, 1")
    a.e("s_add_u32 s12, s12, s13")
    a.e("s_lshl_b32 s13, s12, 10")
    a.e("v_add_u32 v73, s13, v69")
    a.e("s_lshl_b32 s79, s10, 1")
    a.e("s_waitcnt lgkmcnt(0)")
    a.e("s_load_dword s76, s[42:43], s79")
    a.e("s_mov_b32 exec_hi, 0")
    for wv, arrs in enumerate(((0, 1), (2, 3), (4,), (5,))):
        a.e(f"s_cmp_eq_u32 s{MQ}, {wv}")
        a.e(f"s_cbranch_scc0 L_KP{wv}")
        for ar in arrs:
            a.e(f"s_mov_b32 m0, {PAR + 512*ar}")
            a.e("s_nop 0")
            a.e(f"global_load_lds_dwordx4 v72, s[{30+2*ar}:{31+2*ar}]")
        a.e("s_branch L_KP4")
        a.label(f"L_KP{wv}")
    a.label("L_KP4")
    a.e("s_mov_b64 exec, -1")
    a.e(f"global_load_dwordx4 v[{GQ0}:{GQ0+3}], v73, s[16:17]")
    a.e(f"global_load_dwordx4 v[{GQ1}:{GQ1+3}], v73, s[16:17] offset:1024")
    a.e(f"global_load_dwordx4 v[{GW}:{GW+3}], v69, s[46:47]")
    a.e("s_cmp_eq_u32 s3, 3")
    a.e("s_cbranch_scc0 L_COMMON")
    a.e("v_subrev_u32 v74, 1, v2")
    a.e("v_lshlrev_b32 v74, 21, v74")
    a.e(f"v_mov_b32 v75, {WS_EP}")
    a.e("v_cmp_eq_u32 vcc, 0, v2")
    a.e("v_cndmask_b32 v74, v74, v75, vcc")
    a.e("s_mov_b64 exec, 7")
    a.e(f"global_load_dword v{EPV}, v74, s[52:53] sc1")
    a.e("s_mov_b64 exec, -1")
    a.label("L_COMMON")
    a.e("s_mov_b32 s60, s52"); a.e("s_and_b32 s61, s53, 0xffff"); a.e(f"s_mov_b32 s62, {WS_USED}"); a.e("s_mov_b32 s63, 0x20000")
    a.e("s_mov_b32 s64, s48"); a.e("s_and_b32 s65, s49, 0xffff"); a.e("s_mov_b32 s66, 0x200000"); a.e("s_mov_b32 s67, 0x20000")
    a.e("s_mov_b32 s68, s24"); a.e("s_and_b32 s69, s25, 0xffff"); a.e("s_mov_b32 s70, 0x200000"); a.e("s_mov_b32 s71, 0x20000")
    a.e("s_lshl_b32 s79, s10, 1")
    a.e("s_load_dword s76, s[42:43], s79")
    a.e("s_load_dword s100, s[26:27], s79")
    a.e("s_load_dword s101, s[44:45], s79")
    ONES, MLO, MHI = 21, 28, 27
    a.e(f"v_mov_b32 v{ONES}, 0x3f803f80")
    a.e(f"v_mov_b32 v{MLO}, 0xffff")
    a.e(f"v_mov_b32 v{MHI}, 0xffff0000")
    J, Q4 = 64, 65
    a.e(f"v_and_b32 v{J}, 15, v2")
    a.e(f"v_lshrrev_b32 v{Q4}, 4, v2")
    a.e("s_lshl_b32 s13, s10, 12")
    a.e("v_lshlrev_b32 v4, 4, v0")
    a.e("v_add_u32 v13, s13, v4")
    vB, vX, vQ, vG, vPX, vGW, vCMB, vOUT = 8, 9, 10, 11, 12, 14, 15, 16
    vA = [17, 18, 19, 20]
    SQL, SQH, ONEF, SG, DF = 22, 23, 24, 25, 26
    vXL = 3
    CPRE = cfg.get("CPRE", 8)
    def areg(cidx, rho): return 4 * (cidx * 4 + rho)
    def aloads():
        for cidx in range(CPRE):
            for rho in range(4):
                r = areg(cidx, rho); o = 128 * (cidx & 1) + 16 * rho; va = vA[cidx >> 1]
                a.e(f"ds_read2_b32 a[{r}:{r+1}], v{va} offset0:{o} offset1:{o+1}")
                a.e(f"ds_read2_b32 a[{r+2}:{r+3}], v{va} offset0:{o+2} offset1:{o+3}")
    a.e(f"s_mul_i32 s77, s6, {XRS}")
    a.e(f"s_add_u32 s77, s77, {XR0}")
    a.e("s_lshl_b32 s78, s7, 8")
    a.e("s_add_u32 s78, s78, s77")
    a.e("s_add_u32 s78, s78, 480")
    a.e(f"v_lshlrev_b32 v62, 5, v{J}")
    a.e(f"v_lshlrev_b32 v{vB}, 4, v{Q4}")
    a.e(f"v_sub_u32 v{vB}, v{vB}, v62")
    a.e(f"v_add_u32 v{vB}, s78, v{vB}")
    a.e(f"v_lshl_add_u32 v63, v{Q4}, 3, v62")
    a.e("s_add_u32 s78, s77, 504")
    a.e(f"v_sub_u32 v{vX}, s78, v63")
    vPAD = 29
    a.e("s_add_u32 s78, s77, 4096")
    a.e(f"v_lshlrev_b32 v{vPAD}, 3, v2")
    a.e(f"v_add_u32 v{vPAD}, s78, v{vPAD}")
    a.e("s_or_b32 s78, s6, 1")
    a.e(f"s_mul_i32 s78, s78, {XRS}")
    a.e(f"s_add_u32 s78, s78, {XR0 + 504}")
    a.e(f"v_sub_u32 v{vQ}, s78, v63")
    a.e(f"v_lshlrev_b32 v62, 1, v63")
    a.e(f"v_add_u32 v{vG}, {GM}, v62")
    a.e("s_lshl_b32 s78, s6, 13")
    a.e(f"s_add_u32 s78, s78, {PX}")
    a.e(f"v_add_u32 v{vPX}, s78, v69")
    a.e("s_lshl_b32 s78, s6, 12")
    a.e(f"s_add_u32 s78, s78, {GAB}")
    a.e(f"v_add_u32 v{vGW}, s78, v63")
    a.e("s_lshl_b32 s78, s6, 6")
    a.e(f"v_add_u32 v62, s78, v2")
    a.e(f"v_lshlrev_b32 v{vCMB}, 1, v62")
    a.e(f"v_add_u32 v{vCMB}, {GAB}, v{vCMB}")
    a.e(f"v_lshlrev_b32 v{vOUT}, 10, v62")
    a.e("s_lshl_b32 s78, s10, 1")
    a.e(f"v_add_u32 v{vOUT}, s78, v{vOUT}")
    a.e("s_lshl_b32 s78, s7, 7")
    a.e("s_sub_u32 s78, s78, 15")
    a.e(f"v_lshl_add_u32 v62, v{Q4}, 3, v{J}")
    a.e("v_add_u32 v62, s78, v62")
    a.e("v_lshlrev_b32 v62, 1, v62")
    a.e(f"s_mul_i32 s78, s6, {KCS}")
    a.e(f"s_add_u32 s78, s78, {KC0 + 32}")
    a.e(f"v_and_b32 v63, 1, v{J}")
    a.e(f"v_cmp_eq_u32 vcc, 1, v63")
    a.e(f"v_mov_b32 v63, {4160 - 2}")
    a.e(f"v_cndmask_b32 v63, v63, 0, vcc")
    a.e(f"v_add3_u32 v{vA[0]}, v62, v63, s78")
    for i in range(1, 4): a.e(f"v_add_u32 v{vA[i]}, {1024*i}, v{vA[0]}")
    a.e("v_lshrrev_b32 v62, 8, v0")
    a.e(f"v_mul_u32_u24 v62, {2*XRS}, v62")
    a.e("v_and_b32 v63, 255, v0")
    a.e(f"v_lshl_add_u32 v{vXL}, v63, 4, v62")
    a.e(f"v_add_u32 v{vXL}, {XR0}, v{vXL}")
    a.e(f"v_mov_b32 v{ONEF}, 1.0")
    a.e("s_cmp_eq_u32 s8, 0")
    a.e("s_mov_b32 s78, 0x03020100")
    a.e("s_cselect_b32 s77, 0x05040c0c, s78");  a.e(f"v_mov_b32 v{SQL}, s77")
    a.e("s_cselect_b32 s77, 0x07060c0c, s78");  a.e(f"v_mov_b32 v{SQH}, s77")
    a.e("s_mov_b32 s78, 0x07060c0c")
    a.e("s_cselect_b32 s77, 0x05040c0c, s78");  a.e(f"v_mov_b32 v{SG}, s77")
    a.e("v_mov_b32 v5, 0") if False else None
    a.e("s_cmp_eq_u32 s7, 0")
    a.e("s_cbranch_scc1 L_KPATH")
    vRC, vSKA, vTR, vXS = 31, 1, 5, 6
    a.e("v_bfe_u32 v70, v0, 3, 5")
    a.e("v_and_b32 v71, 7, v0")
    a.e(f"v_lshlrev_b32 v{vRC}, 8, v70")
    a.e(f"v_lshl_add_u32 v{vRC}, v71, 4, v{vRC}")
    a.e(f"v_lshlrev_b32 v{vSKA}, 6, v71")
    a.e(f"v_lshrrev_b32 v72, 2, v{J}")
    a.e(f"v_and_b32 v73, 3, v{J}")
    a.e(f"v_lshlrev_b32 v75, 3, v{Q4}")
    a.e("v_add_u32 v76, 3, v75")
    a.e("v_sub_u32 v76, v76, v72")
    a.e("v_lshlrev_b32 v76, 7, v76")
    a.e("v_lshl_add_u32 v76, v73, 3, v76")
    a.e(f"s_lshl_b32 s77, s{MQ}, 5")
    a.e(f"v_add_u32 v{vTR}, s77, v76")
    a.e("s_lshl_b32 s77, s4, 18")
    a.e(f"s_lshl_b32 s78, s{MQ}, 16")
    a.e("s_add_u32 s77, s77, s78")
    a.e("s_add_u32 s77, s77, 4016")
    a.e("s_lshl_b32 s78, s5, 7")
    a.e("s_sub_u32 s77, s77, s78")
    a.e(f"v_lshlrev_b32 v{vXS}, 12, v{J}")
    a.e("v_lshlrev_b32 v76, 1, v75")
    a.e(f"v_sub_u32 v{vXS}, v{vXS}, v76")
    a.e(f"v_add_u32 v{vXS}, s77, v{vXS}")
    a.e("v_and_b32 v32, 127, v0")
    a.e("v_bfe_u32 v33, v0, 7, 1")
    a.e("v_lshlrev_b32 v34, 8, v33")
    a.e("v_lshl_add_u32 v34, v32, 1, v34")
    TA = 35
    a.e(f"v_mul_u32_u24 v{TA}, {TABSZ}, v33")
    a.e(f"v_lshl_add_u32 v{TA}, v32, 2, v{TA}")
    a.e(f"v_add_u32 v{TA}, {TAB0}, v{TA}")
    a.e("s_waitcnt lgkmcnt(0)")
    a.stamp(1)
    a.e("s_barrier")
    PR = 66
    for i in range(6): tp = a.e(f"ds_read_u16_d16_hi v{PR+i}, v34 offset:{PAR + 512*i}")
    Are, Aim, Bre, Bim, Cre, Cim = [PR + i for i in range(6)]
    DT, RHO, PHI = 72, 73, 74
    C = 76
    a.e("v_bfe_u32 v75, v0, 7, 1")
    a.e("v_lshlrev_b32 v75, 4, v75")
    a.e(f"v_lshrrev_b32 v{DT}, v75, s76") if False else None
    a.e(f"v_mov_b32 v{DT}, s76")
    a.e(f"v_lshrrev_b32 v{DT}, v75, v{DT}")
    a.e(f"v_lshlrev_b32 v{DT}, 16, v{DT}")
    a.e(f"v_mul_f32 v{DT}, 0x{LOG2E:08x}, v{DT}")
    a.e(f"v_exp_f32 v{DT}, v{DT}")
    a.e(f"v_cvt_pk_bf16_f32 v{DT}, 0, v{DT}")
    a.wait_ds(tp)
    a.e(f"v_mul_f32 v{RHO}, v{DT}, v{Are}")
    a.e(f"v_mul_f32 v{PHI}, v{DT}, v{Aim}")
    a.e(f"v_mul_f32 v{RHO}, 0x{LOG2E:08x}, v{RHO}")
    a.e(f"v_mul_f32 v{PHI}, 0.15915494, v{PHI}")
    a.e(f"v_mul_f32 v{Bre}, v{DT}, v{Bre}")
    a.e(f"v_mul_f32 v{Bim}, v{DT}, v{Bim}")
    a.e(f"v_mul_f32 v{C}, v{Cre}, v{Bre}")
    a.e(f"v_mul_f32 v{C+1}, v{Cre}, v{Bim}")
    a.e(f"v_fma_f32 v{C}, -v{Cim}, v{Bim}, v{C}")
    a.e(f"v_fma_f32 v{C+1}, v{Cim}, v{Bre}, v{C+1}")
    Z4, Z128, S3, Z8, W = 80, 84, 86, 88, 90
    TMP = [100, 102, 104, 106, 108, 110]
    PT = [112, 113, 114, 115]
    pw = [(Z4, 4), (Z128, 128), (S3, 1024)]
    for i, (dst, m) in enumerate(pw):
        a.e(f"v_mul_f32 v{TMP[0]+i}, 0x{fbits(m):08x}, v{RHO}")
        a.e(f"v_mul_f32 v{TMP[3]+i}, 0x{fbits(m):08x}, v{PHI}")
    for i, (dst, m) in enumerate(pw):
        a.e(f"v_exp_f32 v{TMP[0]+i}, v{TMP[0]+i}")
        a.e(f"v_fract_f32 v{TMP[3]+i}, v{TMP[3]+i}")
    for i, (dst, m) in enumerate(pw):
        a.e(f"v_cos_f32 v{dst}, v{TMP[3]+i}")
        a.e(f"v_sin_f32 v{dst+1}, v{TMP[3]+i}")
    for i, (dst, m) in enumerate(pw):
        a.e(f"v_mul_f32 v{dst}, v{TMP[0]+i}, v{dst}")
        a.e(f"v_mul_f32 v{dst+1}, v{TMP[0]+i}, v{dst+1}")
    pti2 = [0]
    def putx(entry, pair, neg):
        tmp = PT[pti2[0] % 4]; pti2[0] += 1
        a.e(f"v_cvt_pk_bf16_f32 v{tmp}, v{pair}, {'-' if neg else ''}v{pair+1}")
        a.e(f"ds_write_b32 v{TA}, v{tmp} offset:{entry*ENT}")
    cmul(a, Z8, Z4, Z4, TMP[0])
    cmul(a, S3, S3, C, TMP[1])
    W1 = 92
    a.e(f"v_mov_b32 v{W}, 1.0"); a.e(f"v_mov_b32 v{W+1}, 0")
    a.e(f"v_mov_b32 v{W1}, v{Z4}"); a.e(f"v_mov_b32 v{W1+1}, v{Z4+1}")
    putx(0, W, False); putx(1, W1, False); putx(24 + 32, S3, True)
    for st in range(1, 16):
        cmul(a, W, W, Z8, TMP[0])
        if st <= 7: cmul(a, W1, W1, Z8, TMP[2])
        if st <= 8: cmul(a, S3, S3, Z128, TMP[1])
        putx(2 * st if st < 8 else 16 + (st - 8), W, False)
        if st <= 7: putx(2 * st + 1, W1, False)
        if st <= 8: putx(24 + 32 + st, S3, True)
    a.e("s_waitcnt vmcnt(2) lgkmcnt(0)")
    a.ds_done = a.ds_issued
    a.stamp(2)
    a.e("s_barrier")
    KR, SK, MK, PA, PB, XX = 32, 52, 68, 100, 108, 52
    for i in range(5): a.e(f"ds_read_b128 v[{KR+4*i}:{KR+4*i+3}], v{vRC} offset:{KT + (5+i)*128}")
    for i in range(4): tsk = a.e(f"ds_read_b128 v[{SK+4*i}:{SK+4*i+3}], v{vSKA} offset:{SKT + 16*i}")
    a.e("s_cmp_eq_u32 s8, 0")
    a.e("s_cselect_b32 s77, s100, s101")
    a.e("s_lshl_b32 s78, s9, 4")
    a.e("s_lshr_b32 s77, s77, s78")
    a.e("s_lshl_b32 s77, s77, 16")
    a.e(f"v_mov_b32 v{DF}, s77")
    a.wait_ds(tsk)
    chains = [(m, ci) for m in range(4) for ci in range(2)]
    for tau in range(4):
        for idx, (m, ci) in enumerate(chains):
            cch = 2 * m + ci; src = SK + 2 * cch + (tau >> 1); dst = MK + 8 * tau + idx
            if ci == 0:
                if tau & 1: a.e(f"v_lshrrev_b32 v{dst}, 16, v{src}")
                else: a.e(f"v_and_b32 v{dst}, v{MLO}, v{src}")
            else:
                if tau & 1: a.e(f"v_and_b32 v{dst}, v{MHI}, v{src}")
                else: a.e(f"v_lshlrev_b32 v{dst}, 16, v{src}")
    for row in range(2):
        def prod(dst, tau):
            for idx, (m, ci) in enumerate(chains):
                a.e(f"v_dot2_f32_bf16 v{dst+idx}, v{KR+4*(3-tau+row)+m}, v{MK+8*tau+idx}, 0")
        prod(PA, 3)
        for tau in (2, 1, 0):
            prod(PB, tau)
            for idx in range(8): a.e(f"v_cvt_pk_bf16_f32 v{XX+idx}, v{PA+idx}, v{PB+idx}")
            for idx in range(8): a.e(f"v_dot2_f32_bf16 v{PA+idx}, v{XX+idx}, v{ONES}, 0")
        Vr = VR + 4 * row
        for m in range(4):
            a.e(f"v_and_b32 v{XX+2*m}, v{MLO}, v{Vr+m}")
            a.e(f"v_and_b32 v{XX+2*m+1}, v{MHI}, v{Vr+m}")
        for m in range(4): a.e(f"v_cvt_pk_bf16_f32 v{PB+m}, v{PA+2*m}, v{PA+2*m+1}")
        for m in range(4):
            a.e(f"v_dot2_f32_bf16 v{PA+2*m}, v{PB+m}, v{XX+2*m}, 0")
            a.e(f"v_dot2_f32_bf16 v{PA+2*m+1}, v{PB+m}, v{XX+2*m+1}, 0")
        KVR = 116
        for m in range(4): a.e(f"v_cvt_pk_bf16_f32 v{KVR+m}, v{PA+2*m}, v{PA+2*m+1}")
        a.e(f"ds_write_b128 v{vRC}, v[{KVR}:{KVR+3}] offset:{KVT + 128*row}")
    a.e("s_waitcnt vmcnt(0) lgkmcnt(0)")
    a.ds_done = a.ds_issued
    a.stamp(3)
    a.e("s_barrier")
    XO = 32
    def tr_and_store(sc, base_q, base_kv):
        toks = []
        for ai, T in enumerate((KVT, QT)):
            for blk in range(2):
                r = XO + 8 * ai + 4 * blk
                a.e(f"ds_read_b64_tr_b16 v[{r}:{r+1}], v{vTR} offset:{T + 4096*blk + 512}")
                toks.append(a.e(f"ds_read_b64_tr_b16 v[{r+2}:{r+3}], v{vTR} offset:{T + 4096*blk}"))
        a.e(f"s_mov_b32 s77, {base_kv}")
        a.e(f"s_mov_b32 s78, {base_q}")
        for ai in range(2):
            for blk in range(2):
                r = XO + 8 * ai + 4 * blk
                a.wait_ds(toks[2 * ai + blk])
                a.e(f"buffer_store_dwordx4 v[{r}:{r+3}], v{vXS}, s[60:63], s{77+ai} offen offset:{64*(1-blk)}{sc}")
    tr_and_store("", WS_XQ, WS_XKV)
    a.e("s_cmp_eq_u32 s8, 0")
    a.e("s_cbranch_scc0 L_XNOAL")
    aloads()
    a.label("L_XNOAL")
    a.e("s_waitcnt vmcnt(0)")
    a.stamp(4)
    a.e("s_barrier")
    a.e("s_branch L_JOIN")
    a.label("L_KPATH")
    a.e("v_mov_b32 v5, 0"); a.e("v_mov_b32 v6, -1")
    a.e("v_and_b32 v32, 127, v0")
    a.e("v_bfe_u32 v33, v0, 7, 1")
    a.e("v_lshlrev_b32 v34, 8, v33")
    a.e("v_lshl_add_u32 v34, v32, 1, v34")
    TA = 35
    a.e(f"v_mul_u32_u24 v{TA}, {TABSZ}, v33")
    a.e(f"v_lshl_add_u32 v{TA}, v32, 2, v{TA}")
    a.e(f"v_add_u32 v{TA}, {TAB0}, v{TA}")
    XA = 36
    a.e("v_and_b32 v45, 255, v0")
    a.e("v_lshlrev_b32 v45, 3, v45")
    for k in range(5):
        a.e(f"v_add_u32 v46, {2*k}, v45")
        a.e(f"v_add_u32 v47, {2*k+1}, v45")
        a.e("v_cvt_f32_u32 v46, v46")
        a.e("v_cvt_f32_u32 v47, v47")
        a.e("v_cvt_pk_bf16_f32 v46, v46, v47")
        a.e(f"v_and_b32 v47, v{MHI}, v46")
        a.e("v_lshlrev_b32 v46, 16, v46")
        a.e("v_cvt_u32_f32 v46, v46")
        a.e(f"v_lshlrev_b32 v{XA+2*k}, 1, v46")
        a.e(f"v_add_u32 v{XA+2*k}, {F0}, v{XA+2*k}")
        if k < 4:
            a.e("v_cvt_u32_f32 v47, v47")
            a.e(f"v_lshlrev_b32 v{XA+2*k+1}, 1, v47")
            a.e(f"v_add_u32 v{XA+2*k+1}, {F0}, v{XA+2*k+1}")
    vKW = 31
    a.e(f"v_lshlrev_b32 v{vKW}, 1, v45")
    a.e(f"v_add_u32 v{vKW}, {KC0+32}, v{vKW}")
    vSS = 46
    a.e(f"v_lshlrev_b32 v{vSS}, 1, v45")
    a.e(f"v_add_u32 v{vSS}, s13, v{vSS}")
    a.e("s_cmp_eq_u32 s3, 3")
    a.e("s_cbranch_scc0 L_KW1")
    a.e("s_waitcnt vmcnt(4) lgkmcnt(0)")
    a.e("s_branch L_KW2")
    a.label("L_KW1")
    a.e("s_waitcnt vmcnt(3) lgkmcnt(0)")
    a.label("L_KW2")
    a.stamp(1)
    a.e("s_barrier")
    T0a, T1a, T0b, T1b = 48, 52, 56, 60
    a.e(f"buffer_load_dwordx4 v[{T0a}:{T0a+3}], v{vSS}, s[68:71], 0 offen")
    a.e(f"buffer_load_dwordx4 v[{T1a}:{T1a+3}], v{vSS}, s[68:71], 0 offen offset:4")
    a.e("s_mov_b32 s77, 4096")
    a.e(f"buffer_load_dwordx4 v[{T0b}:{T0b+3}], v{vSS}, s[68:71], s77 offen")
    a.e(f"buffer_load_dwordx4 v[{T1b}:{T1b+3}], v{vSS}, s[68:71], s77 offen offset:4")
    PR = 66
    for i in range(6): tp = a.e(f"ds_read_u16_d16_hi v{PR+i}, v34 offset:{PAR + 512*i}")
    Are, Aim, Bre, Bim, Cre, Cim = [PR + i for i in range(6)]
    DT, RHO, PHI = 72, 73, 74
    C = 76
    a.e("v_bfe_u32 v75, v0, 7, 1")
    a.e("v_lshlrev_b32 v75, 4, v75")
    a.e(f"v_lshrrev_b32 v{DT}, v75, s76") if False else None
    a.e(f"v_mov_b32 v{DT}, s76")
    a.e(f"v_lshrrev_b32 v{DT}, v75, v{DT}")
    a.e(f"v_lshlrev_b32 v{DT}, 16, v{DT}")
    a.e(f"v_mul_f32 v{DT}, 0x{LOG2E:08x}, v{DT}")
    a.e(f"v_exp_f32 v{DT}, v{DT}")
    a.e(f"v_cvt_pk_bf16_f32 v{DT}, 0, v{DT}")
    a.wait_ds(tp)
    a.e(f"v_mul_f32 v{RHO}, v{DT}, v{Are}")
    a.e(f"v_mul_f32 v{PHI}, v{DT}, v{Aim}")
    a.e(f"v_mul_f32 v{RHO}, 0x{LOG2E:08x}, v{RHO}")
    a.e(f"v_mul_f32 v{PHI}, 0.15915494, v{PHI}")
    a.e(f"v_mul_f32 v{Bre}, v{DT}, v{Bre}")
    a.e(f"v_mul_f32 v{Bim}, v{DT}, v{Bim}")
    a.e(f"v_mul_f32 v{C}, v{Cre}, v{Bre}")
    a.e(f"v_mul_f32 v{C+1}, v{Cre}, v{Bim}")
    a.e(f"v_fma_f32 v{C}, -v{Cim}, v{Bim}, v{C}")
    a.e(f"v_fma_f32 v{C+1}, v{Cim}, v{Bre}, v{C+1}")
    Z1, Z64 = 78, 82
    VV = [92, 94, 96, 98]
    TMP = [112, 114, 116, 118, 120, 122]
    PT = [124, 125, 126, 127]
    pw = [(Z1, 1), (Z64, 64)]
    for i, (dst, m) in enumerate(pw):
        a.e(f"v_mul_f32 v{TMP[0]+i}, 0x{fbits(m):08x}, v{RHO}")
        a.e(f"v_mul_f32 v{TMP[3]+i}, 0x{fbits(m):08x}, v{PHI}")
    for i, (dst, m) in enumerate(pw):
        a.e(f"v_exp_f32 v{TMP[0]+i}, v{TMP[0]+i}")
        a.e(f"v_fract_f32 v{TMP[3]+i}, v{TMP[3]+i}")
    for i, (dst, m) in enumerate(pw):
        a.e(f"v_cos_f32 v{dst}, v{TMP[3]+i}")
        a.e(f"v_sin_f32 v{dst+1}, v{TMP[3]+i}")
    for i, (dst, m) in enumerate(pw):
        a.e(f"v_mul_f32 v{dst}, v{TMP[0]+i}, v{dst}")
        a.e(f"v_mul_f32 v{dst+1}, v{TMP[0]+i}, v{dst+1}")
    pti = [0]
    def put(entry, pair, neg):
        tmp = PT[pti[0] % 4]; pti[0] += 1
        a.e(f"v_cvt_pk_bf16_f32 v{tmp}, v{pair}, {'-' if neg else ''}v{pair+1}")
        a.e(f"ds_write_b32 v{TA}, v{tmp} offset:{entry*ENT}")
    a.e(f"v_mov_b32 v{VV[0]}, v{C}"); a.e(f"v_mov_b32 v{VV[0]+1}, v{C+1}")
    cmul(a, VV[1], VV[0], Z1, TMP[2])
    cmul(a, VV[2], VV[1], Z1, TMP[2])
    cmul(a, VV[3], VV[2], Z1, TMP[2])
    for i in range(16):
        ps = [0, 1, 2, 3] if i < 4 else ([0, 2] if i < 8 else [0])
        if i > 0:
            for p in ps: cmul(a, VV[p], VV[p], Z64, TMP[2 + p])
        for p in ps:
            if i < 4: ent = 24 + 4 * i + p
            elif i < 8: ent = 24 + 16 + 2 * (i - 4) + p // 2
            else: ent = 24 + 16 + i
            put(ent, VV[p], True)
    a.e("s_waitcnt vmcnt(4)")
    T = 66
    for m in range(4):
        a.e(f"v_and_b32 v{T+2*m}, v{MLO}, v{GW+m}")
        a.e(f"v_and_b32 v{T+2*m+1}, v{MHI}, v{GW+m}")
    GA = [90, 91]
    for ri, GQ in enumerate((GQ0, GQ1)):
        U = 74 + 8 * ri
        for m in range(4):
            a.e(f"v_dot2_f32_bf16 v{U+2*m}, v{GQ+m}, v{T+2*m}, 0")
            a.e(f"v_dot2_f32_bf16 v{U+2*m+1}, v{GQ+m}, v{T+2*m+1}, 0")
    for ri in range(2):
        U = 74 + 8 * ri
        for m in range(4): a.e(f"v_cvt_pk_bf16_f32 v{92+4*ri+m}, v{U+2*m}, v{U+2*m+1}")
    for ri in range(2):
        U = 74 + 8 * ri
        for m in range(4):
            a.e(f"v_lshlrev_b32 v{U+2*m}, 16, v{92+4*ri+m}")
            a.e(f"v_and_b32 v{U+2*m+1}, v{MHI}, v{92+4*ri+m}")
    for ri in range(2):
        U = 74 + 8 * ri
        for m in range(4): a.e(f"v_add_f32 v{U+2*m}, v{U+2*m}, v{U+2*m+1}")
    for ri in range(2):
        U = 74 + 8 * ri
        a.e(f"v_add_f32 v{U}, v{U}, v{U+2}")
        a.e(f"v_add_f32 v{U+4}, v{U+4}, v{U+6}")
    for ri in range(2):
        U = 74 + 8 * ri
        a.e(f"v_add_f32 v{GA[ri]}, v{U}, v{U+4}")
    for sh in (1, 2, 4, 8):
        for ri in range(2): a.e(f"v_add_f32_dpp v{GA[ri]}, v{GA[ri]}, v{GA[ri]} row_shr:{sh} row_mask:0xf bank_mask:0xf bound_ctrl:0")
    for ri in range(2): a.e(f"v_add_f32_dpp v{GA[ri]}, v{GA[ri]}, v{GA[ri]} row_bcast:15 row_mask:0xa bank_mask:0xf")
    for ri in range(2): a.e(f"v_add_f32_dpp v{GA[ri]}, v{GA[ri]}, v{GA[ri]} row_bcast:31 row_mask:0xc bank_mask:0xf")
    for ri in range(2): a.e(f"v_cvt_pk_bf16_f32 v{GA[ri]}, 0, v{GA[ri]}")
    for ri in range(2): a.e(f"v_mul_f32 v{GA[ri]}, 0x{LOG2E ^ 0x80000000:08x}, v{GA[ri]}")
    for ri in range(2): a.e(f"v_exp_f32 v{GA[ri]}, v{GA[ri]}")
    for ri in range(2): a.e(f"v_add_f32 v{GA[ri]}, 1.0, v{GA[ri]}")
    for ri in range(2): a.e(f"v_rcp_f32 v{GA[ri]}, v{GA[ri]}")
    for ri in range(2): a.e(f"v_cvt_pk_bf16_f32 v{GA[ri]}, 0, v{GA[ri]}")
    for ri in range(2): a.e(f"v_sub_f32 v{92+ri}, 1.0, v{GA[ri]}")
    for ri in range(2): a.e(f"v_cvt_pk_bf16_f32 v{94+ri}, v{GA[ri]}, v{92+ri}")
    a.e("s_lshl_b32 s77, s12, 2")
    a.e(f"s_add_u32 s77, s77, {WS_GP}")
    a.e("v_mov_b32 v96, s77")
    a.e("s_mov_b32 exec_lo, 0")
    a.e("s_mov_b32 exec_hi, 0x80000000")
    a.e("buffer_store_dwordx2 v[94:95], v96, s[60:63], 0 offen sc1")
    a.e("s_mov_b64 exec, -1")
    a.wait_ds_all()
    a.stamp(2)
    a.e("s_barrier")
    if cfg.get("pretouch", True):
        a.e("s_cmp_eq_u32 s3, 1")
        a.e("s_cbranch_scc0 L_NOPT")
        a.e("s_lshl_b32 s77, s4, 18")
        a.e("s_add_u32 s77, s77, 3968")
        a.e("s_lshl_b32 s78, s5, 7")
        a.e("s_sub_u32 s77, s77, s78")
        a.e("v_lshlrev_b32 v66, 12, v2")
        a.e("v_add_u32 v66, s77, v66")
        a.e(f"s_mov_b32 s78, {WS_XKV}")
        a.e("buffer_load_dword v112, v66, s[60:63], 0 offen sc1")
        a.e("buffer_load_dword v113, v66, s[60:63], s78 offen sc1")
        a.label("L_NOPT")
    a.e(f"s_and_b32 s77, s{MQ}, 1")
    a.e(f"s_mul_i32 s78, s77, {FSZ}")
    a.e(f"s_add_u32 s79, s78, {F0}")
    a.e(f"s_mul_i32 s77, s77, {TABSZ}")
    a.e(f"s_add_u32 s77, s77, {TAB0}")
    a.e(f"v_mul_u32_u24 v66, {ENT}, v{J}")
    a.e(f"v_lshl_add_u32 v66, v{Q4}, 4, v66")
    a.e("v_add_u32 v66, s77, v66")
    a.e(f"s_cmp_gt_u32 s{MQ}, 1")
    a.e("s_cbranch_scc1 L_JOB2")
    toks = []
    for ks in range(8):
        a.e(f"ds_read_b128 a[{4*ks}:{4*ks+3}], v66 offset:{64*ks}")
        a.e(f"ds_read_b128 a[{32+4*ks}:{32+4*ks+3}], v66 offset:{24*ENT + 64*ks}")
        toks.append(a.e(f"ds_read_b128 a[{64+4*ks}:{64+4*ks+3}], v66 offset:{40*ENT + 64*ks}"))
    a.e(f"v_lshlrev_b32 v68, 6, v{Q4}")
    a.e(f"v_lshl_add_u32 v68, v{J}, 2, v68")
    a.e("v_lshlrev_b32 v68, 1, v68")
    a.e("v_add_u32 v68, s79, v68")
    a.e(f"v_cmp_gt_u32 vcc, 2, v{Q4}")
    a.e(f"v_lshlrev_b32 v74, 7, v{Q4}")
    a.e("v_add_u32 v74, 256, v74")
    a.e(f"v_lshlrev_b32 v75, 8, v{Q4}")
    a.e(f"v_cndmask_b32 v70, v75, v74, vcc")
    a.e(f"v_lshl_add_u32 v70, v{J}, 2, v70")
    for e, (o1, o2) in enumerate(((2, 64), (64, 128), (66, 192)), start=1):
        a.e(f"v_mov_b32 v74, {o2}")
        a.e(f"v_mov_b32 v75, {o1}")
        a.e(f"v_cndmask_b32 v74, v74, v75, vcc")
        a.e(f"v_add_u32 v{70+e}, v70, v74")
    for e in range(4):
        a.e(f"v_lshlrev_b32 v{70+e}, 1, v{70+e}")
        a.e(f"v_add_u32 v{70+e}, s79, v{70+e}")
    for ks in range(8):
        a.wait_ds(toks[ks])
        s0 = "0" if ks == 0 else "v[76:79]"; s1 = "0" if ks == 0 else "v[80:83]"
        a.e(f"v_mfma_f32_16x16x32_bf16 v[76:79], a[{32+4*ks}:{32+4*ks+3}], a[{4*ks}:{4*ks+3}], {s0}")
        a.e(f"v_mfma_f32_16x16x32_bf16 v[80:83], a[{64+4*ks}:{64+4*ks+3}], a[{4*ks}:{4*ks+3}], {s1}")
    a.e("v_cvt_pk_bf16_f32 v84, v76, v77")
    a.e("v_cvt_pk_bf16_f32 v85, v78, v79")
    a.e("ds_write_b64 v68, v[84:85]")
    a.e("v_cvt_pk_bf16_f32 v86, v80, v81")
    a.e("v_cvt_pk_bf16_f32 v87, v82, v83")
    a.e("ds_write_b16 v70, v86")
    a.e("ds_write_b16_d16_hi v71, v86")
    a.e("ds_write_b16 v72, v87")
    a.e("ds_write_b16_d16_hi v73, v87")
    a.e("s_branch L_JOBD")
    a.label("L_JOB2")
    a.ds_done = a.ds_issued
    a.e(f"v_lshlrev_b32 v67, 1, v{J}")
    a.e(f"v_add_u32 v68, 8, v{J}")
    a.e(f"v_cmp_gt_u32 vcc, 8, v{J}")
    a.e("v_cndmask_b32 v67, v68, v67, vcc")
    a.e(f"v_mul_u32_u24 v67, {ENT}, v67")
    a.e(f"v_lshl_add_u32 v67, v{Q4}, 4, v67")
    a.e("v_add_u32 v67, s77, v67")
    toks = []
    for ks in range(8):
        a.e(f"ds_read_b128 a[{4*ks}:{4*ks+3}], v67 offset:{64*ks}")
        toks.append(a.e(f"ds_read_b128 a[{32+4*ks}:{32+4*ks+3}], v66 offset:{56*ENT + 64*ks}"))
    a.e(f"v_lshlrev_b32 v70, 9, v{Q4}")
    a.e(f"v_lshl_add_u32 v70, v{J}, 3, v70")
    a.e("v_add_u32 v70, 1024, v70")
    a.e("v_lshlrev_b32 v70, 1, v70")
    a.e("v_add_u32 v70, s79, v70")
    for ks in range(8):
        a.wait_ds(toks[ks])
        s0 = "0" if ks == 0 else "v[76:79]"
        a.e(f"v_mfma_f32_16x16x32_bf16 v[76:79], a[{32+4*ks}:{32+4*ks+3}], a[{4*ks}:{4*ks+3}], {s0}")
    a.e("v_cvt_pk_bf16_f32 v84, v76, v77")
    a.e("v_cvt_pk_bf16_f32 v85, v78, v79")
    a.e("ds_write_b16 v70, v84")
    a.e("ds_write_b16_d16_hi v70, v84 offset:256")
    a.e("ds_write_b16 v70, v85 offset:512")
    a.e("ds_write_b16_d16_hi v70, v85 offset:768")
    a.label("L_JOBD")
    a.e("s_cmp_eq_u32 s3, 1")
    a.e("s_cbranch_scc1 L_WT6")
    a.e("s_waitcnt vmcnt(0)")
    a.e("s_branch L_WTD")
    a.label("L_WT6")
    a.e("s_waitcnt vmcnt(2)") if cfg.get("pretouch", True) else a.e("s_waitcnt vmcnt(0)")
    a.label("L_WTD")
    for chn, (T0, T1) in enumerate(((T0a, T1a), (T0b, T1b))):
        O = 104 + 4 * chn
        for jx in range(4): a.e(f"v_alignbit_b32 v{O+jx}, v{T1+jx}, v{T0+jx}, 16")
        a.e(f"ds_write_b128 v{vKW}, v[{T0}:{T0+3}] offset:{KCS*2*chn}")
        a.e(f"ds_write_b128 v{vKW}, v[{O}:{O+3}] offset:{KCS*2*chn+4160}")
    def pads(items, lab):
        a.e("s_cmp_eq_u32 s3, 0")
        a.e(f"s_cbranch_scc0 {lab}")
        a.e("v_lshlrev_b32 v112, 2, v2")
        a.e(f"v_add_u32 v112, {KC0}, v112")
        a.e("v_mov_b32 v113, 0")
        a.e("v_cmp_eq_u32 vcc, 7, v2")
        for ccx, reg in items:
            a.e(f"v_readfirstlane_b32 s77, v{reg}")
            a.e("s_nop 3")
            a.e("s_lshl_b32 s77, s77, 16")
            a.e("v_mov_b32 v114, s77")
            a.e("v_cndmask_b32 v114, 0, v114, vcc")
            a.e("s_mov_b64 exec, 0xff")
            a.e(f"ds_write_b32 v112, v113 offset:{KCS*ccx}")
            a.e(f"ds_write_b32 v112, v114 offset:{KCS*ccx+4160}")
            a.e("s_mov_b64 exec, -1")
        a.label(lab)
    pads(((0, T0a), (2, T0b)), "L_NOPADA")
    a.e("s_cmp_eq_u32 s3, 3")
    a.e("s_cbranch_scc0 L_NOEPW")
    a.e(f"v_readfirstlane_b32 s72, v{EPV}")
    a.e("s_add_u32 s72, s72, 1")
    a.e("v_mov_b32 v84, s72")
    a.e(f"v_mov_b32 v85, {EPL}")
    a.e("ds_write_b32 v85, v84")
    a.label("L_NOEPW")
    a.wait_ds_all()
    a.stamp(3)
    a.e("s_barrier")
    a.e("s_cmp_eq_u32 s3, 2")
    a.e("s_cbranch_scc0 L_NOGST")
    a.e(f"v_mov_b32 v67, {EPL}")
    a.e("ds_read_b32 v66, v67")
    a.e("s_lshl_b32 s77, s2, 3")
    a.e(f"s_add_u32 s77, s77, {WS_GF1}")
    a.e("v_mov_b32 v68, s77")
    a.e("s_waitcnt lgkmcnt(0)")
    a.e(f"v_xor_b32 v67, 0x{FLAGC:08x}, v66")
    a.e("s_mov_b64 exec, 1")
    a.e("buffer_store_dwordx2 v[66:67], v68, s[60:63], 0 offen sc1")
    a.e("s_mov_b64 exec, -1")
    a.label("L_NOGST")
    a.ds_done = a.ds_issued
    for chn in range(2):
        EL = 66 + 10 * chn
        for e in range(9): te = a.e(f"ds_read_u16 v{EL+e}, v{XA+e} offset:{FSZ*chn}")
    a.wait_ds(te)
    for chn in range(2):
        EL = 66 + 10 * chn; EE = 88 + 8 * chn; OO = EE + 4
        for k in range(4):
            a.e(f"v_lshl_or_b32 v{EE+k}, v{EL+2*k+1}, 16, v{EL+2*k}")
            a.e(f"v_lshl_or_b32 v{OO+k}, v{EL+2*k+2}, 16, v{EL+2*k+1}")
        a.e(f"ds_write_b128 v{vKW}, v[{EE}:{EE+3}] offset:{KCS*(2*chn+1)}")
        a.e(f"ds_write_b128 v{vKW}, v[{OO}:{OO+3}] offset:{KCS*(2*chn+1)+4160}")
    pads(((1, 66), (3, 76)), "L_NOPADB")
    a.e("s_cmp_eq_u32 s8, 0")
    a.e("s_cbranch_scc0 L_KNOAL")
    aloads()
    a.e("s_waitcnt lgkmcnt(15)")
    a.e("s_branch L_KAL2")
    a.label("L_KNOAL")
    a.e("s_waitcnt lgkmcnt(0)")
    a.label("L_KAL2")
    a.e("s_cmp_eq_u32 s8, 0")
    a.e("s_cselect_b32 s77, s100, s101")
    a.e("s_lshl_b32 s78, s9, 4")
    a.e("s_lshr_b32 s77, s77, s78")
    a.e("s_lshl_b32 s77, s77, 16")
    a.e(f"v_mov_b32 v{DF}, s77")
    a.stamp(4)
    a.e("s_barrier")
    a.label("L_JOIN")
    a.ds_done = a.ds_issued; a.vm_done = a.vm_issued
    a.e(f"v_mov_b32 v101, {EPL}")
    a.e("ds_read_b32 v100, v101")
    a.e("v_mov_b32 v104, 0"); a.e("v_mov_b32 v105, 0")
    a.e(f"ds_write_b64 v{vPAD}, v[104:105]")
    a.e("s_waitcnt lgkmcnt(0)")
    a.e("v_readfirstlane_b32 s72, v100")
    a.e("s_nop 3")
    a.e(f"s_xor_b32 s73, s72, 0x{FLAGC:08x}")
    a.e("s_add_u32 s97, s97, s73") if not cfg.get("force_fb") else a.e("s_add_u32 s97, s2, s73")
    a.e("s_cmp_eq_u32 s3, 7")
    a.e("s_cbranch_scc0 L_NOFLAG2")
    a.e("v_mov_b32 v120, s72")
    a.e("v_mov_b32 v121, s97")
    a.e("s_lshl_b32 s77, s4, 5")
    a.e("s_add_u32 s77, s77, s5")
    a.e("s_lshl_b32 s77, s77, 3")
    a.e(f"s_add_u32 s78, s77, {WS_LF}")
    a.e("v_mov_b32 v124, s78")
    a.e("s_mov_b64 exec, 1")
    a.e("buffer_store_dwordx2 v[120:121], v124, s[60:63], 0 offen")
    a.e("s_mov_b64 exec, -1")
    a.label("L_NOFLAG2")
    a.e("v_lshlrev_b32 v122, 5, v2")
    a.e(f"v_add_u32 v122, {WS_GF1}, v122")
    a.e("v_and_b32 v123, 31, v2")
    a.e("v_lshlrev_b32 v123, 3, v123")
    a.e("s_lshl_b32 s77, s4, 8")
    a.e(f"s_add_u32 s77, s77, {WS_LF}")
    a.e("v_add_u32 v123, s77, v123")
    a.e("s_cmp_eq_u32 s8, 0")
    a.e("s_cbranch_scc1 L_SKIPAL")
    aloads()
    a.label("L_SKIPAL")
    a.stamp(5)
    XF = cfg.get("xflag", " sc1")
    def pollG(a):
        a.e("buffer_load_dwordx4 v[112:115], v122, s[60:63], 0 offen sc1")
        a.e("buffer_load_dwordx4 v[116:119], v122, s[60:63], 0 offen offset:16 sc1")
    def checkG(a):
        for r in (112, 114, 116, 118): a.e(f"v_xor_b32 v{r}, s72, v{r}")
        for r in (113, 115, 117, 119): a.e(f"v_xor_b32 v{r}, s73, v{r}")
        a.e("v_or_b32 v112, v112, v113"); a.e("v_or_b32 v114, v114, v115"); a.e("v_or_b32 v116, v116, v117"); a.e("v_or_b32 v118, v118, v119")
        a.e("v_or_b32 v112, v112, v114"); a.e("v_or_b32 v116, v116, v118"); a.e("v_or_b32 v112, v112, v116")
    def checkL(a):
        a.e("v_xor_b32 v120, s72, v120")
        a.e("v_xor_b32 v121, s97, v121")
        a.e("v_or_b32 v120, v120, v121")
    a.e("s_cmp_eq_u32 s3, 7")
    a.e("s_cbranch_scc0 L_POLLDONE")
    a.e("s_mov_b32 s77, 0")
    a.label("L_POLL")
    pollG(a)
    a.e("buffer_load_dwordx2 v[120:121], v123, s[60:63], 0 offen sc1")
    a.e("s_waitcnt vmcnt(0)")
    checkG(a)
    checkL(a)
    a.e("v_cmp_ne_u32 vcc, 0, v120")
    a.e("v_cmp_ne_u32 s[78:79], 0, v112")
    a.e("s_add_u32 s77, s77, 1")
    a.e("s_or_b64 s[78:79], s[78:79], vcc")
    a.e("s_mov_b32 s98, 1")
    a.e("s_cmp_eq_u64 s[78:79], 0")
    a.e("s_cbranch_scc1 L_POLLOUT")
    a.e("s_cmp_eq_u64 vcc, 0")
    a.e("s_cbranch_scc1 L_POLLG")
    a.e(f"s_cmp_lt_u32 s77, {cfg.get('NA', 10)}")
    a.e("s_cbranch_scc1 L_POLL")
    a.e("s_mov_b32 s98, 2")
    a.e("s_branch L_POLLOUT")
    a.label("L_POLLG")
    a.e("s_cmp_lt_u32 s77, 20000")
    a.e("s_cbranch_scc1 L_POLL")
    a.label("L_POLLOUT")
    a.e("v_mov_b32 v120, s98")
    a.e(f"v_mov_b32 v121, {RES}")
    a.e("ds_write_b32 v121, v120")
    a.label("L_POLLDONE")
    a.wait_ds_all()
    a.vm_done = a.vm_issued
    a.stamp(8)
    a.e("s_barrier")
    a.e(f"v_mov_b32 v121, {RES}")
    a.e("ds_read_b32 v120, v121")
    a.e("s_mov_b32 s99, 0")
    a.e("s_waitcnt lgkmcnt(0)")
    a.e("v_readfirstlane_b32 s98, v120")
    a.e("s_nop 3")
    a.e("s_cmp_eq_u32 s98, 1")
    a.e("s_cbranch_scc1 L_FAST")
    a.e("s_cmp_eq_u32 s7, 0")
    a.e("s_cbranch_scc1 L_FBK")
    tr_and_store(" sc1", WS_X2 + WS_XQ, WS_X2 + WS_XKV)
    a.label("L_FBK")
    a.e("s_waitcnt vmcnt(0)")
    a.e("s_barrier")
    a.e("s_cmp_eq_u32 s3, 7")
    a.e("s_cbranch_scc0 L_FB2")
    a.e("v_mov_b32 v120, s72")
    a.e("v_mov_b32 v121, s73")
    a.e("s_lshl_b32 s77, s4, 5")
    a.e("s_add_u32 s77, s77, s5")
    a.e("s_lshl_b32 s77, s77, 3")
    a.e(f"s_add_u32 s78, s77, {WS_GF2}")
    a.e("v_mov_b32 v124, s78")
    a.e("s_mov_b64 exec, 1")
    a.e("buffer_store_dwordx2 v[120:121], v124, s[60:63], 0 offen sc1")
    a.e("s_mov_b64 exec, -1")
    a.e(f"v_add_u32 v124, {WS_GF2 - WS_LF}, v123")
    a.e("s_mov_b32 s77, 0")
    a.label("L_FBPOLL")
    pollG(a)
    a.e("buffer_load_dwordx2 v[120:121], v123, s[60:63], 0 offen sc1")
    a.e("buffer_load_dwordx2 v[126:127], v124, s[60:63], 0 offen sc1")
    a.e("s_waitcnt vmcnt(0)")
    checkG(a)
    checkL(a)
    a.e("v_xor_b32 v126, s72, v126")
    a.e("v_xor_b32 v127, s73, v127")
    a.e("v_or_b32 v126, v126, v127")
    a.e("v_cmp_ne_u32 vcc, 0, v112")
    a.e("s_add_u32 s77, s77, 1")
    a.e("s_cmp_ge_u32 s77, 20000")
    a.e("s_cbranch_scc1 L_FBGIVE")
    a.e("s_cmp_eq_u64 vcc, 0")
    a.e("s_cbranch_scc0 L_FBPOLL")
    a.e("v_cmp_ne_u32 vcc, 0, v120")
    a.e("s_mov_b32 s98, 1")
    a.e("s_nop 3")
    a.e("s_cmp_eq_u64 vcc, 0")
    a.e("s_cbranch_scc1 L_FBOUT")
    a.e("v_cmp_ne_u32 vcc, 0, v126")
    a.e("s_nop 4")
    a.e("s_cmp_eq_u64 vcc, 0")
    a.e("s_cbranch_scc0 L_FBPOLL")
    a.label("L_FBGIVE")
    a.e("s_mov_b32 s98, 2")
    a.label("L_FBOUT")
    a.e("v_mov_b32 v120, s98")
    a.e(f"v_mov_b32 v121, {RES}")
    a.e("ds_write_b32 v121, v120")
    a.e("s_waitcnt lgkmcnt(0)")
    a.label("L_FB2")
    a.e("s_barrier")
    a.e(f"v_mov_b32 v121, {RES}")
    a.e("ds_read_b32 v120, v121")
    a.e("s_waitcnt lgkmcnt(0)")
    a.e("v_readfirstlane_b32 s98, v120")
    a.e("s_nop 3")
    a.e("s_cmp_eq_u32 s98, 2")
    a.e(f"s_cselect_b32 s99, {WS_X2}, 0")
    XL = 72
    a.e(f"buffer_load_dwordx4 v[{XL}:{XL+3}], v13, s[60:63], s99 offen sc1")
    a.e(f"s_add_u32 s77, s99, {WS_XKV}")
    a.e(f"buffer_load_dwordx4 v[{XL+4}:{XL+7}], v13, s[60:63], s77 offen sc1")
    a.e("s_branch L_XISSUED")
    a.label("L_FAST")
    a.e(f"buffer_load_dwordx4 v[{XL}:{XL+3}], v13, s[60:63], 0 offen{XF}")
    a.e(f"s_mov_b32 s77, {WS_XKV}")
    a.e(f"buffer_load_dwordx4 v[{XL+4}:{XL+7}], v13, s[60:63], s77 offen{XF}")
    a.label("L_XISSUED")
    a.ds_done = a.ds_issued; a.vm_done = a.vm_issued
    a.e(f"s_mov_b32 s77, {WS_GP}")
    a.e(f"buffer_load_dwordx4 v[28:31], v4, s[60:63], s77 offen sc1")
    a.e(f"v_add_u32 v5, {GM}, v4")
    a.stamp(9)
    a.e("s_waitcnt vmcnt(1)")
    a.e(f"ds_write_b128 v{vXL}, v[{XL}:{XL+3}] offset:{XRS}")
    a.e(f"ds_write_b128 v{vXL}, v[{XL+4}:{XL+7}]")
    a.e("s_waitcnt lgkmcnt(0)")
    a.ds_done = a.ds_issued; a.vm_done = a.vm_issued
    a.stamp(13)
    a.e("s_barrier")
    a.e("s_cmp_lg_u32 s2, 0")
    a.e("s_cbranch_scc1 L_NOEP")
    a.e("s_cmp_lg_u32 s3, 7")
    a.e("s_cbranch_scc1 L_NOEP")
    a.e("v_mov_b32 v72, s72")
    a.e(f"v_mov_b32 v73, {WS_EP}")
    a.e("s_mov_b64 exec, 1")
    a.e("buffer_store_dword v72, v73, s[60:63], 0 offen")
    a.e("s_mov_b64 exec, -1")
    a.label("L_NOEP")
    a.e("s_cmp_lg_u32 s7, 0")
    a.e("s_cbranch_scc1 L_H1")
    ctx = dict(vB=vB, vX=vX, vQ=vQ, vG=vG, vPX=vPX, vGW=vGW, vCMB=vCMB, vOUT=vOUT, SQL=SQL, SQH=SQH, ONEF=ONEF, SG=SG, DF=DF, MHI=27,
               nostore=cfg.get("nostore"), noepi=cfg.get("noepi"), vA=vA, CPRE=CPRE)
    for kk in ("G1", "G2", "G3", "nobar", "novalu", "bstamp", "NB0", "NB1"):
        if kk in cfg: ctx[kk] = cfg[kk]
    main_loop(a, 0, passes, NB, LOOK, RATE, ctx)
    a.e("s_endpgm")
    a.label("L_H1")
    main_loop(a, 1, passes, NB, LOOK, RATE, ctx)
    a.label("L_END")
    a.e("s_endpgm")
    a.label("L_CODE_END")

def main_loop(a, h, passes, NB, LOOK, RATE, c):
    ACC0 = 32
    BR = 48
    NB = c.get("NB1", 16) if h == 1 else c.get("NB0", 12)
    EP = BR + 4 * NB
    assert EP + (32 if h == 0 else 8) <= 128
    MHI = c["MHI"]
    a.e(f"v_mov_b32 v{MHI}, 0xffff0000")
    def areg(cidx, rho): return 4 * (cidx * 4 + rho)
    n = len(passes)
    accof = {}
    for pi, P in enumerate(passes):
        assert len(P) <= 2
        for k, t in enumerate(P): accof[t] = ACC0 + 8 * (pi % 2) + 4 * k
    G1, G2, G3 = c.get("G1", 2), c.get("G2", 2), c.get("G3", 5)
    mf = []; loads = []; bseq = 0; pstart = []; pend = []; seenA = set(); tokA = {}
    for P in passes:
        thi = max(P)
        pstart.append(len(mf))
        for rho in range(4):
            for dl in range(thi + 1):
                users = [t for t in P if t - dl >= 0]
                if not users: continue
                for t in users:
                    cidx = t - dl
                    if cidx >= c["CPRE"] and (cidx, rho) not in seenA:
                        seenA.add((cidx, rho))
                        loads.append(dict(kind="A", c=cidx, rho=rho, need=max(0, len(mf) - c.get("ALEAD", 10))))
                loads.append(dict(kind="B", dl=dl, rho=rho, need=len(mf), b=bseq))
                for t in users: mf.append(dict(t=t, c=t - dl, rho=rho, b=bseq))
                bseq += 1
        pend.append(len(mf))
    lastuse = {}
    for i, m in enumerate(mf): lastuse[m["b"]] = i
    tokB = {}; st = dict(li=0); started = set(); side = []
    V = (lambda f: None) if c.get("novalu") else (lambda f: side.append(("v", f)))
    X = lambda f: side.append(("x", f))
    def run_side(nv):
        k = 0
        while side:
            it = side[0]
            if it[0] == "gap":
                if it[1] <= 0: side.pop(0); continue
                side[0] = ("gap", it[1] - 1)
                return
            if it[0] == "v":
                if k >= nv: return
                k += 1
            side.pop(0); it[1]()
    def flush_side():
        while side:
            if side[0][0] == "gap": side.pop(0); continue
            run_side(1000)
    def prefetch(i, limit):
        while st["li"] < len(loads):
            L = loads[st["li"]]
            if L["need"] > i + LOOK or L["need"] >= limit: break
            if L["kind"] == "A":
                r = areg(L["c"], L["rho"]); o = 128 * (L["c"] & 1) + 16 * L["rho"]; va = c["vA"][L["c"] >> 1]
                a.e(f"ds_read2_b32 a[{r}:{r+1}], v{va} offset0:{o} offset1:{o+1}")
                tokA[(L["c"], L["rho"])] = a.e(f"ds_read2_b32 a[{r+2}:{r+3}], v{va} offset0:{o+2} offset1:{o+3}")
                st["li"] += 1
                continue
            prev = L["b"] - NB
            if prev >= 0 and lastuse[prev] >= i: break
            r = BR + 4 * (L["b"] % NB)
            tokB[L["b"]] = a.e(f"ds_read_b128 v[{r}:{r+3}], v{c['vB']} offset:{64*L['rho'] + 512*(7-L['dl'])}")
            st["li"] += 1
    def emit_pass(pi, init_tok=None):
        for i in range(pstart[pi], pend[pi]):
            m = mf[i]
            prefetch(i, 10**9)
            a.wait_ds(tokB[m["b"]])
            if (m["c"], m["rho"]) in tokA: a.wait_ds(tokA[(m["c"], m["rho"])])
            ar = areg(m["c"], m["rho"]); br = BR + 4 * (m["b"] % NB); ac = accof[m["t"]]
            if m["t"] in started: src = f"v[{ac}:{ac+3}]"
            else:
                started.add(m["t"])
                if init_tok is not None:
                    a.wait_ds(init_tok[m["t"]]); src = f"v[{ac}:{ac+3}]"
                else: src = "0"
            a.e(f"v_mfma_f32_16x16x32_bf16 v[{ac}:{ac+3}], a[{ar}:{ar+3}], v[{br}:{br+3}], {src}")
            run_side(RATE)
    bcount = [0]
    def barrier():
        if bcount[0] == 0:
            a.e("s_waitcnt vmcnt(0)")
            tg = a.e("ds_write_b128 v5, v[28:31]")
            a.wait_ds(tg)
        if c.get("bstamp"):
            a.raw(f"  s_memtime s[{56 + 0}:{57}]") if False else None
            a.e(f"s_memtime s[{16+2*bcount[0]}:{17+2*bcount[0]}]")
        if not c.get("nobar"): a.e("s_barrier")
        bcount[0] += 1
    def regs_fin(k):
        E = EP + 12 * k
        return E, E + 4, E + 8
    def q_fin_pre(P):
        assert len(P) <= 2
        XO, QM = EP + 24, EP + 26
        for k, t in enumerate(P):
            TT, UU, GG = regs_fin(k)
            tk = {}
            X(lambda t=t: a.e(f"ds_read_b64 v[{XO}:{XO+1}], v{c['vX']} offset:{512*(7-t)}"))
            X(lambda t=t: a.e(f"ds_read_b64 v[{QM}:{QM+1}], v{c['vQ']} offset:{512*(7-t)}"))
            def rg(t=t, GG=GG, tk=tk): tk[0] = a.e(f"ds_read_b128 v[{GG}:{GG+3}], v{c['vG']} offset:{1024*t}")
            X(rg)
            side.append(("gap", G3))
            X(lambda tk=tk: a.wait_ds(tk[0]))
            V(lambda TT=TT: a.e(f"v_lshlrev_b32 v{TT+3}, 16, v{XO}"))
            V(lambda TT=TT: a.e(f"v_and_b32 v{TT+2}, v{MHI}, v{XO}"))
            V(lambda TT=TT: a.e(f"v_lshlrev_b32 v{TT+1}, 16, v{XO+1}"))
            V(lambda TT=TT: a.e(f"v_and_b32 v{TT+0}, v{MHI}, v{XO+1}"))
            V(lambda UU=UU: a.e(f"v_perm_b32 v{UU+3}, v{QM}, v{c['ONEF']}, v{c['SQL']}"))
            V(lambda UU=UU: a.e(f"v_perm_b32 v{UU+2}, v{QM}, v{c['ONEF']}, v{c['SQH']}"))
            V(lambda UU=UU: a.e(f"v_perm_b32 v{UU+1}, v{QM+1}, v{c['ONEF']}, v{c['SQL']}"))
            V(lambda UU=UU: a.e(f"v_perm_b32 v{UU+0}, v{QM+1}, v{c['ONEF']}, v{c['SQH']}"))
            for e in range(4): V(lambda e=e, TT=TT: a.e(f"v_mul_f32 v{TT+e}, v{c['DF']}, v{TT+e}"))
            for e in range(4): V(lambda e=e, GG=GG: a.e(f"v_perm_b32 v{GG+e}, v{GG+e}, v{GG+e}, v{c['SG']}"))
            for e in range(4): V(lambda e=e, TT=TT: a.e(f"v_cvt_pk_bf16_f32 v{TT+e}, 0, v{TT+e}"))
    def q_fin_post(P):
        DD = EP + 28
        def stage(fn):
            for k, t in enumerate(P):
                TT, UU, GG = regs_fin(k); ac = accof[t]
                for e in range(4): V(lambda e=e, ac=ac, TT=TT, UU=UU, GG=GG: fn(e, ac, TT, UU, GG))
        stage(lambda e, ac, TT, UU, GG: a.e(f"v_cvt_pk_bf16_f32 v{ac+e}, 0, v{ac+e}"))
        stage(lambda e, ac, TT, UU, GG: a.e(f"v_add_f32 v{ac+e}, v{ac+e}, v{TT+e}"))
        stage(lambda e, ac, TT, UU, GG: a.e(f"v_cvt_pk_bf16_f32 v{ac+e}, 0, v{ac+e}"))
        stage(lambda e, ac, TT, UU, GG: a.e(f"v_mul_f32 v{ac+e}, v{ac+e}, v{UU+e}"))
        stage(lambda e, ac, TT, UU, GG: a.e(f"v_cvt_pk_bf16_f32 v{ac+e}, 0, v{ac+e}"))
        stage(lambda e, ac, TT, UU, GG: a.e(f"v_mul_f32 v{ac+e}, v{ac+e}, v{GG+e}"))
        for k, t in enumerate(P):
            ac = accof[t]
            V(lambda ac=ac, k=k: a.e(f"v_cvt_pk_bf16_f32 v{DD+2*k}, v{ac+0}, v{ac+1}"))
            V(lambda ac=ac, k=k: a.e(f"v_cvt_pk_bf16_f32 v{DD+2*k+1}, v{ac+2}, v{ac+3}"))
        for k, t in enumerate(P):
            X(lambda t=t, k=k: a.e(f"ds_write_b64 v{c['vGW']}, v[{DD+2*k}:{DD+2*k+1}] offset:{512*t}"))
    def q_combine(P):
        tkc = {}
        for k, t in enumerate(P):
            CM = [EP + 4 * k + i for i in range(4)]
            for cc2 in range(4):
                def rd(cc2=cc2, t=t, CM=CM): tkc[t] = a.e(f"ds_read_u16_d16_hi v{CM[cc2]}, v{c['vCMB']} offset:{4096*cc2+512*t}")
                X(rd)
        side.append(("gap", G3))
        for k, t in enumerate(P):
            CM = [EP + 4 * k + i for i in range(4)]
            X(lambda t=t: a.wait_ds(tkc[t]))
            V(lambda CM=CM: a.e(f"v_add_f32 v{CM[0]}, v{CM[0]}, v{CM[1]}"))
            V(lambda CM=CM: a.e(f"v_add_f32 v{CM[2]}, v{CM[2]}, v{CM[3]}"))
            X(lambda t=t: a.e(f"s_mov_b32 s77, {t*262144}"))
            V(lambda CM=CM: a.e(f"v_cvt_pk_bf16_f32 v{CM[1]}, v{CM[0]}, v{CM[2]}"))
            if not c.get("nostore"): X(lambda CM=CM: a.e(f"buffer_store_dword v{CM[1]}, v{c['vOUT']}, s[64:67], s77 offen"))
    if h == 1:
        for k in range(n):
            if k >= 2: q_combine(passes[k - 2])
            emit_pass(k)
            flush_side()
            tw = None
            for t in passes[k]:
                tw = a.e(f"ds_write_b128 v{c['vPX']}, v[{accof[t]}:{accof[t]+3}] offset:{1024*t}")
            if k + 1 < n: prefetch(pend[k], 10**9)
            a.wait_ds(tw)
            barrier()
        if n >= 2:
            q_combine(passes[n - 2]); flush_side()
        barrier()
        a.stamp(14)
        q_combine(passes[n - 1]); flush_side()
    else:
        barrier_only = True
        prefetch(0, 10**9)
        barrier()
        for k in range(n):
            itok = {}
            for t in passes[k]:
                itok[t] = a.e(f"ds_read_b128 v[{accof[t]}:{accof[t]+3}], v{c['vPX']} offset:{1024*t}")
            q_fin_pre(passes[k])
            emit_pass(k, init_tok=itok)
            flush_side()
            if k + 1 < n: prefetch(pend[k], 10**9)
            q_fin_post(passes[k])
            flush_side()
            a.wait_ds(a.ds_issued - 1)
            barrier()
        a.stamp(14)
    if getattr(a, "stamps", False): a.wait_vm_all()
    a.stamp(15)
    if c.get("bstamp"):
        a.e("s_waitcnt lgkmcnt(0)")
        for i in range(bcount[0]): a.e(f"s_mov_b32 s{81+i}, s{16+2*i}")
    a.dump_stamps(16, 52, 16 << 20, wave="s3")

def build(cfg):
    a = Asm()
    a.stamps = cfg.get("stamps", False)
    a.stamp_sel = cfg.get("stamp_sel", None)
    hdr = open("cdna_kernels/" + NAME + ".s.ref").read().split("\n")
    head = [l for l in hdr if l.startswith(";") and "@launch" not in l and "Override launch" not in l and "grid=ceil" not in l]
    a.raw("\n".join(head[:21]))
    a.raw(f"; @launch grid=(256,1,1) block=(512,1,1) lds={LDS_TOTAL}")
    a.raw('.amdgcn_target "amdgcn-amd-amdhsa--gfx950"\n.text')
    kernel(a, cfg)
    a.raw(f""".section .rodata,"a"
.p2align 6
.amdhsa_kernel {KN}
  .amdhsa_next_free_vgpr 256
  .amdhsa_next_free_sgpr 102
  .amdhsa_accum_offset 128
  .amdhsa_group_segment_fixed_size 0
  .amdhsa_kernarg_size 152
  .amdhsa_user_sgpr_count 2
  .amdhsa_user_sgpr_kernarg_segment_ptr 1
  .amdhsa_system_sgpr_workgroup_id_x 1
.end_amdhsa_kernel""")
    return a.finalize()

DEFAULT = dict(passes=[[0], [1, 2], [3, 4], [5, 6], [7]], NB=8, LOOK=14, RATE=2)
if __name__ == "__main__":
    out = sys.argv[1] if len(sys.argv) > 1 else "cdna_kernels/" + NAME + ".s"
    cfg = dict(DEFAULT)
    for arg in sys.argv[2:]:
        if arg == "stamps": cfg["stamps"] = True
        elif "=" in arg:
            k, v = arg.split("=", 1); cfg[k] = eval(v)
    open(out, "w").write(build(cfg))
    print("wrote", out)
```

```python
import sys, struct
from dsl import Asm

NAME = "gated_mix__ssm_conv_h3__ssm_conv_s4__prompt"
KN = NAME + "_kernel"
LOG2E = 0x3fb8aa3b
WS_XQ = 0
WS_XKV = 2 << 20
WS_X2 = 4 << 20
WS_GP = 8 << 20
WS_GF1 = (8 << 20) + 65536
WS_GF2 = (8 << 20) + 131072
WS_LF = (8 << 20) + 196608
WS_EP = (8 << 20) + 262144
WS_USED = (8 << 20) + 262144 + 4096
FLAGC = 0x5a5a5a5a

KT = 0
QT = KT + 72 * 128
KVT = QT + 8192
SKT = KVT + 8192
PAR = SKT + 512
KC0 = PAR + 3072
KCS = 8320
F0 = KC0 + 4 * KCS
FSZ = 6144
TAB0 = F0 + 2 * FSZ
ENT = 544
TABSZ = 72 * ENT
TABEND = TAB0 + 2 * TABSZ
XRS = 4608
XR0 = TAB0
GM = XR0 + 4 * XRS
PX = GM + 8192
GAB = PX + 32768
assert GAB + 16384 <= TABEND
LDS_TOTAL = TABEND

def fbits(x): return struct.unpack("<I", struct.pack("<f", float(x)))[0]

def cmul(a, dst, w, z, tmp):
    a.e(f"v_pk_mul_f32 v[{tmp}:{tmp+1}], v[{w}:{w+1}], v[{z}:{z+1}] op_sel:[0,0] op_sel_hi:[1,0]")
    a.e(f"v_pk_fma_f32 v[{dst}:{dst+1}], v[{w}:{w+1}], v[{z}:{z+1}], v[{tmp}:{tmp+1}] op_sel:[1,1,0] op_sel_hi:[0,1,1] neg_lo:[1,0,0]")

def cpow(a, dst, rho, phi, m, t0, t1):
    a.e(f"v_mul_f32 v{t0}, 0x{fbits(m):08x}, v{rho}")
    a.e(f"v_mul_f32 v{t1}, 0x{fbits(m):08x}, v{phi}")
    a.e(f"v_exp_f32 v{t0}, v{t0}")
    a.e(f"v_fract_f32 v{t1}, v{t1}")
    a.e(f"v_cos_f32 v{dst}, v{t1}")
    a.e(f"v_sin_f32 v{dst+1}, v{t1}")
    a.e(f"v_mul_f32 v{dst}, v{t0}, v{dst}")
    a.e(f"v_mul_f32 v{dst+1}, v{t0}, v{dst+1}")

def kernel(a, cfg):
    passes, NB, LOOK, RATE = cfg["passes"], cfg["NB"], cfg["LOOK"], cfg["RATE"]
    GLD, EPL, RES = PAR, PAR + 64, PAR + 128
    a.raw(f".globl {KN}\n.p2align 8\n.type {KN},@function\n{KN}:")
    a.e("s_cmp_ge_u32 s2, 256")
    a.e("s_cbranch_scc1 L_END")
    a.stamp(0)
    a.e("s_load_dwordx16 s[16:31], s[0:1], 0")
    a.e("s_load_dwordx16 s[32:47], s[0:1], 64")
    a.e("s_load_dwordx4 s[48:51], s[0:1], 128")
    a.e("s_load_dwordx2 s[52:53], s[0:1], 144")
    a.e("v_lshrrev_b32 v1, 6, v0")
    a.e("v_and_b32 v2, 63, v0")
    a.e("v_readfirstlane_b32 s3, v1")
    a.e("s_and_b32 s4, s2, 7")
    a.e("s_lshr_b32 s5, s2, 3")
    if cfg.get("epf", True):
        PFW = cfg.get("pfwave", 0)
        a.e(f"s_cmp_eq_u32 s3, {PFW}")
        a.e("s_cbranch_scc0 L_NOPF")
        a.e("s_getpc_b64 s[74:75]")
        a.label("L_PC")
        a.raw("  .set CODE_REM, L_CODE_END - L_PC")
        a.e("s_mul_i32 s76, s5, 5")
        a.e("v_add_u32 v74, s76, v2")
        a.e("v_lshlrev_b32 v74, 7, v74")
        a.e(f"v_cmp_gt_u32 vcc, CODE_REM, v74")
        a.e("v_cndmask_b32 v74, 0, v74, vcc")
        a.e("s_mov_b64 exec, 31")
        a.e(f"global_load_dword v30, v74, s[74:75]")
        a.e("s_mov_b64 exec, -1")
        a.label("L_NOPF")
    a.e("s_lshl_b32 s10, s4, 6")
    a.e("s_lshl_b32 s11, s5, 1")
    a.e("s_add_u32 s10, s10, s11")
    MQ = 96
    a.e(f"s_and_b32 s{MQ}, s3, 3")
    a.e("s_lshr_b32 s7, s3, 2")
    a.e(f"s_xor_b32 s6, s{MQ}, s7")
    a.e("s_and_b32 s8, s6, 1")
    a.e("s_lshr_b32 s9, s6, 1")
    a.e("v_lshlrev_b32 v69, 4, v2")
    a.e("s_lshl_b32 s11, s5, 16")
    a.e("s_lshl_b32 s12, s4, 7")
    a.e("s_add_u32 s11, s11, s12")
    a.e("s_getreg_b32 s97, hwreg(HW_REG_XCC_ID, 0, 4)")
    a.e("s_cmp_eq_u32 s7, 0")
    a.e("s_cbranch_scc1 L_KISSUE")
    a.e("v_lshrrev_b32 v67, 3, v2")
    a.e("v_and_b32 v68, 7, v2")
    a.e("v_lshlrev_b32 v5, 10, v67")
    a.e("v_lshl_add_u32 v5, v68, 4, v5")
    a.e(f"s_lshl_b32 s12, s{MQ}, 14")
    a.e("s_add_u32 s12, s12, s11")
    a.e("v_add_u32 v5, s12, v5")
    a.e("v_add_u32 v7, 8192, v5")
    a.e("v_subrev_u32 v6, 8192, v5")
    a.e("v_bfe_u32 v70, v0, 3, 5")
    a.e("v_and_b32 v71, 7, v0")
    a.e("v_lshlrev_b32 v72, 11, v70")
    a.e("v_lshl_add_u32 v72, v71, 4, v72")
    a.e("v_add_u32 v72, s11, v72")
    a.e("s_lshl_b32 s14, s4, 9")
    a.e("v_add_u32 v73, s14, v69")
    a.e(f"s_lshl_b32 s13, s{MQ}, 11")
    a.e("s_waitcnt lgkmcnt(0)")
    a.e("s_mov_b32 s56, s18"); a.e("s_and_b32 s57, s19, 0xffff"); a.e("s_mov_b32 s58, 0x200000"); a.e("s_mov_b32 s59, 0x20000")
    VR = 120
    a.e("s_cmp_eq_u32 s3, 4")
    a.e("s_cbranch_scc0 L_X1")
    a.e(f"s_mov_b32 m0, {KT}")
    a.e("s_nop 0")
    a.e("buffer_load_dwordx4 v6, s[56:59], 0 offen lds")
    a.e("s_branch L_X2")
    a.label("L_X1")
    a.e("s_cmp_eq_u32 s3, 5")
    a.e("s_cbranch_scc0 L_X2")
    a.e("s_mov_b32 exec_hi, 0")
    a.e(f"s_mov_b32 m0, {SKT}")
    a.e("s_nop 0")
    a.e("global_load_lds_dwordx4 v73, s[22:23]")
    a.e("s_mov_b32 exec_hi, -1")
    a.label("L_X2")
    a.e(f"s_add_u32 m0, s13, {KT + 1024}")
    a.e("s_nop 0")
    a.e("buffer_load_dwordx4 v5, s[56:59], 0 offen lds")
    a.e(f"s_add_u32 m0, s13, {KT + 2048}")
    a.e("s_nop 0")
    a.e("buffer_load_dwordx4 v7, s[56:59], 0 offen lds")
    a.e(f"global_load_dwordx4 v[{VR}:{VR+3}], v72, s[20:21]")
    a.e(f"global_load_dwordx4 v[{VR+4}:{VR+7}], v72, s[20:21] offset:1024")
    a.e(f"s_add_u32 m0, s13, {QT}")
    a.e("s_nop 0")
    a.e("global_load_lds_dwordx4 v5, s[16:17]")
    a.e(f"s_add_u32 m0, s13, {QT + 1024}")
    a.e("s_nop 0")
    a.e("global_load_lds_dwordx4 v7, s[16:17]")
    a.e("s_branch L_COMMON")
    a.label("L_KISSUE")
    GQ0, GQ1, GW = 100, 104, 108
    EPV = 30
    a.e("s_lshl_b32 s15, s10, 8")
    a.e("v_add_u32 v72, s15, v69")
    a.e("s_lshl_b32 s12, s2, 3")
    a.e(f"s_lshl_b32 s13, s{MQ}, 1")
    a.e("s_add_u32 s12, s12, s13")
    a.e("s_lshl_b32 s13, s12, 10")
    a.e("v_add_u32 v73, s13, v69")
    a.e("s_lshl_b32 s79, s10, 1")
    a.e("s_waitcnt lgkmcnt(0)")
    a.e("s_load_dword s76, s[42:43], s79")
    a.e("s_mov_b32 exec_hi, 0")
    for wv, arrs in enumerate(((0, 1), (2, 3), (4,), (5,))):
        a.e(f"s_cmp_eq_u32 s{MQ}, {wv}")
        a.e(f"s_cbranch_scc0 L_KP{wv}")
        for ar in arrs:
            a.e(f"s_mov_b32 m0, {PAR + 512*ar}")
            a.e("s_nop 0")
            a.e(f"global_load_lds_dwordx4 v72, s[{30+2*ar}:{31+2*ar}]")
        a.e("s_branch L_KP4")
        a.label(f"L_KP{wv}")
    a.label("L_KP4")
    a.e("s_mov_b64 exec, -1")
    a.e(f"global_load_dwordx4 v[{GQ0}:{GQ0+3}], v73, s[16:17]")
    a.e(f"global_load_dwordx4 v[{GQ1}:{GQ1+3}], v73, s[16:17] offset:1024")
    a.e(f"global_load_dwordx4 v[{GW}:{GW+3}], v69, s[46:47]")
    a.e("s_cmp_eq_u32 s3, 3")
    a.e("s_cbranch_scc0 L_COMMON")
    a.e("v_subrev_u32 v74, 1, v2")
    a.e("v_lshlrev_b32 v74, 21, v74")
    a.e(f"v_mov_b32 v75, {WS_EP}")
    a.e("v_cmp_eq_u32 vcc, 0, v2")
    a.e("v_cndmask_b32 v74, v74, v75, vcc")
    a.e("s_mov_b64 exec, 7")
    a.e(f"global_load_dword v{EPV}, v74, s[52:53] sc1")
    a.e("s_mov_b64 exec, -1")
    a.label("L_COMMON")
    a.e("s_mov_b32 s60, s52"); a.e("s_and_b32 s61, s53, 0xffff"); a.e(f"s_mov_b32 s62, {WS_USED}"); a.e("s_mov_b32 s63, 0x20000")
    a.e("s_mov_b32 s64, s48"); a.e("s_and_b32 s65, s49, 0xffff"); a.e("s_mov_b32 s66, 0x200000"); a.e("s_mov_b32 s67, 0x20000")
    a.e("s_mov_b32 s68, s24"); a.e("s_and_b32 s69, s25, 0xffff"); a.e("s_mov_b32 s70, 0x200000"); a.e("s_mov_b32 s71, 0x20000")
    a.e("s_lshl_b32 s79, s10, 1")
    a.e("s_load_dword s76, s[42:43], s79")
    a.e("s_load_dword s100, s[26:27], s79")
    a.e("s_load_dword s101, s[44:45], s79")
    ONES, MLO, MHI = 21, 28, 27
    a.e(f"v_mov_b32 v{ONES}, 0x3f803f80")
    a.e(f"v_mov_b32 v{MLO}, 0xffff")
    a.e(f"v_mov_b32 v{MHI}, 0xffff0000")
    J, Q4 = 64, 65
    a.e(f"v_and_b32 v{J}, 15, v2")
    a.e(f"v_lshrrev_b32 v{Q4}, 4, v2")
    a.e("s_lshl_b32 s13, s10, 12")
    a.e("v_lshlrev_b32 v4, 4, v0")
    a.e("v_add_u32 v13, s13, v4")
    vB, vX, vQ, vG, vPX, vGW, vCMB, vOUT = 8, 9, 10, 11, 12, 14, 15, 16
    vA = [17, 18, 19, 20]
    SQL, SQH, ONEF, SG, DF = 22, 23, 24, 25, 26
    vXL = 3
    CPRE = cfg.get("CPRE", 8)
    def areg(cidx, rho): return 4 * (cidx * 4 + rho)
    def aloads():
        for cidx in range(CPRE):
            for rho in range(4):
                r = areg(cidx, rho); o = 128 * (cidx & 1) + 16 * rho; va = vA[cidx >> 1]
                a.e(f"ds_read2_b32 a[{r}:{r+1}], v{va} offset0:{o} offset1:{o+1}")
                a.e(f"ds_read2_b32 a[{r+2}:{r+3}], v{va} offset0:{o+2} offset1:{o+3}")
    a.e(f"s_mul_i32 s77, s6, {XRS}")
    a.e(f"s_add_u32 s77, s77, {XR0}")
    a.e("s_lshl_b32 s78, s7, 8")
    a.e("s_add_u32 s78, s78, s77")
    a.e("s_add_u32 s78, s78, 480")
    a.e(f"v_lshlrev_b32 v62, 5, v{J}")
    a.e(f"v_lshlrev_b32 v{vB}, 4, v{Q4}")
    a.e(f"v_sub_u32 v{vB}, v{vB}, v62")
    a.e(f"v_add_u32 v{vB}, s78, v{vB}")
    a.e(f"v_lshl_add_u32 v63, v{Q4}, 3, v62")
    a.e("s_add_u32 s78, s77, 504")
    a.e(f"v_sub_u32 v{vX}, s78, v63")
    vPAD = 29
    a.e("s_add_u32 s78, s77, 4096")
    a.e(f"v_lshlrev_b32 v{vPAD}, 3, v2")
    a.e(f"v_add_u32 v{vPAD}, s78, v{vPAD}")
    a.e("s_or_b32 s78, s6, 1")
    a.e(f"s_mul_i32 s78, s78, {XRS}")
    a.e(f"s_add_u32 s78, s78, {XR0 + 504}")
    a.e(f"v_sub_u32 v{vQ}, s78, v63")
    a.e(f"v_lshlrev_b32 v62, 1, v63")
    a.e(f"v_add_u32 v{vG}, {GM}, v62")
    a.e("s_lshl_b32 s78, s6, 13")
    a.e(f"s_add_u32 s78, s78, {PX}")
    a.e(f"v_add_u32 v{vPX}, s78, v69")
    a.e("s_lshl_b32 s78, s6, 12")
    a.e(f"s_add_u32 s78, s78, {GAB}")
    a.e(f"v_add_u32 v{vGW}, s78, v63")
    a.e("s_lshl_b32 s78, s6, 6")
    a.e(f"v_add_u32 v62, s78, v2")
    a.e(f"v_lshlrev_b32 v{vCMB}, 1, v62")
    a.e(f"v_add_u32 v{vCMB}, {GAB}, v{vCMB}")
    a.e(f"v_lshlrev_b32 v{vOUT}, 10, v62")
    a.e("s_lshl_b32 s78, s10, 1")
    a.e(f"v_add_u32 v{vOUT}, s78, v{vOUT}")
    a.e("s_lshl_b32 s78, s7, 7")
    a.e("s_sub_u32 s78, s78, 15")
    a.e(f"v_lshl_add_u32 v62, v{Q4}, 3, v{J}")
    a.e("v_add_u32 v62, s78, v62")
    a.e("v_lshlrev_b32 v62, 1, v62")
    a.e(f"s_mul_i32 s78, s6, {KCS}")
    a.e(f"s_add_u32 s78, s78, {KC0 + 32}")
    a.e(f"v_and_b32 v63, 1, v{J}")
    a.e(f"v_cmp_eq_u32 vcc, 1, v63")
    a.e(f"v_mov_b32 v63, {4160 - 2}")
    a.e(f"v_cndmask_b32 v63, v63, 0, vcc")
    a.e(f"v_add3_u32 v{vA[0]}, v62, v63, s78")
    for i in range(1, 4): a.e(f"v_add_u32 v{vA[i]}, {1024*i}, v{vA[0]}")
    a.e("v_lshrrev_b32 v62, 8, v0")
    a.e(f"v_mul_u32_u24 v62, {2*XRS}, v62")
    a.e("v_and_b32 v63, 255, v0")
    a.e(f"v_lshl_add_u32 v{vXL}, v63, 4, v62")
    a.e(f"v_add_u32 v{vXL}, {XR0}, v{vXL}")
    a.e(f"v_mov_b32 v{ONEF}, 1.0")
    a.e("s_cmp_eq_u32 s8, 0")
    a.e("s_mov_b32 s78, 0x03020100")
    a.e("s_cselect_b32 s77, 0x05040c0c, s78");  a.e(f"v_mov_b32 v{SQL}, s77")
    a.e("s_cselect_b32 s77, 0x07060c0c, s78");  a.e(f"v_mov_b32 v{SQH}, s77")
    a.e("s_mov_b32 s78, 0x07060c0c")
    a.e("s_cselect_b32 s77, 0x05040c0c, s78");  a.e(f"v_mov_b32 v{SG}, s77")
    a.e("v_mov_b32 v5, 0") if False else None
    a.e("s_cmp_eq_u32 s7, 0")
    a.e("s_cbranch_scc1 L_KPATH")
    if cfg.get("xprio", 0): a.e(f"s_setprio {cfg['xprio']}")
    vRC, vSKA, vTR, vXS = 31, 1, 5, 6
    a.e("v_bfe_u32 v70, v0, 3, 5")
    a.e("v_and_b32 v71, 7, v0")
    a.e(f"v_lshlrev_b32 v{vRC}, 8, v70")
    a.e(f"v_lshl_add_u32 v{vRC}, v71, 4, v{vRC}")
    a.e(f"v_lshlrev_b32 v{vSKA}, 6, v71")
    a.e(f"v_lshrrev_b32 v72, 2, v{J}")
    a.e(f"v_and_b32 v73, 3, v{J}")
    a.e(f"v_lshlrev_b32 v75, 3, v{Q4}")
    a.e("v_add_u32 v76, 3, v75")
    a.e("v_sub_u32 v76, v76, v72")
    a.e("v_lshlrev_b32 v76, 7, v76")
    a.e("v_lshl_add_u32 v76, v73, 3, v76")
    a.e(f"s_lshl_b32 s77, s{MQ}, 5")
    a.e(f"v_add_u32 v{vTR}, s77, v76")
    a.e("s_lshl_b32 s77, s4, 18")
    a.e(f"s_lshl_b32 s78, s{MQ}, 16")
    a.e("s_add_u32 s77, s77, s78")
    a.e("s_add_u32 s77, s77, 4016")
    a.e("s_lshl_b32 s78, s5, 7")
    a.e("s_sub_u32 s77, s77, s78")
    a.e(f"v_lshlrev_b32 v{vXS}, 12, v{J}")
    a.e("v_lshlrev_b32 v76, 1, v75")
    a.e(f"v_sub_u32 v{vXS}, v{vXS}, v76")
    a.e(f"v_add_u32 v{vXS}, s77, v{vXS}")
    a.e("v_and_b32 v32, 127, v0")
    a.e("v_bfe_u32 v33, v0, 7, 1")
    a.e("v_lshlrev_b32 v34, 8, v33")
    a.e("v_lshl_add_u32 v34, v32, 1, v34")
    TA = 35
    a.e(f"v_mul_u32_u24 v{TA}, {TABSZ}, v33")
    a.e(f"v_lshl_add_u32 v{TA}, v32, 2, v{TA}")
    a.e(f"v_add_u32 v{TA}, {TAB0}, v{TA}")
    a.e("s_waitcnt lgkmcnt(0)")
    a.stamp(1)
    a.e("s_barrier")
    PR = 66
    for i in range(6): tp = a.e(f"ds_read_u16_d16_hi v{PR+i}, v34 offset:{PAR + 512*i}")
    Are, Aim, Bre, Bim, Cre, Cim = [PR + i for i in range(6)]
    DT, RHO, PHI = 72, 73, 74
    C = 76
    a.e("v_bfe_u32 v75, v0, 7, 1")
    a.e("v_lshlrev_b32 v75, 4, v75")
    a.e(f"v_lshrrev_b32 v{DT}, v75, s76") if False else None
    a.e(f"v_mov_b32 v{DT}, s76")
    a.e(f"v_lshrrev_b32 v{DT}, v75, v{DT}")
    a.e(f"v_lshlrev_b32 v{DT}, 16, v{DT}")
    a.e(f"v_mul_f32 v{DT}, 0x{LOG2E:08x}, v{DT}")
    a.e(f"v_exp_f32 v{DT}, v{DT}")
    a.e(f"v_cvt_pk_bf16_f32 v{DT}, 0, v{DT}")
    a.wait_ds(tp)
    a.e(f"v_mul_f32 v{RHO}, v{DT}, v{Are}")
    a.e(f"v_mul_f32 v{PHI}, v{DT}, v{Aim}")
    a.e(f"v_mul_f32 v{RHO}, 0x{LOG2E:08x}, v{RHO}")
    a.e(f"v_mul_f32 v{PHI}, 0.15915494, v{PHI}")
    a.e(f"v_mul_f32 v{Bre}, v{DT}, v{Bre}")
    a.e(f"v_mul_f32 v{Bim}, v{DT}, v{Bim}")
    a.e(f"v_mul_f32 v{C}, v{Cre}, v{Bre}")
    a.e(f"v_mul_f32 v{C+1}, v{Cre}, v{Bim}")
    a.e(f"v_fma_f32 v{C}, -v{Cim}, v{Bim}, v{C}")
    a.e(f"v_fma_f32 v{C+1}, v{Cim}, v{Bre}, v{C+1}")
    Z4, Z128, S3, Z8, W = 80, 84, 86, 88, 90
    TMP = [100, 102, 104, 106, 108, 110]
    PT = [112, 113, 114, 115]
    pw = [(Z4, 4), (Z128, 128), (S3, 1024)]
    for i, (dst, m) in enumerate(pw):
        a.e(f"v_mul_f32 v{TMP[0]+i}, 0x{fbits(m):08x}, v{RHO}")
        a.e(f"v_mul_f32 v{TMP[3]+i}, 0x{fbits(m):08x}, v{PHI}")
    for i, (dst, m) in enumerate(pw):
        a.e(f"v_exp_f32 v{TMP[0]+i}, v{TMP[0]+i}")
        a.e(f"v_fract_f32 v{TMP[3]+i}, v{TMP[3]+i}")
    for i, (dst, m) in enumerate(pw):
        a.e(f"v_cos_f32 v{dst}, v{TMP[3]+i}")
        a.e(f"v_sin_f32 v{dst+1}, v{TMP[3]+i}")
    for i, (dst, m) in enumerate(pw):
        a.e(f"v_mul_f32 v{dst}, v{TMP[0]+i}, v{dst}")
        a.e(f"v_mul_f32 v{dst+1}, v{TMP[0]+i}, v{dst+1}")
    pti2 = [0]
    def putx(entry, pair, neg):
        tmp = PT[pti2[0] % 4]; pti2[0] += 1
        a.e(f"v_cvt_pk_bf16_f32 v{tmp}, v{pair}, {'-' if neg else ''}v{pair+1}")
        a.e(f"ds_write_b32 v{TA}, v{tmp} offset:{entry*ENT}")
    cmul(a, Z8, Z4, Z4, TMP[0])
    cmul(a, S3, S3, C, TMP[1])
    W1 = 92
    a.e(f"v_mov_b32 v{W}, 1.0"); a.e(f"v_mov_b32 v{W+1}, 0")
    a.e(f"v_mov_b32 v{W1}, v{Z4}"); a.e(f"v_mov_b32 v{W1+1}, v{Z4+1}")
    putx(0, W, False); putx(1, W1, False); putx(24 + 32, S3, True)
    for st in range(1, 16):
        cmul(a, W, W, Z8, TMP[0])
        if st <= 7: cmul(a, W1, W1, Z8, TMP[2])
        if st <= 8: cmul(a, S3, S3, Z128, TMP[1])
        putx(2 * st if st < 8 else 16 + (st - 8), W, False)
        if st <= 7: putx(2 * st + 1, W1, False)
        if st <= 8: putx(24 + 32 + st, S3, True)
    a.e("s_waitcnt vmcnt(2) lgkmcnt(0)")
    a.ds_done = a.ds_issued
    a.stamp(2)
    a.e("s_barrier")
    KR, SK, MK, PA, PB, XX = 32, 52, 68, 100, 108, 52
    for i in range(5): a.e(f"ds_read_b128 v[{KR+4*i}:{KR+4*i+3}], v{vRC} offset:{KT + (5+i)*128}")
    for i in range(4): tsk = a.e(f"ds_read_b128 v[{SK+4*i}:{SK+4*i+3}], v{vSKA} offset:{SKT + 16*i}")
    a.e("s_cmp_eq_u32 s8, 0")
    a.e("s_cselect_b32 s77, s100, s101")
    a.e("s_lshl_b32 s78, s9, 4")
    a.e("s_lshr_b32 s77, s77, s78")
    a.e("s_lshl_b32 s77, s77, 16")
    a.e(f"v_mov_b32 v{DF}, s77")
    a.wait_ds(tsk)
    chains = [(m, ci) for m in range(4) for ci in range(2)]
    for tau in range(4):
        for idx, (m, ci) in enumerate(chains):
            cch = 2 * m + ci; src = SK + 2 * cch + (tau >> 1); dst = MK + 8 * tau + idx
            if ci == 0:
                if tau & 1: a.e(f"v_lshrrev_b32 v{dst}, 16, v{src}")
                else: a.e(f"v_and_b32 v{dst}, v{MLO}, v{src}")
            else:
                if tau & 1: a.e(f"v_and_b32 v{dst}, v{MHI}, v{src}")
                else: a.e(f"v_lshlrev_b32 v{dst}, 16, v{src}")
    for row in range(2):
        def prod(dst, tau):
            for idx, (m, ci) in enumerate(chains):
                a.e(f"v_dot2_f32_bf16 v{dst+idx}, v{KR+4*(3-tau+row)+m}, v{MK+8*tau+idx}, 0")
        prod(PA, 3)
        for tau in (2, 1, 0):
            prod(PB, tau)
            for idx in range(8): a.e(f"v_cvt_pk_bf16_f32 v{XX+idx}, v{PA+idx}, v{PB+idx}")
            for idx in range(8): a.e(f"v_dot2_f32_bf16 v{PA+idx}, v{XX+idx}, v{ONES}, 0")
        Vr = VR + 4 * row
        for m in range(4):
            a.e(f"v_and_b32 v{XX+2*m}, v{MLO}, v{Vr+m}")
            a.e(f"v_and_b32 v{XX+2*m+1}, v{MHI}, v{Vr+m}")
        for m in range(4): a.e(f"v_cvt_pk_bf16_f32 v{PB+m}, v{PA+2*m}, v{PA+2*m+1}")
        for m in range(4):
            a.e(f"v_dot2_f32_bf16 v{PA+2*m}, v{PB+m}, v{XX+2*m}, 0")
            a.e(f"v_dot2_f32_bf16 v{PA+2*m+1}, v{PB+m}, v{XX+2*m+1}, 0")
        KVR = 116
        for m in range(4): a.e(f"v_cvt_pk_bf16_f32 v{KVR+m}, v{PA+2*m}, v{PA+2*m+1}")
        a.e(f"ds_write_b128 v{vRC}, v[{KVR}:{KVR+3}] offset:{KVT + 128*row}")
    a.e("s_waitcnt vmcnt(0) lgkmcnt(0)")
    a.ds_done = a.ds_issued
    a.stamp(3)
    a.e("s_barrier")
    XO = 32
    def tr_and_store(sc, base_q, base_kv):
        toks = []
        for ai, T in enumerate((KVT, QT)):
            for blk in range(2):
                r = XO + 8 * ai + 4 * blk
                a.e(f"ds_read_b64_tr_b16 v[{r}:{r+1}], v{vTR} offset:{T + 4096*blk + 512}")
                toks.append(a.e(f"ds_read_b64_tr_b16 v[{r+2}:{r+3}], v{vTR} offset:{T + 4096*blk}"))
        a.e(f"s_mov_b32 s77, {base_kv}")
        a.e(f"s_mov_b32 s78, {base_q}")
        for ai in range(2):
            for blk in range(2):
                r = XO + 8 * ai + 4 * blk
                a.wait_ds(toks[2 * ai + blk])
                a.e(f"buffer_store_dwordx4 v[{r}:{r+3}], v{vXS}, s[60:63], s{77+ai} offen offset:{64*(1-blk)}{sc}")
    tr_and_store("", WS_XQ, WS_XKV)
    a.e("s_cmp_eq_u32 s8, 0")
    a.e("s_cbranch_scc0 L_XNOAL")
    aloads()
    a.label("L_XNOAL")
    a.e("s_waitcnt vmcnt(0)")
    a.stamp(4)
    a.e("s_barrier")
    a.e("s_branch L_JOIN")
    a.label("L_KPATH")
    a.e("v_mov_b32 v5, 0"); a.e("v_mov_b32 v6, -1")
    a.e("v_and_b32 v32, 127, v0")
    a.e("v_bfe_u32 v33, v0, 7, 1")
    a.e("v_lshlrev_b32 v34, 8, v33")
    a.e("v_lshl_add_u32 v34, v32, 1, v34")
    TA = 35
    a.e(f"v_mul_u32_u24 v{TA}, {TABSZ}, v33")
    a.e(f"v_lshl_add_u32 v{TA}, v32, 2, v{TA}")
    a.e(f"v_add_u32 v{TA}, {TAB0}, v{TA}")
    XA = 36
    a.e("v_and_b32 v45, 255, v0")
    a.e("v_lshlrev_b32 v45, 3, v45")
    for k in range(5):
        a.e(f"v_add_u32 v46, {2*k}, v45")
        a.e(f"v_add_u32 v47, {2*k+1}, v45")
        a.e("v_cvt_f32_u32 v46, v46")
        a.e("v_cvt_f32_u32 v47, v47")
        a.e("v_cvt_pk_bf16_f32 v46, v46, v47")
        a.e(f"v_and_b32 v47, v{MHI}, v46")
        a.e("v_lshlrev_b32 v46, 16, v46")
        a.e("v_cvt_u32_f32 v46, v46")
        a.e(f"v_lshlrev_b32 v{XA+2*k}, 1, v46")
        a.e(f"v_add_u32 v{XA+2*k}, {F0}, v{XA+2*k}")
        if k < 4:
            a.e("v_cvt_u32_f32 v47, v47")
            a.e(f"v_lshlrev_b32 v{XA+2*k+1}, 1, v47")
            a.e(f"v_add_u32 v{XA+2*k+1}, {F0}, v{XA+2*k+1}")
    vKW = 31
    a.e(f"v_lshlrev_b32 v{vKW}, 1, v45")
    a.e(f"v_add_u32 v{vKW}, {KC0+32}, v{vKW}")
    vSS = 46
    a.e(f"v_lshlrev_b32 v{vSS}, 1, v45")
    a.e(f"v_add_u32 v{vSS}, s13, v{vSS}")
    a.e("s_cmp_eq_u32 s3, 3")
    a.e("s_cbranch_scc0 L_KW1")
    a.e("s_waitcnt vmcnt(4) lgkmcnt(0)")
    a.e("s_branch L_KW2")
    a.label("L_KW1")
    a.e("s_waitcnt vmcnt(3) lgkmcnt(0)")
    a.label("L_KW2")
    a.stamp(1)
    a.e("s_barrier")
    T0a, T1a, T0b, T1b = 48, 52, 56, 60
    TLATE = cfg.get("tlate", False)
    if not TLATE:
        a.e(f"buffer_load_dwordx4 v[{T0a}:{T0a+3}], v{vSS}, s[68:71], 0 offen")
        a.e(f"buffer_load_dwordx4 v[{T1a}:{T1a+3}], v{vSS}, s[68:71], 0 offen offset:4")
        a.e("s_mov_b32 s77, 4096")
        a.e(f"buffer_load_dwordx4 v[{T0b}:{T0b+3}], v{vSS}, s[68:71], s77 offen")
        a.e(f"buffer_load_dwordx4 v[{T1b}:{T1b+3}], v{vSS}, s[68:71], s77 offen offset:4")
    PR = 66
    for i in range(6): tp = a.e(f"ds_read_u16_d16_hi v{PR+i}, v34 offset:{PAR + 512*i}")
    Are, Aim, Bre, Bim, Cre, Cim = [PR + i for i in range(6)]
    DT, RHO, PHI = 72, 73, 74
    C = 76
    a.e("v_bfe_u32 v75, v0, 7, 1")
    a.e("v_lshlrev_b32 v75, 4, v75")
    a.e(f"v_lshrrev_b32 v{DT}, v75, s76") if False else None
    a.e(f"v_mov_b32 v{DT}, s76")
    a.e(f"v_lshrrev_b32 v{DT}, v75, v{DT}")
    a.e(f"v_lshlrev_b32 v{DT}, 16, v{DT}")
    a.e(f"v_mul_f32 v{DT}, 0x{LOG2E:08x}, v{DT}")
    a.e(f"v_exp_f32 v{DT}, v{DT}")
    a.e(f"v_cvt_pk_bf16_f32 v{DT}, 0, v{DT}")
    a.wait_ds(tp)
    a.e(f"v_mul_f32 v{RHO}, v{DT}, v{Are}")
    a.e(f"v_mul_f32 v{PHI}, v{DT}, v{Aim}")
    a.e(f"v_mul_f32 v{RHO}, 0x{LOG2E:08x}, v{RHO}")
    a.e(f"v_mul_f32 v{PHI}, 0.15915494, v{PHI}")
    a.e(f"v_mul_f32 v{Bre}, v{DT}, v{Bre}")
    a.e(f"v_mul_f32 v{Bim}, v{DT}, v{Bim}")
    a.e(f"v_mul_f32 v{C}, v{Cre}, v{Bre}")
    a.e(f"v_mul_f32 v{C+1}, v{Cre}, v{Bim}")
    a.e(f"v_fma_f32 v{C}, -v{Cim}, v{Bim}, v{C}")
    a.e(f"v_fma_f32 v{C+1}, v{Cim}, v{Bre}, v{C+1}")
    Z1, Z64 = 78, 82
    VV = [92, 94, 96, 98]
    TMP = [112, 114, 116, 118, 120, 122]
    PT = [124, 125, 126, 127]
    pw = [(Z1, 1), (Z64, 64)]
    for i, (dst, m) in enumerate(pw):
        a.e(f"v_mul_f32 v{TMP[0]+i}, 0x{fbits(m):08x}, v{RHO}")
        a.e(f"v_mul_f32 v{TMP[3]+i}, 0x{fbits(m):08x}, v{PHI}")
    for i, (dst, m) in enumerate(pw):
        a.e(f"v_exp_f32 v{TMP[0]+i}, v{TMP[0]+i}")
        a.e(f"v_fract_f32 v{TMP[3]+i}, v{TMP[3]+i}")
    for i, (dst, m) in enumerate(pw):
        a.e(f"v_cos_f32 v{dst}, v{TMP[3]+i}")
        a.e(f"v_sin_f32 v{dst+1}, v{TMP[3]+i}")
    for i, (dst, m) in enumerate(pw):
        a.e(f"v_mul_f32 v{dst}, v{TMP[0]+i}, v{dst}")
        a.e(f"v_mul_f32 v{dst+1}, v{TMP[0]+i}, v{dst+1}")
    pti = [0]
    def put(entry, pair, neg):
        tmp = PT[pti[0] % 4]; pti[0] += 1
        a.e(f"v_cvt_pk_bf16_f32 v{tmp}, v{pair}, {'-' if neg else ''}v{pair+1}")
        a.e(f"ds_write_b32 v{TA}, v{tmp} offset:{entry*ENT}")
    a.e(f"v_mov_b32 v{VV[0]}, v{C}"); a.e(f"v_mov_b32 v{VV[0]+1}, v{C+1}")
    cmul(a, VV[1], VV[0], Z1, TMP[2])
    cmul(a, VV[2], VV[1], Z1, TMP[2])
    cmul(a, VV[3], VV[2], Z1, TMP[2])
    for i in range(16):
        ps = [0, 1, 2, 3] if i < 4 else ([0, 2] if i < 8 else [0])
        if i > 0:
            for p in ps: cmul(a, VV[p], VV[p], Z64, TMP[2 + p])
        for p in ps:
            if i < 4: ent = 24 + 4 * i + p
            elif i < 8: ent = 24 + 16 + 2 * (i - 4) + p // 2
            else: ent = 24 + 16 + i
            put(ent, VV[p], True)
    a.e("s_waitcnt vmcnt(0)") if TLATE else a.e("s_waitcnt vmcnt(4)")
    T = 66
    for m in range(4):
        a.e(f"v_and_b32 v{T+2*m}, v{MLO}, v{GW+m}")
        a.e(f"v_and_b32 v{T+2*m+1}, v{MHI}, v{GW+m}")
    GA = [90, 91]
    for ri, GQ in enumerate((GQ0, GQ1)):
        U = 74 + 8 * ri
        for m in range(4):
            a.e(f"v_dot2_f32_bf16 v{U+2*m}, v{GQ+m}, v{T+2*m}, 0")
            a.e(f"v_dot2_f32_bf16 v{U+2*m+1}, v{GQ+m}, v{T+2*m+1}, 0")
    for ri in range(2):
        U = 74 + 8 * ri
        for m in range(4): a.e(f"v_cvt_pk_bf16_f32 v{92+4*ri+m}, v{U+2*m}, v{U+2*m+1}")
    for ri in range(2):
        U = 74 + 8 * ri
        for m in range(4):
            a.e(f"v_lshlrev_b32 v{U+2*m}, 16, v{92+4*ri+m}")
            a.e(f"v_and_b32 v{U+2*m+1}, v{MHI}, v{92+4*ri+m}")
    for ri in range(2):
        U = 74 + 8 * ri
        for m in range(4): a.e(f"v_add_f32 v{U+2*m}, v{U+2*m}, v{U+2*m+1}")
    for ri in range(2):
        U = 74 + 8 * ri
        a.e(f"v_add_f32 v{U}, v{U}, v{U+2}")
        a.e(f"v_add_f32 v{U+4}, v{U+4}, v{U+6}")
    for ri in range(2):
        U = 74 + 8 * ri
        a.e(f"v_add_f32 v{GA[ri]}, v{U}, v{U+4}")
    for sh in (1, 2, 4, 8):
        for ri in range(2): a.e(f"v_add_f32_dpp v{GA[ri]}, v{GA[ri]}, v{GA[ri]} row_shr:{sh} row_mask:0xf bank_mask:0xf bound_ctrl:0")
    for ri in range(2): a.e(f"v_add_f32_dpp v{GA[ri]}, v{GA[ri]}, v{GA[ri]} row_bcast:15 row_mask:0xa bank_mask:0xf")
    for ri in range(2): a.e(f"v_add_f32_dpp v{GA[ri]}, v{GA[ri]}, v{GA[ri]} row_bcast:31 row_mask:0xc bank_mask:0xf")
    for ri in range(2): a.e(f"v_cvt_pk_bf16_f32 v{GA[ri]}, 0, v{GA[ri]}")
    for ri in range(2): a.e(f"v_mul_f32 v{GA[ri]}, 0x{LOG2E ^ 0x80000000:08x}, v{GA[ri]}")
    for ri in range(2): a.e(f"v_exp_f32 v{GA[ri]}, v{GA[ri]}")
    for ri in range(2): a.e(f"v_add_f32 v{GA[ri]}, 1.0, v{GA[ri]}")
    for ri in range(2): a.e(f"v_rcp_f32 v{GA[ri]}, v{GA[ri]}")
    for ri in range(2): a.e(f"v_cvt_pk_bf16_f32 v{GA[ri]}, 0, v{GA[ri]}")
    for ri in range(2): a.e(f"v_sub_f32 v{92+ri}, 1.0, v{GA[ri]}")
    for ri in range(2): a.e(f"v_cvt_pk_bf16_f32 v{94+ri}, v{GA[ri]}, v{92+ri}")
    a.e("s_lshl_b32 s77, s12, 2")
    a.e(f"s_add_u32 s77, s77, {WS_GP}")
    a.e("v_mov_b32 v96, s77")
    a.e("s_mov_b32 exec_lo, 0")
    a.e("s_mov_b32 exec_hi, 0x80000000")
    a.e("buffer_store_dwordx2 v[94:95], v96, s[60:63], 0 offen sc1")
    a.e("s_mov_b64 exec, -1")
    a.wait_ds_all()
    a.stamp(2)
    a.e("s_barrier")
    if TLATE:
        a.e(f"buffer_load_dwordx4 v[{T0a}:{T0a+3}], v{vSS}, s[68:71], 0 offen")
        a.e(f"buffer_load_dwordx4 v[{T1a}:{T1a+3}], v{vSS}, s[68:71], 0 offen offset:4")
        a.e("s_mov_b32 s77, 4096")
        a.e(f"buffer_load_dwordx4 v[{T0b}:{T0b+3}], v{vSS}, s[68:71], s77 offen")
        a.e(f"buffer_load_dwordx4 v[{T1b}:{T1b+3}], v{vSS}, s[68:71], s77 offen offset:4")
    if cfg.get("pretouch", True):
        a.e("s_cmp_eq_u32 s3, 1")
        a.e("s_cbranch_scc0 L_NOPT")
        a.e("s_lshl_b32 s77, s4, 18")
        a.e("s_add_u32 s77, s77, 3968")
        a.e("s_lshl_b32 s78, s5, 7")
        a.e("s_sub_u32 s77, s77, s78")
        a.e("v_lshlrev_b32 v66, 12, v2")
        a.e("v_add_u32 v66, s77, v66")
        a.e(f"s_mov_b32 s78, {WS_XKV}")
        a.e("buffer_load_dword v112, v66, s[60:63], 0 offen sc1")
        a.e("buffer_load_dword v113, v66, s[60:63], s78 offen sc1")
        a.label("L_NOPT")
    a.e(f"s_and_b32 s77, s{MQ}, 1")
    a.e(f"s_mul_i32 s78, s77, {FSZ}")
    a.e(f"s_add_u32 s79, s78, {F0}")
    a.e(f"s_mul_i32 s77, s77, {TABSZ}")
    a.e(f"s_add_u32 s77, s77, {TAB0}")
    a.e(f"v_mul_u32_u24 v66, {ENT}, v{J}")
    a.e(f"v_lshl_add_u32 v66, v{Q4}, 4, v66")
    a.e("v_add_u32 v66, s77, v66")
    a.e(f"s_cmp_gt_u32 s{MQ}, 1")
    a.e("s_cbranch_scc1 L_JOB2")
    toks = []
    for ks in range(8):
        a.e(f"ds_read_b128 a[{4*ks}:{4*ks+3}], v66 offset:{64*ks}")
        a.e(f"ds_read_b128 a[{32+4*ks}:{32+4*ks+3}], v66 offset:{24*ENT + 64*ks}")
        toks.append(a.e(f"ds_read_b128 a[{64+4*ks}:{64+4*ks+3}], v66 offset:{40*ENT + 64*ks}"))
    a.e(f"v_lshlrev_b32 v68, 6, v{Q4}")
    a.e(f"v_lshl_add_u32 v68, v{J}, 2, v68")
    a.e("v_lshlrev_b32 v68, 1, v68")
    a.e("v_add_u32 v68, s79, v68")
    a.e(f"v_cmp_gt_u32 vcc, 2, v{Q4}")
    a.e(f"v_lshlrev_b32 v74, 7, v{Q4}")
    a.e("v_add_u32 v74, 256, v74")
    a.e(f"v_lshlrev_b32 v75, 8, v{Q4}")
    a.e(f"v_cndmask_b32 v70, v75, v74, vcc")
    a.e(f"v_lshl_add_u32 v70, v{J}, 2, v70")
    for e, (o1, o2) in enumerate(((2, 64), (64, 128), (66, 192)), start=1):
        a.e(f"v_mov_b32 v74, {o2}")
        a.e(f"v_mov_b32 v75, {o1}")
        a.e(f"v_cndmask_b32 v74, v74, v75, vcc")
        a.e(f"v_add_u32 v{70+e}, v70, v74")
    for e in range(4):
        a.e(f"v_lshlrev_b32 v{70+e}, 1, v{70+e}")
        a.e(f"v_add_u32 v{70+e}, s79, v{70+e}")
    for ks in range(8):
        a.wait_ds(toks[ks])
        s0 = "0" if ks == 0 else "v[76:79]"; s1 = "0" if ks == 0 else "v[80:83]"
        a.e(f"v_mfma_f32_16x16x32_bf16 v[76:79], a[{32+4*ks}:{32+4*ks+3}], a[{4*ks}:{4*ks+3}], {s0}")
        a.e(f"v_mfma_f32_16x16x32_bf16 v[80:83], a[{64+4*ks}:{64+4*ks+3}], a[{4*ks}:{4*ks+3}], {s1}")
    a.e("v_cvt_pk_bf16_f32 v84, v76, v77")
    a.e("v_cvt_pk_bf16_f32 v85, v78, v79")
    a.e("ds_write_b64 v68, v[84:85]")
    a.e("v_cvt_pk_bf16_f32 v86, v80, v81")
    a.e("v_cvt_pk_bf16_f32 v87, v82, v83")
    a.e("ds_write_b16 v70, v86")
    a.e("ds_write_b16_d16_hi v71, v86")
    a.e("ds_write_b16 v72, v87")
    a.e("ds_write_b16_d16_hi v73, v87")
    a.e("s_branch L_JOBD")
    a.label("L_JOB2")
    a.ds_done = a.ds_issued
    a.e(f"v_lshlrev_b32 v67, 1, v{J}")
    a.e(f"v_add_u32 v68, 8, v{J}")
    a.e(f"v_cmp_gt_u32 vcc, 8, v{J}")
    a.e("v_cndmask_b32 v67, v68, v67, vcc")
    a.e(f"v_mul_u32_u24 v67, {ENT}, v67")
    a.e(f"v_lshl_add_u32 v67, v{Q4}, 4, v67")
    a.e("v_add_u32 v67, s77, v67")
    toks = []
    for ks in range(8):
        a.e(f"ds_read_b128 a[{4*ks}:{4*ks+3}], v67 offset:{64*ks}")
        toks.append(a.e(f"ds_read_b128 a[{32+4*ks}:{32+4*ks+3}], v66 offset:{56*ENT + 64*ks}"))
    a.e(f"v_lshlrev_b32 v70, 9, v{Q4}")
    a.e(f"v_lshl_add_u32 v70, v{J}, 3, v70")
    a.e("v_add_u32 v70, 1024, v70")
    a.e("v_lshlrev_b32 v70, 1, v70")
    a.e("v_add_u32 v70, s79, v70")
    for ks in range(8):
        a.wait_ds(toks[ks])
        s0 = "0" if ks == 0 else "v[76:79]"
        a.e(f"v_mfma_f32_16x16x32_bf16 v[76:79], a[{32+4*ks}:{32+4*ks+3}], a[{4*ks}:{4*ks+3}], {s0}")
    a.e("v_cvt_pk_bf16_f32 v84, v76, v77")
    a.e("v_cvt_pk_bf16_f32 v85, v78, v79")
    a.e("ds_write_b16 v70, v84")
    a.e("ds_write_b16_d16_hi v70, v84 offset:256")
    a.e("ds_write_b16 v70, v85 offset:512")
    a.e("ds_write_b16_d16_hi v70, v85 offset:768")
    a.label("L_JOBD")
    a.e("s_cmp_eq_u32 s3, 1")
    a.e("s_cbranch_scc1 L_WT6")
    a.e("s_waitcnt vmcnt(0)")
    a.e("s_branch L_WTD")
    a.label("L_WT6")
    a.e("s_waitcnt vmcnt(2)") if cfg.get("pretouch", True) else a.e("s_waitcnt vmcnt(0)")
    a.label("L_WTD")
    for chn, (T0, T1) in enumerate(((T0a, T1a), (T0b, T1b))):
        O = 104 + 4 * chn
        for jx in range(4): a.e(f"v_alignbit_b32 v{O+jx}, v{T1+jx}, v{T0+jx}, 16")
        a.e(f"ds_write_b128 v{vKW}, v[{T0}:{T0+3}] offset:{KCS*2*chn}")
        a.e(f"ds_write_b128 v{vKW}, v[{O}:{O+3}] offset:{KCS*2*chn+4160}")
    def pads(items, lab):
        a.e("s_cmp_eq_u32 s3, 0")
        a.e(f"s_cbranch_scc0 {lab}")
        a.e("v_lshlrev_b32 v112, 2, v2")
        a.e(f"v_add_u32 v112, {KC0}, v112")
        a.e("v_mov_b32 v113, 0")
        a.e("v_cmp_eq_u32 vcc, 7, v2")
        for ccx, reg in items:
            a.e(f"v_readfirstlane_b32 s77, v{reg}")
            a.e("s_nop 3")
            a.e("s_lshl_b32 s77, s77, 16")
            a.e("v_mov_b32 v114, s77")
            a.e("v_cndmask_b32 v114, 0, v114, vcc")
            a.e("s_mov_b64 exec, 0xff")
            a.e(f"ds_write_b32 v112, v113 offset:{KCS*ccx}")
            a.e(f"ds_write_b32 v112, v114 offset:{KCS*ccx+4160}")
            a.e("s_mov_b64 exec, -1")
        a.label(lab)
    pads(((0, T0a), (2, T0b)), "L_NOPADA")
    a.e("s_cmp_eq_u32 s3, 3")
    a.e("s_cbranch_scc0 L_NOEPW")
    a.e(f"v_readfirstlane_b32 s72, v{EPV}")
    a.e("s_add_u32 s72, s72, 1")
    a.e("v_mov_b32 v84, s72")
    a.e(f"v_mov_b32 v85, {EPL}")
    a.e("ds_write_b32 v85, v84")
    a.label("L_NOEPW")
    a.wait_ds_all()
    a.stamp(3)
    a.e("s_barrier")
    a.e("s_cmp_eq_u32 s3, 2")
    a.e("s_cbranch_scc0 L_NOGST")
    a.e(f"v_mov_b32 v67, {EPL}")
    a.e("ds_read_b32 v66, v67")
    a.e("s_lshl_b32 s77, s2, 3")
    a.e(f"s_add_u32 s77, s77, {WS_GF1}")
    a.e("v_mov_b32 v68, s77")
    a.e("s_waitcnt lgkmcnt(0)")
    a.e(f"v_xor_b32 v67, 0x{FLAGC:08x}, v66")
    a.e("s_mov_b64 exec, 1")
    a.e("buffer_store_dwordx2 v[66:67], v68, s[60:63], 0 offen sc1")
    a.e("s_mov_b64 exec, -1")
    a.label("L_NOGST")
    a.ds_done = a.ds_issued
    for chn in range(2):
        EL = 66 + 10 * chn
        for e in range(9): te = a.e(f"ds_read_u16 v{EL+e}, v{XA+e} offset:{FSZ*chn}")
    a.wait_ds(te)
    for chn in range(2):
        EL = 66 + 10 * chn; EE = 88 + 8 * chn; OO = EE + 4
        for k in range(4):
            a.e(f"v_lshl_or_b32 v{EE+k}, v{EL+2*k+1}, 16, v{EL+2*k}")
            a.e(f"v_lshl_or_b32 v{OO+k}, v{EL+2*k+2}, 16, v{EL+2*k+1}")
        a.e(f"ds_write_b128 v{vKW}, v[{EE}:{EE+3}] offset:{KCS*(2*chn+1)}")
        a.e(f"ds_write_b128 v{vKW}, v[{OO}:{OO+3}] offset:{KCS*(2*chn+1)+4160}")
    pads(((1, 66), (3, 76)), "L_NOPADB")
    a.e("s_cmp_eq_u32 s8, 0")
    a.e("s_cbranch_scc0 L_KNOAL")
    aloads()
    a.e("s_waitcnt lgkmcnt(15)")
    a.e("s_branch L_KAL2")
    a.label("L_KNOAL")
    a.e("s_waitcnt lgkmcnt(0)")
    a.label("L_KAL2")
    a.e("s_cmp_eq_u32 s8, 0")
    a.e("s_cselect_b32 s77, s100, s101")
    a.e("s_lshl_b32 s78, s9, 4")
    a.e("s_lshr_b32 s77, s77, s78")
    a.e("s_lshl_b32 s77, s77, 16")
    a.e(f"v_mov_b32 v{DF}, s77")
    a.stamp(4)
    a.e("s_barrier")
    a.label("L_JOIN")
    if cfg.get("xprio", 0): a.e("s_setprio 0")
    a.ds_done = a.ds_issued; a.vm_done = a.vm_issued
    a.e(f"v_mov_b32 v101, {EPL}")
    a.e("ds_read_b32 v100, v101")
    a.e("v_mov_b32 v104, 0"); a.e("v_mov_b32 v105, 0")
    a.e(f"ds_write_b64 v{vPAD}, v[104:105]")
    a.e("s_waitcnt lgkmcnt(0)")
    a.e("v_readfirstlane_b32 s72, v100")
    a.e("s_nop 3")
    a.e(f"s_xor_b32 s73, s72, 0x{FLAGC:08x}")
    a.e("s_add_u32 s97, s97, s73") if not cfg.get("force_fb") else a.e("s_add_u32 s97, s2, s73")
    a.e("s_cmp_eq_u32 s3, 7")
    a.e("s_cbranch_scc0 L_NOFLAG2")
    a.e("v_mov_b32 v120, s72")
    a.e("v_mov_b32 v121, s97")
    a.e("s_lshl_b32 s77, s4, 5")
    a.e("s_add_u32 s77, s77, s5")
    a.e("s_lshl_b32 s77, s77, 3")
    a.e(f"s_add_u32 s78, s77, {WS_LF}")
    a.e("v_mov_b32 v124, s78")
    a.e("s_mov_b64 exec, 1")
    a.e("buffer_store_dwordx2 v[120:121], v124, s[60:63], 0 offen")
    a.e("s_mov_b64 exec, -1")
    a.label("L_NOFLAG2")
    a.e("v_lshlrev_b32 v122, 5, v2")
    a.e(f"v_add_u32 v122, {WS_GF1}, v122")
    a.e("v_and_b32 v123, 31, v2")
    a.e("v_lshlrev_b32 v123, 3, v123")
    a.e("s_lshl_b32 s77, s4, 8")
    a.e(f"s_add_u32 s77, s77, {WS_LF}")
    a.e("v_add_u32 v123, s77, v123")
    a.e("s_cmp_eq_u32 s8, 0")
    a.e("s_cbranch_scc1 L_SKIPAL")
    aloads()
    a.label("L_SKIPAL")
    a.stamp(5)
    XF = cfg.get("xflag", " sc1")
    def pollG(a):
        a.e("buffer_load_dwordx4 v[112:115], v122, s[60:63], 0 offen sc1")
        a.e("buffer_load_dwordx4 v[116:119], v122, s[60:63], 0 offen offset:16 sc1")
    def checkG(a):
        for r in (112, 114, 116, 118): a.e(f"v_xor_b32 v{r}, s72, v{r}")
        for r in (113, 115, 117, 119): a.e(f"v_xor_b32 v{r}, s73, v{r}")
        a.e("v_or_b32 v112, v112, v113"); a.e("v_or_b32 v114, v114, v115"); a.e("v_or_b32 v116, v116, v117"); a.e("v_or_b32 v118, v118, v119")
        a.e("v_or_b32 v112, v112, v114"); a.e("v_or_b32 v116, v116, v118"); a.e("v_or_b32 v112, v112, v116")
    def checkL(a):
        a.e("v_xor_b32 v120, s72, v120")
        a.e("v_xor_b32 v121, s97, v121")
        a.e("v_or_b32 v120, v120, v121")
    a.e("s_cmp_eq_u32 s3, 5")
    a.e("s_cbranch_scc0 L_NOTG")
    a.e("s_mov_b32 s77, 0")
    a.label("L_GPOLL")
    pollG(a)
    a.e("s_waitcnt vmcnt(0)")
    checkG(a)
    a.e("v_cmp_ne_u32 vcc, 0, v112")
    a.e("s_add_u32 s77, s77, 1")
    a.e("s_nop 3")
    a.e("s_cmp_eq_u64 vcc, 0")
    a.e("s_cbranch_scc1 L_POLLDONE")
    a.e("s_cmp_lt_u32 s77, 20000")
    a.e("s_cbranch_scc1 L_GPOLL")
    a.e("s_branch L_POLLDONE")
    a.label("L_NOTG")
    a.e("s_cmp_eq_u32 s3, 7")
    a.e("s_cbranch_scc0 L_POLLDONE")
    a.e("s_mov_b32 s77, 0")
    a.label("L_POLL")
    a.e("buffer_load_dwordx2 v[120:121], v123, s[60:63], 0 offen sc1")
    a.e("s_waitcnt vmcnt(0)")
    checkL(a)
    a.e("v_cmp_ne_u32 vcc, 0, v120")
    a.e("s_add_u32 s77, s77, 1")
    a.e("s_mov_b32 s98, 1")
    a.e("s_nop 2")
    a.e("s_cmp_eq_u64 vcc, 0")
    a.e("s_cbranch_scc1 L_POLLOUT")
    a.e(f"s_cmp_lt_u32 s77, {cfg.get('NA', 24)}")
    a.e("s_cbranch_scc1 L_POLL")
    a.e("s_mov_b32 s98, 2")
    a.label("L_POLLOUT")
    a.e("v_mov_b32 v120, s98")
    a.e(f"v_mov_b32 v121, {RES}")
    a.e("ds_write_b32 v121, v120")
    a.label("L_POLLDONE")
    a.wait_ds_all()
    a.vm_done = a.vm_issued
    a.stamp(8)
    a.e("s_barrier")
    a.e(f"v_mov_b32 v121, {RES}")
    a.e("ds_read_b32 v120, v121")
    a.e("s_mov_b32 s99, 0")
    a.e("s_waitcnt lgkmcnt(0)")
    a.e("v_readfirstlane_b32 s98, v120")
    a.e("s_nop 3")
    a.e("s_cmp_eq_u32 s98, 1")
    a.e("s_cbranch_scc1 L_FAST")
    a.e("s_cmp_eq_u32 s7, 0")
    a.e("s_cbranch_scc1 L_FBK")
    tr_and_store(" sc1", WS_X2 + WS_XQ, WS_X2 + WS_XKV)
    a.label("L_FBK")
    a.e("s_waitcnt vmcnt(0)")
    a.e("s_barrier")
    a.e("s_cmp_eq_u32 s3, 7")
    a.e("s_cbranch_scc0 L_FB2")
    a.e("v_mov_b32 v120, s72")
    a.e("v_mov_b32 v121, s73")
    a.e("s_lshl_b32 s77, s4, 5")
    a.e("s_add_u32 s77, s77, s5")
    a.e("s_lshl_b32 s77, s77, 3")
    a.e(f"s_add_u32 s78, s77, {WS_GF2}")
    a.e("v_mov_b32 v124, s78")
    a.e("s_mov_b64 exec, 1")
    a.e("buffer_store_dwordx2 v[120:121], v124, s[60:63], 0 offen sc1")
    a.e("s_mov_b64 exec, -1")
    a.e(f"v_add_u32 v124, {WS_GF2 - WS_LF}, v123")
    a.e("s_mov_b32 s77, 0")
    a.label("L_FBPOLL")
    a.e("buffer_load_dwordx2 v[120:121], v123, s[60:63], 0 offen sc1")
    a.e("buffer_load_dwordx2 v[126:127], v124, s[60:63], 0 offen sc1")
    a.e("s_waitcnt vmcnt(0)")
    checkL(a)
    a.e("v_xor_b32 v126, s72, v126")
    a.e("v_xor_b32 v127, s73, v127")
    a.e("v_or_b32 v126, v126, v127")
    a.e("s_add_u32 s77, s77, 1")
    a.e("s_cmp_ge_u32 s77, 20000")
    a.e("s_cbranch_scc1 L_FBGIVE")
    a.e("v_cmp_ne_u32 vcc, 0, v120")
    a.e("s_mov_b32 s98, 1")
    a.e("s_nop 3")
    a.e("s_cmp_eq_u64 vcc, 0")
    a.e("s_cbranch_scc1 L_FBOUT")
    a.e("v_cmp_ne_u32 vcc, 0, v126")
    a.e("s_nop 4")
    a.e("s_cmp_eq_u64 vcc, 0")
    a.e("s_cbranch_scc0 L_FBPOLL")
    a.label("L_FBGIVE")
    a.e("s_mov_b32 s98, 2")
    a.label("L_FBOUT")
    a.e("v_mov_b32 v120, s98")
    a.e(f"v_mov_b32 v121, {RES}")
    a.e("ds_write_b32 v121, v120")
    a.e("s_waitcnt lgkmcnt(0)")
    a.label("L_FB2")
    a.e("s_barrier")
    a.e(f"v_mov_b32 v121, {RES}")
    a.e("ds_read_b32 v120, v121")
    a.e("s_waitcnt lgkmcnt(0)")
    a.e("v_readfirstlane_b32 s98, v120")
    a.e("s_nop 3")
    a.e("s_cmp_eq_u32 s98, 2")
    a.e(f"s_cselect_b32 s99, {WS_X2}, 0")
    XL = 72
    a.e(f"buffer_load_dwordx4 v[{XL}:{XL+3}], v13, s[60:63], s99 offen sc1")
    a.e(f"s_add_u32 s77, s99, {WS_XKV}")
    a.e(f"buffer_load_dwordx4 v[{XL+4}:{XL+7}], v13, s[60:63], s77 offen sc1")
    a.e("s_branch L_XISSUED")
    a.label("L_FAST")
    a.e(f"buffer_load_dwordx4 v[{XL}:{XL+3}], v13, s[60:63], 0 offen{XF}")
    a.e(f"s_mov_b32 s77, {WS_XKV}")
    a.e(f"buffer_load_dwordx4 v[{XL+4}:{XL+7}], v13, s[60:63], s77 offen{XF}")
    a.label("L_XISSUED")
    a.ds_done = a.ds_issued; a.vm_done = a.vm_issued
    a.e(f"s_mov_b32 s77, {WS_GP}")
    a.e(f"buffer_load_dwordx4 v[28:31], v4, s[60:63], s77 offen sc1")
    a.e(f"v_add_u32 v5, {GM}, v4")
    a.stamp(9)
    a.e("s_waitcnt vmcnt(1)")
    a.e(f"ds_write_b128 v{vXL}, v[{XL}:{XL+3}] offset:{XRS}")
    a.e(f"ds_write_b128 v{vXL}, v[{XL+4}:{XL+7}]")
    a.e("s_waitcnt lgkmcnt(0)")
    a.ds_done = a.ds_issued; a.vm_done = a.vm_issued
    a.stamp(13)
    a.e("s_barrier")
    a.e("s_cmp_lg_u32 s2, 0")
    a.e("s_cbranch_scc1 L_NOEP")
    a.e("s_cmp_lg_u32 s3, 7")
    a.e("s_cbranch_scc1 L_NOEP")
    a.e("v_mov_b32 v72, s72")
    a.e(f"v_mov_b32 v73, {WS_EP}")
    a.e("s_mov_b64 exec, 1")
    a.e("buffer_store_dword v72, v73, s[60:63], 0 offen")
    a.e("s_mov_b64 exec, -1")
    a.label("L_NOEP")
    a.e("s_cmp_lg_u32 s7, 0")
    a.e("s_cbranch_scc1 L_H1")
    ctx = dict(vB=vB, vX=vX, vQ=vQ, vG=vG, vPX=vPX, vGW=vGW, vCMB=vCMB, vOUT=vOUT, SQL=SQL, SQH=SQH, ONEF=ONEF, SG=SG, DF=DF, MHI=27,
               nostore=cfg.get("nostore"), noepi=cfg.get("noepi"), vA=vA, CPRE=CPRE)
    for kk in ("G1", "G2", "G3", "nobar", "novalu", "bstamp", "NB0", "NB1"):
        if kk in cfg: ctx[kk] = cfg[kk]
    if cfg.get("h0prio", 0): a.e(f"s_setprio {cfg['h0prio']}")
    main_loop(a, 0, passes, NB, LOOK, RATE, ctx)
    a.e("s_endpgm")
    a.label("L_H1")
    if cfg.get("h1prio", 0): a.e(f"s_setprio {cfg['h1prio']}")
    main_loop(a, 1, passes, NB, LOOK, RATE, ctx)
    a.label("L_END")
    a.e("s_endpgm")
    a.label("L_CODE_END")

def main_loop(a, h, passes, NB, LOOK, RATE, c):
    ACC0 = 32
    BR = 48
    NB = c.get("NB1", 16) if h == 1 else c.get("NB0", 12)
    EP = BR + 4 * NB
    assert EP + (32 if h == 0 else 8) <= 128
    MHI = c["MHI"]
    a.e(f"v_mov_b32 v{MHI}, 0xffff0000")
    def areg(cidx, rho): return 4 * (cidx * 4 + rho)
    n = len(passes)
    accof = {}
    for pi, P in enumerate(passes):
        assert len(P) <= 2
        for k, t in enumerate(P): accof[t] = ACC0 + 8 * (pi % 2) + 4 * k
    G1, G2, G3 = c.get("G1", 2), c.get("G2", 2), c.get("G3", 5)
    mf = []; loads = []; bseq = 0; pstart = []; pend = []; seenA = set(); tokA = {}
    for P in passes:
        thi = max(P)
        pstart.append(len(mf))
        for rho in range(4):
            for dl in range(thi + 1):
                users = [t for t in P if t - dl >= 0]
                if not users: continue
                for t in users:
                    cidx = t - dl
                    if cidx >= c["CPRE"] and (cidx, rho) not in seenA:
                        seenA.add((cidx, rho))
                        loads.append(dict(kind="A", c=cidx, rho=rho, need=max(0, len(mf) - c.get("ALEAD", 10))))
                loads.append(dict(kind="B", dl=dl, rho=rho, need=len(mf), b=bseq))
                for t in users: mf.append(dict(t=t, c=t - dl, rho=rho, b=bseq))
                bseq += 1
        pend.append(len(mf))
    lastuse = {}
    for i, m in enumerate(mf): lastuse[m["b"]] = i
    tokB = {}; st = dict(li=0); started = set(); side = []
    V = (lambda f: None) if c.get("novalu") else (lambda f: side.append(("v", f)))
    X = lambda f: side.append(("x", f))
    def run_side(nv):
        k = 0
        while side:
            it = side[0]
            if it[0] == "gap":
                if it[1] <= 0: side.pop(0); continue
                side[0] = ("gap", it[1] - 1)
                return
            if it[0] == "v":
                if k >= nv: return
                k += 1
            side.pop(0); it[1]()
    def flush_side():
        while side:
            if side[0][0] == "gap": side.pop(0); continue
            run_side(1000)
    def prefetch(i, limit):
        while st["li"] < len(loads):
            L = loads[st["li"]]
            if L["need"] > i + LOOK or L["need"] >= limit: break
            if L["kind"] == "A":
                r = areg(L["c"], L["rho"]); o = 128 * (L["c"] & 1) + 16 * L["rho"]; va = c["vA"][L["c"] >> 1]
                a.e(f"ds_read2_b32 a[{r}:{r+1}], v{va} offset0:{o} offset1:{o+1}")
                tokA[(L["c"], L["rho"])] = a.e(f"ds_read2_b32 a[{r+2}:{r+3}], v{va} offset0:{o+2} offset1:{o+3}")
                st["li"] += 1
                continue
            prev = L["b"] - NB
            if prev >= 0 and lastuse[prev] >= i: break
            r = BR + 4 * (L["b"] % NB)
            tokB[L["b"]] = a.e(f"ds_read_b128 v[{r}:{r+3}], v{c['vB']} offset:{64*L['rho'] + 512*(7-L['dl'])}")
            st["li"] += 1
    def emit_pass(pi, init_tok=None):
        for i in range(pstart[pi], pend[pi]):
            m = mf[i]
            prefetch(i, 10**9)
            a.wait_ds(tokB[m["b"]])
            if (m["c"], m["rho"]) in tokA: a.wait_ds(tokA[(m["c"], m["rho"])])
            ar = areg(m["c"], m["rho"]); br = BR + 4 * (m["b"] % NB); ac = accof[m["t"]]
            if m["t"] in started: src = f"v[{ac}:{ac+3}]"
            else:
                started.add(m["t"])
                if init_tok is not None:
                    a.wait_ds(init_tok[m["t"]]); src = f"v[{ac}:{ac+3}]"
                else: src = "0"
            a.e(f"v_mfma_f32_16x16x32_bf16 v[{ac}:{ac+3}], a[{ar}:{ar+3}], v[{br}:{br+3}], {src}")
            run_side(RATE)
    bcount = [0]
    def barrier():
        if bcount[0] == 0:
            a.e("s_waitcnt vmcnt(0)")
            tg = a.e("ds_write_b128 v5, v[28:31]")
            a.wait_ds(tg)
        if c.get("bstamp"):
            a.raw(f"  s_memtime s[{56 + 0}:{57}]") if False else None
            a.e(f"s_memtime s[{16+2*bcount[0]}:{17+2*bcount[0]}]")
        if not c.get("nobar"): a.e("s_barrier")
        bcount[0] += 1
    def regs_fin(k):
        E = EP + 12 * k
        return E, E + 4, E + 8
    def q_fin_pre(P):
        assert len(P) <= 2
        XO, QM = EP + 24, EP + 26
        for k, t in enumerate(P):
            TT, UU, GG = regs_fin(k)
            tk = {}
            X(lambda t=t: a.e(f"ds_read_b64 v[{XO}:{XO+1}], v{c['vX']} offset:{512*(7-t)}"))
            X(lambda t=t: a.e(f"ds_read_b64 v[{QM}:{QM+1}], v{c['vQ']} offset:{512*(7-t)}"))
            def rg(t=t, GG=GG, tk=tk): tk[0] = a.e(f"ds_read_b128 v[{GG}:{GG+3}], v{c['vG']} offset:{1024*t}")
            X(rg)
            side.append(("gap", G3))
            X(lambda tk=tk: a.wait_ds(tk[0]))
            V(lambda TT=TT: a.e(f"v_lshlrev_b32 v{TT+3}, 16, v{XO}"))
            V(lambda TT=TT: a.e(f"v_and_b32 v{TT+2}, v{MHI}, v{XO}"))
            V(lambda TT=TT: a.e(f"v_lshlrev_b32 v{TT+1}, 16, v{XO+1}"))
            V(lambda TT=TT: a.e(f"v_and_b32 v{TT+0}, v{MHI}, v{XO+1}"))
            V(lambda UU=UU: a.e(f"v_perm_b32 v{UU+3}, v{QM}, v{c['ONEF']}, v{c['SQL']}"))
            V(lambda UU=UU: a.e(f"v_perm_b32 v{UU+2}, v{QM}, v{c['ONEF']}, v{c['SQH']}"))
            V(lambda UU=UU: a.e(f"v_perm_b32 v{UU+1}, v{QM+1}, v{c['ONEF']}, v{c['SQL']}"))
            V(lambda UU=UU: a.e(f"v_perm_b32 v{UU+0}, v{QM+1}, v{c['ONEF']}, v{c['SQH']}"))
            for e in range(4): V(lambda e=e, TT=TT: a.e(f"v_mul_f32 v{TT+e}, v{c['DF']}, v{TT+e}"))
            for e in range(4): V(lambda e=e, GG=GG: a.e(f"v_perm_b32 v{GG+e}, v{GG+e}, v{GG+e}, v{c['SG']}"))
            for e in range(4): V(lambda e=e, TT=TT: a.e(f"v_cvt_pk_bf16_f32 v{TT+e}, 0, v{TT+e}"))
    def q_fin_post(P):
        DD = EP + 28
        def stage(fn):
            for k, t in enumerate(P):
                TT, UU, GG = regs_fin(k); ac = accof[t]
                for e in range(4): V(lambda e=e, ac=ac, TT=TT, UU=UU, GG=GG: fn(e, ac, TT, UU, GG))
        stage(lambda e, ac, TT, UU, GG: a.e(f"v_cvt_pk_bf16_f32 v{ac+e}, 0, v{ac+e}"))
        stage(lambda e, ac, TT, UU, GG: a.e(f"v_add_f32 v{ac+e}, v{ac+e}, v{TT+e}"))
        stage(lambda e, ac, TT, UU, GG: a.e(f"v_cvt_pk_bf16_f32 v{ac+e}, 0, v{ac+e}"))
        stage(lambda e, ac, TT, UU, GG: a.e(f"v_mul_f32 v{ac+e}, v{ac+e}, v{UU+e}"))
        stage(lambda e, ac, TT, UU, GG: a.e(f"v_cvt_pk_bf16_f32 v{ac+e}, 0, v{ac+e}"))
        stage(lambda e, ac, TT, UU, GG: a.e(f"v_mul_f32 v{ac+e}, v{ac+e}, v{GG+e}"))
        for k, t in enumerate(P):
            ac = accof[t]
            V(lambda ac=ac, k=k: a.e(f"v_cvt_pk_bf16_f32 v{DD+2*k}, v{ac+0}, v{ac+1}"))
            V(lambda ac=ac, k=k: a.e(f"v_cvt_pk_bf16_f32 v{DD+2*k+1}, v{ac+2}, v{ac+3}"))
        for k, t in enumerate(P):
            X(lambda t=t, k=k: a.e(f"ds_write_b64 v{c['vGW']}, v[{DD+2*k}:{DD+2*k+1}] offset:{512*t}"))
    def q_combine(P):
        tkc = {}
        for k, t in enumerate(P):
            CM = [EP + 4 * k + i for i in range(4)]
            for cc2 in range(4):
                def rd(cc2=cc2, t=t, CM=CM): tkc[t] = a.e(f"ds_read_u16_d16_hi v{CM[cc2]}, v{c['vCMB']} offset:{4096*cc2+512*t}")
                X(rd)
        side.append(("gap", G3))
        for k, t in enumerate(P):
            CM = [EP + 4 * k + i for i in range(4)]
            X(lambda t=t: a.wait_ds(tkc[t]))
            V(lambda CM=CM: a.e(f"v_add_f32 v{CM[0]}, v{CM[0]}, v{CM[1]}"))
            V(lambda CM=CM: a.e(f"v_add_f32 v{CM[2]}, v{CM[2]}, v{CM[3]}"))
            X(lambda t=t: a.e(f"s_mov_b32 s77, {t*262144}"))
            V(lambda CM=CM: a.e(f"v_cvt_pk_bf16_f32 v{CM[1]}, v{CM[0]}, v{CM[2]}"))
            if not c.get("nostore"): X(lambda CM=CM: a.e(f"buffer_store_dword v{CM[1]}, v{c['vOUT']}, s[64:67], s77 offen"))
    if h == 1:
        for k in range(n):
            if k >= 2: q_combine(passes[k - 2])
            emit_pass(k)
            flush_side()
            tw = None
            for t in passes[k]:
                tw = a.e(f"ds_write_b128 v{c['vPX']}, v[{accof[t]}:{accof[t]+3}] offset:{1024*t}")
            if k + 1 < n: prefetch(pend[k], 10**9)
            a.wait_ds(tw)
            barrier()
        if n >= 2:
            q_combine(passes[n - 2]); flush_side()
        barrier()
        a.stamp(14)
        q_combine(passes[n - 1]); flush_side()
    else:
        barrier_only = True
        prefetch(0, 10**9)
        barrier()
        for k in range(n):
            itok = {}
            for t in passes[k]:
                itok[t] = a.e(f"ds_read_b128 v[{accof[t]}:{accof[t]+3}], v{c['vPX']} offset:{1024*t}")
            q_fin_pre(passes[k])
            emit_pass(k, init_tok=itok)
            flush_side()
            if k + 1 < n: prefetch(pend[k], 10**9)
            q_fin_post(passes[k])
            flush_side()
            a.wait_ds(a.ds_issued - 1)
            barrier()
        a.stamp(14)
    if getattr(a, "stamps", False): a.wait_vm_all()
    a.stamp(15)
    if c.get("bstamp"):
        a.e("s_waitcnt lgkmcnt(0)")
        for i in range(bcount[0]): a.e(f"s_mov_b32 s{81+i}, s{16+2*i}")
    a.dump_stamps(16, 52, 16 << 20, wave="s3")

def build(cfg):
    a = Asm()
    a.stamps = cfg.get("stamps", False)
    a.stamp_sel = cfg.get("stamp_sel", None)
    hdr = open("cdna_kernels/" + NAME + ".s.ref").read().split("\n")
    head = [l for l in hdr if l.startswith(";") and "@launch" not in l and "Override launch" not in l and "grid=ceil" not in l]
    a.raw("\n".join(head[:21]))
    a.raw(f"; @launch grid=(256,1,1) block=(512,1,1) lds={LDS_TOTAL}")
    a.raw('.amdgcn_target "amdgcn-amd-amdhsa--gfx950"\n.text')
    kernel(a, cfg)
    a.raw(f""".section .rodata,"a"
.p2align 6
.amdhsa_kernel {KN}
  .amdhsa_next_free_vgpr 256
  .amdhsa_next_free_sgpr 102
  .amdhsa_accum_offset 128
  .amdhsa_group_segment_fixed_size 0
  .amdhsa_kernarg_size 152
  .amdhsa_user_sgpr_count 2
  .amdhsa_user_sgpr_kernarg_segment_ptr 1
  .amdhsa_system_sgpr_workgroup_id_x 1
.end_amdhsa_kernel""")
    return a.finalize()

DEFAULT = dict(passes=[[0], [1, 2], [3, 4], [5, 6], [7]], NB=8, LOOK=14, RATE=2)
if __name__ == "__main__":
    out = sys.argv[1] if len(sys.argv) > 1 else "cdna_kernels/" + NAME + ".s"
    cfg = dict(DEFAULT)
    for arg in sys.argv[2:]:
        if arg == "stamps": cfg["stamps"] = True
        elif "=" in arg:
            k, v = arg.split("=", 1); cfg[k] = eval(v)
    open(out, "w").write(build(cfg))
    print("wrote", out)
```

```python
import sys, struct
from dsl import Asm

NAME = "gated_mix__ssm_conv_h3__ssm_conv_s4__prompt"
KN = NAME + "_kernel"
LOG2E = 0x3fb8aa3b
WS_XQ = 0
WS_XKV = 2 << 20
WS_X2 = 4 << 20
WS_GP = 8 << 20
WS_GF1 = (8 << 20) + 65536
WS_GF2 = (8 << 20) + 131072
WS_LF = (8 << 20) + 196608
WS_EP = (8 << 20) + 262144
WS_USED = (8 << 20) + 262144 + 4096
FLAGC = 0x5a5a5a5a

KT = 0
QT = KT + 72 * 128
KVT = QT + 8192
SKT = KVT + 8192
PAR = SKT + 512
KC0 = PAR + 3072
KCS = 8320
F0 = KC0 + 4 * KCS
FSZ = 6144
TAB0 = F0 + 2 * FSZ
ENT = 544
TABSZ = 72 * ENT
TABEND = TAB0 + 2 * TABSZ
XRS = 4608
XR0 = TAB0
GM = XR0 + 4 * XRS
PX = GM + 8192
GAB = PX + 32768
assert GAB + 16384 <= TABEND
LDS_TOTAL = TABEND

def fbits(x): return struct.unpack("<I", struct.pack("<f", float(x)))[0]

def cmul(a, dst, w, z, tmp):
    a.e(f"v_pk_mul_f32 v[{tmp}:{tmp+1}], v[{w}:{w+1}], v[{z}:{z+1}] op_sel:[0,0] op_sel_hi:[1,0]")
    a.e(f"v_pk_fma_f32 v[{dst}:{dst+1}], v[{w}:{w+1}], v[{z}:{z+1}], v[{tmp}:{tmp+1}] op_sel:[1,1,0] op_sel_hi:[0,1,1] neg_lo:[1,0,0]")

def cpow(a, dst, rho, phi, m, t0, t1):
    a.e(f"v_mul_f32 v{t0}, 0x{fbits(m):08x}, v{rho}")
    a.e(f"v_mul_f32 v{t1}, 0x{fbits(m):08x}, v{phi}")
    a.e(f"v_exp_f32 v{t0}, v{t0}")
    a.e(f"v_fract_f32 v{t1}, v{t1}")
    a.e(f"v_cos_f32 v{dst}, v{t1}")
    a.e(f"v_sin_f32 v{dst+1}, v{t1}")
    a.e(f"v_mul_f32 v{dst}, v{t0}, v{dst}")
    a.e(f"v_mul_f32 v{dst+1}, v{t0}, v{dst+1}")

def kernel(a, cfg):
    passes, NB, LOOK, RATE = cfg["passes"], cfg["NB"], cfg["LOOK"], cfg["RATE"]
    GLD, EPL, RES = PAR, PAR + 64, PAR + 128
    a.raw(f".globl {KN}\n.p2align 8\n.type {KN},@function\n{KN}:")
    a.e("s_cmp_ge_u32 s2, 256")
    a.e("s_cbranch_scc1 L_END")
    a.stamp(0)
    a.e("s_load_dwordx16 s[16:31], s[0:1], 0")
    a.e("s_load_dwordx16 s[32:47], s[0:1], 64")
    a.e("s_load_dwordx4 s[48:51], s[0:1], 128")
    a.e("s_load_dwordx2 s[52:53], s[0:1], 144")
    a.e("v_lshrrev_b32 v1, 6, v0")
    a.e("v_and_b32 v2, 63, v0")
    a.e("v_readfirstlane_b32 s3, v1")
    a.e("s_and_b32 s4, s2, 7")
    a.e("s_lshr_b32 s5, s2, 3")
    if cfg.get("epf", True):
        PFW = cfg.get("pfwave", 0)
        a.e(f"s_cmp_eq_u32 s3, {PFW}")
        a.e("s_cbranch_scc0 L_NOPF")
        a.e("s_getpc_b64 s[74:75]")
        a.label("L_PC")
        a.raw("  .set CODE_REM, L_CODE_END - L_PC")
        a.e("s_mul_i32 s76, s5, 5")
        a.e("v_add_u32 v74, s76, v2")
        a.e("v_lshlrev_b32 v74, 7, v74")
        a.e(f"v_cmp_gt_u32 vcc, CODE_REM, v74")
        a.e("v_cndmask_b32 v74, 0, v74, vcc")
        a.e("s_mov_b64 exec, 31")
        a.e(f"global_load_dword v30, v74, s[74:75]")
        a.e("s_mov_b64 exec, -1")
        a.label("L_NOPF")
    a.e("s_lshl_b32 s10, s4, 6")
    a.e("s_lshl_b32 s11, s5, 1")
    a.e("s_add_u32 s10, s10, s11")
    MQ = 96
    a.e(f"s_and_b32 s{MQ}, s3, 3")
    a.e("s_lshr_b32 s7, s3, 2")
    a.e(f"s_xor_b32 s6, s{MQ}, s7")
    a.e("s_and_b32 s8, s6, 1")
    a.e("s_lshr_b32 s9, s6, 1")
    a.e("v_lshlrev_b32 v69, 4, v2")
    a.e("s_lshl_b32 s11, s5, 16")
    a.e("s_lshl_b32 s12, s4, 7")
    a.e("s_add_u32 s11, s11, s12")
    a.e("s_getreg_b32 s97, hwreg(HW_REG_XCC_ID, 0, 4)")
    a.e("s_cmp_eq_u32 s7, 0")
    a.e("s_cbranch_scc1 L_KISSUE")
    a.e("v_lshrrev_b32 v67, 3, v2")
    a.e("v_and_b32 v68, 7, v2")
    a.e("v_lshlrev_b32 v5, 10, v67")
    a.e("v_lshl_add_u32 v5, v68, 4, v5")
    a.e(f"s_lshl_b32 s12, s{MQ}, 14")
    a.e("s_add_u32 s12, s12, s11")
    a.e("v_add_u32 v5, s12, v5")
    a.e("v_add_u32 v7, 8192, v5")
    a.e("v_subrev_u32 v6, 8192, v5")
    a.e("v_bfe_u32 v70, v0, 3, 5")
    a.e("v_and_b32 v71, 7, v0")
    a.e("v_lshlrev_b32 v72, 11, v70")
    a.e("v_lshl_add_u32 v72, v71, 4, v72")
    a.e("v_add_u32 v72, s11, v72")
    a.e("s_lshl_b32 s14, s4, 9")
    a.e("v_add_u32 v73, s14, v69")
    a.e(f"s_lshl_b32 s13, s{MQ}, 11")
    a.e("s_waitcnt lgkmcnt(0)")
    a.e("s_mov_b32 s56, s18"); a.e("s_and_b32 s57, s19, 0xffff"); a.e("s_mov_b32 s58, 0x200000"); a.e("s_mov_b32 s59, 0x20000")
    VR = 120
    a.e("s_cmp_eq_u32 s3, 4")
    a.e("s_cbranch_scc0 L_X1")
    a.e(f"s_mov_b32 m0, {KT}")
    a.e("s_nop 0")
    a.e("buffer_load_dwordx4 v6, s[56:59], 0 offen lds")
    a.e("s_branch L_X2")
    a.label("L_X1")
    a.e("s_cmp_eq_u32 s3, 5")
    a.e("s_cbranch_scc0 L_X2")
    a.e("s_mov_b32 exec_hi, 0")
    a.e(f"s_mov_b32 m0, {SKT}")
    a.e("s_nop 0")
    a.e("global_load_lds_dwordx4 v73, s[22:23]")
    a.e("s_mov_b32 exec_hi, -1")
    a.label("L_X2")
    a.e(f"s_add_u32 m0, s13, {KT + 1024}")
    a.e("s_nop 0")
    a.e("buffer_load_dwordx4 v5, s[56:59], 0 offen lds")
    a.e(f"s_add_u32 m0, s13, {KT + 2048}")
    a.e("s_nop 0")
    a.e("buffer_load_dwordx4 v7, s[56:59], 0 offen lds")
    a.e(f"global_load_dwordx4 v[{VR}:{VR+3}], v72, s[20:21]")
    a.e(f"global_load_dwordx4 v[{VR+4}:{VR+7}], v72, s[20:21] offset:1024")
    a.e(f"s_add_u32 m0, s13, {QT}")
    a.e("s_nop 0")
    a.e("global_load_lds_dwordx4 v5, s[16:17]")
    a.e(f"s_add_u32 m0, s13, {QT + 1024}")
    a.e("s_nop 0")
    a.e("global_load_lds_dwordx4 v7, s[16:17]")
    a.e("s_branch L_COMMON")
    a.label("L_KISSUE")
    GQ0, GQ1, GW = 100, 104, 108
    EPV = 30
    a.e("s_lshl_b32 s15, s10, 8")
    a.e("v_add_u32 v72, s15, v69")
    a.e("s_lshl_b32 s12, s2, 3")
    a.e(f"s_lshl_b32 s13, s{MQ}, 1")
    a.e("s_add_u32 s12, s12, s13")
    a.e("s_lshl_b32 s13, s12, 10")
    a.e("v_add_u32 v73, s13, v69")
    a.e("s_lshl_b32 s79, s10, 1")
    a.e("s_waitcnt lgkmcnt(0)")
    a.e("s_load_dword s76, s[42:43], s79")
    a.e("s_mov_b32 exec_hi, 0")
    for wv, arrs in enumerate(((0, 1), (2, 3), (4,), (5,))):
        a.e(f"s_cmp_eq_u32 s{MQ}, {wv}")
        a.e(f"s_cbranch_scc0 L_KP{wv}")
        for ar in arrs:
            a.e(f"s_mov_b32 m0, {PAR + 512*ar}")
            a.e("s_nop 0")
            a.e(f"global_load_lds_dwordx4 v72, s[{30+2*ar}:{31+2*ar}]")
        a.e("s_branch L_KP4")
        a.label(f"L_KP{wv}")
    a.label("L_KP4")
    a.e("s_mov_b64 exec, -1")
    a.e(f"global_load_dwordx4 v[{GQ0}:{GQ0+3}], v73, s[16:17]")
    a.e(f"global_load_dwordx4 v[{GQ1}:{GQ1+3}], v73, s[16:17] offset:1024")
    a.e(f"global_load_dwordx4 v[{GW}:{GW+3}], v69, s[46:47]")
    a.e("s_cmp_eq_u32 s3, 3")
    a.e("s_cbranch_scc0 L_COMMON")
    a.e("v_subrev_u32 v74, 1, v2")
    a.e("v_lshlrev_b32 v74, 21, v74")
    a.e(f"v_mov_b32 v75, {WS_EP}")
    a.e("v_cmp_eq_u32 vcc, 0, v2")
    a.e("v_cndmask_b32 v74, v74, v75, vcc")
    a.e("s_mov_b64 exec, 7")
    a.e(f"global_load_dword v{EPV}, v74, s[52:53] sc1")
    a.e("s_mov_b64 exec, -1")
    a.label("L_COMMON")
    a.e("s_mov_b32 s60, s52"); a.e("s_and_b32 s61, s53, 0xffff"); a.e(f"s_mov_b32 s62, {WS_USED}"); a.e("s_mov_b32 s63, 0x20000")
    a.e("s_mov_b32 s64, s48"); a.e("s_and_b32 s65, s49, 0xffff"); a.e("s_mov_b32 s66, 0x200000"); a.e("s_mov_b32 s67, 0x20000")
    a.e("s_mov_b32 s68, s24"); a.e("s_and_b32 s69, s25, 0xffff"); a.e("s_mov_b32 s70, 0x200000"); a.e("s_mov_b32 s71, 0x20000")
    a.e("s_lshl_b32 s79, s10, 1")
    a.e("s_load_dword s76, s[42:43], s79")
    a.e("s_load_dword s100, s[26:27], s79")
    a.e("s_load_dword s101, s[44:45], s79")
    ONES, MLO, MHI = 21, 28, 27
    a.e(f"v_mov_b32 v{ONES}, 0x3f803f80")
    a.e(f"v_mov_b32 v{MLO}, 0xffff")
    a.e(f"v_mov_b32 v{MHI}, 0xffff0000")
    J, Q4 = 64, 65
    a.e(f"v_and_b32 v{J}, 15, v2")
    a.e(f"v_lshrrev_b32 v{Q4}, 4, v2")
    a.e("s_lshl_b32 s13, s10, 12")
    a.e("v_lshlrev_b32 v4, 4, v0")
    a.e("v_add_u32 v13, s13, v4")
    vB, vX, vQ, vG, vPX, vGW, vCMB, vOUT = 8, 9, 10, 11, 12, 14, 15, 16
    vA = [17, 18, 19, 20]
    SQL, SQH, ONEF, SG, DF = 22, 23, 24, 25, 26
    vXL = 3
    CPRE = cfg.get("CPRE", 8)
    def areg(cidx, rho): return 4 * (cidx * 4 + rho)
    def aloads():
        for cidx in range(CPRE):
            for rho in range(4):
                r = areg(cidx, rho); o = 128 * (cidx & 1) + 16 * rho; va = vA[cidx >> 1]
                a.e(f"ds_read2_b32 a[{r}:{r+1}], v{va} offset0:{o} offset1:{o+1}")
                a.e(f"ds_read2_b32 a[{r+2}:{r+3}], v{va} offset0:{o+2} offset1:{o+3}")
    a.e(f"s_mul_i32 s77, s6, {XRS}")
    a.e(f"s_add_u32 s77, s77, {XR0}")
    a.e("s_lshl_b32 s78, s7, 8")
    a.e("s_add_u32 s78, s78, s77")
    a.e("s_add_u32 s78, s78, 480")
    a.e(f"v_lshlrev_b32 v62, 5, v{J}")
    a.e(f"v_lshlrev_b32 v{vB}, 4, v{Q4}")
    a.e(f"v_sub_u32 v{vB}, v{vB}, v62")
    a.e(f"v_add_u32 v{vB}, s78, v{vB}")
    a.e(f"v_lshl_add_u32 v63, v{Q4}, 3, v62")
    a.e("s_add_u32 s78, s77, 504")
    a.e(f"v_sub_u32 v{vX}, s78, v63")
    vPAD = 29
    a.e("s_add_u32 s78, s77, 4096")
    a.e(f"v_lshlrev_b32 v{vPAD}, 3, v2")
    a.e(f"v_add_u32 v{vPAD}, s78, v{vPAD}")
    a.e("s_or_b32 s78, s6, 1")
    a.e(f"s_mul_i32 s78, s78, {XRS}")
    a.e(f"s_add_u32 s78, s78, {XR0 + 504}")
    a.e(f"v_sub_u32 v{vQ}, s78, v63")
    a.e(f"v_lshlrev_b32 v62, 1, v63")
    a.e(f"v_add_u32 v{vG}, {GM}, v62")
    a.e("s_lshl_b32 s78, s6, 13")
    a.e(f"s_add_u32 s78, s78, {PX}")
    a.e(f"v_add_u32 v{vPX}, s78, v69")
    a.e("s_lshl_b32 s78, s6, 12")
    a.e(f"s_add_u32 s78, s78, {GAB}")
    a.e(f"v_add_u32 v{vGW}, s78, v63")
    a.e("s_lshl_b32 s78, s6, 6")
    a.e(f"v_add_u32 v62, s78, v2")
    a.e(f"v_lshlrev_b32 v{vCMB}, 1, v62")
    a.e(f"v_add_u32 v{vCMB}, {GAB}, v{vCMB}")
    a.e(f"v_lshlrev_b32 v{vOUT}, 10, v62")
    a.e("s_lshl_b32 s78, s10, 1")
    a.e(f"v_add_u32 v{vOUT}, s78, v{vOUT}")
    a.e("s_lshl_b32 s78, s7, 7")
    a.e("s_sub_u32 s78, s78, 15")
    a.e(f"v_lshl_add_u32 v62, v{Q4}, 3, v{J}")
    a.e("v_add_u32 v62, s78, v62")
    a.e("v_lshlrev_b32 v62, 1, v62")
    a.e(f"s_mul_i32 s78, s6, {KCS}")
    a.e(f"s_add_u32 s78, s78, {KC0 + 32}")
    a.e(f"v_and_b32 v63, 1, v{J}")
    a.e(f"v_cmp_eq_u32 vcc, 1, v63")
    a.e(f"v_mov_b32 v63, {4160 - 2}")
    a.e(f"v_cndmask_b32 v63, v63, 0, vcc")
    a.e(f"v_add3_u32 v{vA[0]}, v62, v63, s78")
    for i in range(1, 4): a.e(f"v_add_u32 v{vA[i]}, {1024*i}, v{vA[0]}")
    a.e("v_lshrrev_b32 v62, 8, v0")
    a.e(f"v_mul_u32_u24 v62, {2*XRS}, v62")
    a.e("v_and_b32 v63, 255, v0")
    a.e(f"v_lshl_add_u32 v{vXL}, v63, 4, v62")
    a.e(f"v_add_u32 v{vXL}, {XR0}, v{vXL}")
    a.e(f"v_mov_b32 v{ONEF}, 1.0")
    a.e("s_cmp_eq_u32 s8, 0")
    a.e("s_mov_b32 s78, 0x03020100")
    a.e("s_cselect_b32 s77, 0x05040c0c, s78");  a.e(f"v_mov_b32 v{SQL}, s77")
    a.e("s_cselect_b32 s77, 0x07060c0c, s78");  a.e(f"v_mov_b32 v{SQH}, s77")
    a.e("s_mov_b32 s78, 0x07060c0c")
    a.e("s_cselect_b32 s77, 0x05040c0c, s78");  a.e(f"v_mov_b32 v{SG}, s77")
    a.e("v_mov_b32 v5, 0") if False else None
    a.e("s_cmp_eq_u32 s7, 0")
    a.e("s_cbranch_scc1 L_KPATH")
    if cfg.get("xprio", 0): a.e(f"s_setprio {cfg['xprio']}")
    vRC, vSKA, vTR, vXS = 31, 1, 5, 6
    a.e("v_bfe_u32 v70, v0, 3, 5")
    a.e("v_and_b32 v71, 7, v0")
    a.e(f"v_lshlrev_b32 v{vRC}, 8, v70")
    a.e(f"v_lshl_add_u32 v{vRC}, v71, 4, v{vRC}")
    a.e(f"v_lshlrev_b32 v{vSKA}, 6, v71")
    a.e(f"v_lshrrev_b32 v72, 2, v{J}")
    a.e(f"v_and_b32 v73, 3, v{J}")
    a.e(f"v_lshlrev_b32 v75, 3, v{Q4}")
    a.e("v_add_u32 v76, 3, v75")
    a.e("v_sub_u32 v76, v76, v72")
    a.e("v_lshlrev_b32 v76, 7, v76")
    a.e("v_lshl_add_u32 v76, v73, 3, v76")
    a.e(f"s_lshl_b32 s77, s{MQ}, 5")
    a.e(f"v_add_u32 v{vTR}, s77, v76")
    a.e("s_lshl_b32 s77, s4, 18")
    a.e(f"s_lshl_b32 s78, s{MQ}, 16")
    a.e("s_add_u32 s77, s77, s78")
    a.e("s_add_u32 s77, s77, 4016")
    a.e("s_lshl_b32 s78, s5, 7")
    a.e("s_sub_u32 s77, s77, s78")
    a.e(f"v_lshlrev_b32 v{vXS}, 12, v{J}")
    a.e("v_lshlrev_b32 v76, 1, v75")
    a.e(f"v_sub_u32 v{vXS}, v{vXS}, v76")
    a.e(f"v_add_u32 v{vXS}, s77, v{vXS}")
    a.e("v_and_b32 v32, 127, v0")
    a.e("v_bfe_u32 v33, v0, 7, 1")
    a.e("v_lshlrev_b32 v34, 8, v33")
    a.e("v_lshl_add_u32 v34, v32, 1, v34")
    TA = 35
    a.e(f"v_mul_u32_u24 v{TA}, {TABSZ}, v33")
    a.e(f"v_lshl_add_u32 v{TA}, v32, 2, v{TA}")
    a.e(f"v_add_u32 v{TA}, {TAB0}, v{TA}")
    a.e("s_waitcnt lgkmcnt(0)")
    a.stamp(1)
    a.e("s_barrier")
    PR = 66
    for i in range(6): tp = a.e(f"ds_read_u16_d16_hi v{PR+i}, v34 offset:{PAR + 512*i}")
    Are, Aim, Bre, Bim, Cre, Cim = [PR + i for i in range(6)]
    DT, RHO, PHI = 72, 73, 74
    C = 76
    a.e("v_bfe_u32 v75, v0, 7, 1")
    a.e("v_lshlrev_b32 v75, 4, v75")
    a.e(f"v_lshrrev_b32 v{DT}, v75, s76") if False else None
    a.e(f"v_mov_b32 v{DT}, s76")
    a.e(f"v_lshrrev_b32 v{DT}, v75, v{DT}")
    a.e(f"v_lshlrev_b32 v{DT}, 16, v{DT}")
    a.e(f"v_mul_f32 v{DT}, 0x{LOG2E:08x}, v{DT}")
    a.e(f"v_exp_f32 v{DT}, v{DT}")
    a.e(f"v_cvt_pk_bf16_f32 v{DT}, 0, v{DT}")
    a.wait_ds(tp)
    a.e(f"v_mul_f32 v{RHO}, v{DT}, v{Are}")
    a.e(f"v_mul_f32 v{PHI}, v{DT}, v{Aim}")
    a.e(f"v_mul_f32 v{RHO}, 0x{LOG2E:08x}, v{RHO}")
    a.e(f"v_mul_f32 v{PHI}, 0.15915494, v{PHI}")
    a.e(f"v_mul_f32 v{Bre}, v{DT}, v{Bre}")
    a.e(f"v_mul_f32 v{Bim}, v{DT}, v{Bim}")
    a.e(f"v_mul_f32 v{C}, v{Cre}, v{Bre}")
    a.e(f"v_mul_f32 v{C+1}, v{Cre}, v{Bim}")
    a.e(f"v_fma_f32 v{C}, -v{Cim}, v{Bim}, v{C}")
    a.e(f"v_fma_f32 v{C+1}, v{Cim}, v{Bre}, v{C+1}")
    Z4, Z128, S3, Z8, W = 80, 84, 86, 88, 90
    TMP = [100, 102, 104, 106, 108, 110]
    PT = [112, 113, 114, 115]
    pw = [(Z4, 4), (Z128, 128), (S3, 1024)]
    for i, (dst, m) in enumerate(pw):
        a.e(f"v_mul_f32 v{TMP[0]+i}, 0x{fbits(m):08x}, v{RHO}")
        a.e(f"v_mul_f32 v{TMP[3]+i}, 0x{fbits(m):08x}, v{PHI}")
    for i, (dst, m) in enumerate(pw):
        a.e(f"v_exp_f32 v{TMP[0]+i}, v{TMP[0]+i}")
        a.e(f"v_fract_f32 v{TMP[3]+i}, v{TMP[3]+i}")
    for i, (dst, m) in enumerate(pw):
        a.e(f"v_cos_f32 v{dst}, v{TMP[3]+i}")
        a.e(f"v_sin_f32 v{dst+1}, v{TMP[3]+i}")
    for i, (dst, m) in enumerate(pw):
        a.e(f"v_mul_f32 v{dst}, v{TMP[0]+i}, v{dst}")
        a.e(f"v_mul_f32 v{dst+1}, v{TMP[0]+i}, v{dst+1}")
    pti2 = [0]
    def putx(entry, pair, neg):
        tmp = PT[pti2[0] % 4]; pti2[0] += 1
        a.e(f"v_cvt_pk_bf16_f32 v{tmp}, v{pair}, {'-' if neg else ''}v{pair+1}")
        a.e(f"ds_write_b32 v{TA}, v{tmp} offset:{entry*ENT}")
    cmul(a, Z8, Z4, Z4, TMP[0])
    cmul(a, S3, S3, C, TMP[1])
    W1 = 92
    a.e(f"v_mov_b32 v{W}, 1.0"); a.e(f"v_mov_b32 v{W+1}, 0")
    a.e(f"v_mov_b32 v{W1}, v{Z4}"); a.e(f"v_mov_b32 v{W1+1}, v{Z4+1}")
    putx(0, W, False); putx(1, W1, False); putx(24 + 32, S3, True)
    for st in range(1, 16):
        cmul(a, W, W, Z8, TMP[0])
        if st <= 7: cmul(a, W1, W1, Z8, TMP[2])
        if st <= 8: cmul(a, S3, S3, Z128, TMP[1])
        putx(2 * st if st < 8 else 16 + (st - 8), W, False)
        if st <= 7: putx(2 * st + 1, W1, False)
        if st <= 8: putx(24 + 32 + st, S3, True)
    a.e("s_waitcnt vmcnt(2) lgkmcnt(0)")
    a.ds_done = a.ds_issued
    a.stamp(2)
    a.e("s_barrier")
    if cfg.get("pretouch", True):
        a.e("s_cmp_eq_u32 s3, 6")
        a.e("s_cbranch_scc0 L_NOPT")
        a.e("s_lshl_b32 s77, s4, 18")
        a.e("s_add_u32 s77, s77, 3968")
        a.e("s_lshl_b32 s78, s5, 7")
        a.e("s_sub_u32 s77, s77, s78")
        a.e("v_lshlrev_b32 v116, 12, v2")
        a.e("v_add_u32 v116, s77, v116")
        a.e(f"s_mov_b32 s78, {WS_XKV}")
        a.e("buffer_load_dword v30, v116, s[60:63], 0 offen sc1")
        a.e("buffer_load_dword v30, v116, s[60:63], s78 offen sc1")
        a.label("L_NOPT")
    KR, SK, MK, PA, PB, XX = 32, 52, 68, 100, 108, 52
    if cfg.get("kvprio", 0): a.e(f"s_setprio {cfg['kvprio']}")
    for i in range(5): a.e(f"ds_read_b128 v[{KR+4*i}:{KR+4*i+3}], v{vRC} offset:{KT + (5+i)*128}")
    for i in range(4): tsk = a.e(f"ds_read_b128 v[{SK+4*i}:{SK+4*i+3}], v{vSKA} offset:{SKT + 16*i}")
    a.e("s_cmp_eq_u32 s8, 0")
    a.e("s_cselect_b32 s77, s100, s101")
    a.e("s_lshl_b32 s78, s9, 4")
    a.e("s_lshr_b32 s77, s77, s78")
    a.e("s_lshl_b32 s77, s77, 16")
    a.e(f"v_mov_b32 v{DF}, s77")
    a.wait_ds(tsk)
    chains = [(m, ci) for m in range(4) for ci in range(2)]
    for tau in range(4):
        for idx, (m, ci) in enumerate(chains):
            cch = 2 * m + ci; src = SK + 2 * cch + (tau >> 1); dst = MK + 8 * tau + idx
            if ci == 0:
                if tau & 1: a.e(f"v_lshrrev_b32 v{dst}, 16, v{src}")
                else: a.e(f"v_and_b32 v{dst}, v{MLO}, v{src}")
            else:
                if tau & 1: a.e(f"v_and_b32 v{dst}, v{MHI}, v{src}")
                else: a.e(f"v_lshlrev_b32 v{dst}, 16, v{src}")
    for row in range(2):
        def prod(dst, tau):
            for idx, (m, ci) in enumerate(chains):
                a.e(f"v_dot2_f32_bf16 v{dst+idx}, v{KR+4*(3-tau+row)+m}, v{MK+8*tau+idx}, 0")
        prod(PA, 3)
        for tau in (2, 1, 0):
            prod(PB, tau)
            for idx in range(8): a.e(f"v_cvt_pk_bf16_f32 v{XX+idx}, v{PA+idx}, v{PB+idx}")
            for idx in range(8): a.e(f"v_dot2_f32_bf16 v{PA+idx}, v{XX+idx}, v{ONES}, 0")
        Vr = VR + 4 * row
        for m in range(4):
            a.e(f"v_and_b32 v{XX+2*m}, v{MLO}, v{Vr+m}")
            a.e(f"v_and_b32 v{XX+2*m+1}, v{MHI}, v{Vr+m}")
        for m in range(4): a.e(f"v_cvt_pk_bf16_f32 v{PB+m}, v{PA+2*m}, v{PA+2*m+1}")
        for m in range(4):
            a.e(f"v_dot2_f32_bf16 v{PA+2*m}, v{PB+m}, v{XX+2*m}, 0")
            a.e(f"v_dot2_f32_bf16 v{PA+2*m+1}, v{PB+m}, v{XX+2*m+1}, 0")
        KVR = 116
        for m in range(4): a.e(f"v_cvt_pk_bf16_f32 v{KVR+m}, v{PA+2*m}, v{PA+2*m+1}")
        a.e(f"ds_write_b128 v{vRC}, v[{KVR}:{KVR+3}] offset:{KVT + 128*row}")
    if cfg.get("pretouch", True):
        a.e("s_cmp_eq_u32 s3, 6")
        a.e("s_cbranch_scc0 L_XW1")
        a.e("s_waitcnt vmcnt(2) lgkmcnt(0)")
        a.e("s_branch L_XW2")
        a.label("L_XW1")
    a.e("s_waitcnt vmcnt(0) lgkmcnt(0)")
    a.label("L_XW2")
    a.ds_done = a.ds_issued
    a.stamp(3)
    if cfg.get("kvprio", 0): a.e("s_setprio 0")
    a.e("s_barrier")
    XO = 32
    def tr_and_store(sc, base_q, base_kv):
        toks = []
        for ai, T in enumerate((KVT, QT)):
            for blk in range(2):
                r = XO + 8 * ai + 4 * blk
                a.e(f"ds_read_b64_tr_b16 v[{r}:{r+1}], v{vTR} offset:{T + 4096*blk + 512}")
                toks.append(a.e(f"ds_read_b64_tr_b16 v[{r+2}:{r+3}], v{vTR} offset:{T + 4096*blk}"))
        a.e(f"s_mov_b32 s77, {base_kv}")
        a.e(f"s_mov_b32 s78, {base_q}")
        for ai in range(2):
            for blk in range(2):
                r = XO + 8 * ai + 4 * blk
                a.wait_ds(toks[2 * ai + blk])
                a.e(f"buffer_store_dwordx4 v[{r}:{r+3}], v{vXS}, s[60:63], s{77+ai} offen offset:{64*(1-blk)}{sc}")
    tr_and_store("", WS_XQ, WS_XKV)
    a.e(f"v_mov_b32 v101, {EPL}")
    tep = a.e("ds_read_b32 v120, v101")
    a.e("s_lshl_b32 s77, s4, 5")
    a.e("s_add_u32 s77, s77, s5")
    a.e("s_lshl_b32 s77, s77, 3")
    a.e(f"s_add_u32 s78, s77, {WS_LF}")
    a.e("v_mov_b32 v124, s78")
    a.wait_ds(tep)
    a.e(f"v_xor_b32 v121, 0x{FLAGC:08x}, v120")
    a.e("v_add_u32 v121, s97, v121") if not cfg.get("force_fb") else a.e("v_add_u32 v121, s2, v121")
    a.e("s_cmp_eq_u32 s8, 0")
    a.e("s_cbranch_scc0 L_XNOAL")
    aloads()
    a.label("L_XNOAL")
    a.e("s_waitcnt vmcnt(0)")
    a.stamp(4)
    a.e("s_barrier")
    a.e("s_cmp_eq_u32 s3, 7")
    a.e("s_cbranch_scc0 L_JOIN")
    a.e("s_mov_b64 exec, 1")
    a.e("buffer_store_dwordx2 v[120:121], v124, s[60:63], 0 offen")
    a.e("s_mov_b64 exec, -1")
    a.e("s_branch L_JOIN")
    a.label("L_KPATH")
    a.e("v_mov_b32 v5, 0"); a.e("v_mov_b32 v6, -1")
    a.e("v_and_b32 v32, 127, v0")
    a.e("v_bfe_u32 v33, v0, 7, 1")
    a.e("v_lshlrev_b32 v34, 8, v33")
    a.e("v_lshl_add_u32 v34, v32, 1, v34")
    TA = 35
    a.e(f"v_mul_u32_u24 v{TA}, {TABSZ}, v33")
    a.e(f"v_lshl_add_u32 v{TA}, v32, 2, v{TA}")
    a.e(f"v_add_u32 v{TA}, {TAB0}, v{TA}")
    XA = 36
    a.e("v_and_b32 v45, 255, v0")
    a.e("v_lshlrev_b32 v45, 3, v45")
    for k in range(5):
        a.e(f"v_add_u32 v46, {2*k}, v45")
        a.e(f"v_add_u32 v47, {2*k+1}, v45")
        a.e("v_cvt_f32_u32 v46, v46")
        a.e("v_cvt_f32_u32 v47, v47")
        a.e("v_cvt_pk_bf16_f32 v46, v46, v47")
        a.e(f"v_and_b32 v47, v{MHI}, v46")
        a.e("v_lshlrev_b32 v46, 16, v46")
        a.e("v_cvt_u32_f32 v46, v46")
        a.e(f"v_lshlrev_b32 v{XA+2*k}, 1, v46")
        a.e(f"v_add_u32 v{XA+2*k}, {F0}, v{XA+2*k}")
        if k < 4:
            a.e("v_cvt_u32_f32 v47, v47")
            a.e(f"v_lshlrev_b32 v{XA+2*k+1}, 1, v47")
            a.e(f"v_add_u32 v{XA+2*k+1}, {F0}, v{XA+2*k+1}")
    vKW = 31
    a.e(f"v_lshlrev_b32 v{vKW}, 1, v45")
    a.e(f"v_add_u32 v{vKW}, {KC0+32}, v{vKW}")
    vSS = 46
    a.e(f"v_lshlrev_b32 v{vSS}, 1, v45")
    a.e(f"v_add_u32 v{vSS}, s13, v{vSS}")
    a.e("s_cmp_eq_u32 s3, 3")
    a.e("s_cbranch_scc0 L_KW1")
    a.e("s_waitcnt vmcnt(4) lgkmcnt(0)")
    a.e("s_branch L_KW2")
    a.label("L_KW1")
    a.e("s_waitcnt vmcnt(3) lgkmcnt(0)")
    a.label("L_KW2")
    a.stamp(1)
    a.e("s_barrier")
    T0a, T1a, T0b, T1b = 48, 52, 56, 60
    TLATE = cfg.get("tlate", False)
    if not TLATE:
        a.e(f"buffer_load_dwordx4 v[{T0a}:{T0a+3}], v{vSS}, s[68:71], 0 offen")
        a.e(f"buffer_load_dwordx4 v[{T1a}:{T1a+3}], v{vSS}, s[68:71], 0 offen offset:4")
        a.e("s_mov_b32 s77, 4096")
        a.e(f"buffer_load_dwordx4 v[{T0b}:{T0b+3}], v{vSS}, s[68:71], s77 offen")
        a.e(f"buffer_load_dwordx4 v[{T1b}:{T1b+3}], v{vSS}, s[68:71], s77 offen offset:4")
    PR = 66
    for i in range(6): tp = a.e(f"ds_read_u16_d16_hi v{PR+i}, v34 offset:{PAR + 512*i}")
    Are, Aim, Bre, Bim, Cre, Cim = [PR + i for i in range(6)]
    DT, RHO, PHI = 72, 73, 74
    C = 76
    a.e("v_bfe_u32 v75, v0, 7, 1")
    a.e("v_lshlrev_b32 v75, 4, v75")
    a.e(f"v_lshrrev_b32 v{DT}, v75, s76") if False else None
    a.e(f"v_mov_b32 v{DT}, s76")
    a.e(f"v_lshrrev_b32 v{DT}, v75, v{DT}")
    a.e(f"v_lshlrev_b32 v{DT}, 16, v{DT}")
    a.e(f"v_mul_f32 v{DT}, 0x{LOG2E:08x}, v{DT}")
    a.e(f"v_exp_f32 v{DT}, v{DT}")
    a.e(f"v_cvt_pk_bf16_f32 v{DT}, 0, v{DT}")
    a.wait_ds(tp)
    a.e(f"v_mul_f32 v{RHO}, v{DT}, v{Are}")
    a.e(f"v_mul_f32 v{PHI}, v{DT}, v{Aim}")
    a.e(f"v_mul_f32 v{RHO}, 0x{LOG2E:08x}, v{RHO}")
    a.e(f"v_mul_f32 v{PHI}, 0.15915494, v{PHI}")
    a.e(f"v_mul_f32 v{Bre}, v{DT}, v{Bre}")
    a.e(f"v_mul_f32 v{Bim}, v{DT}, v{Bim}")
    a.e(f"v_mul_f32 v{C}, v{Cre}, v{Bre}")
    a.e(f"v_mul_f32 v{C+1}, v{Cre}, v{Bim}")
    a.e(f"v_fma_f32 v{C}, -v{Cim}, v{Bim}, v{C}")
    a.e(f"v_fma_f32 v{C+1}, v{Cim}, v{Bre}, v{C+1}")
    Z1, Z64 = 78, 82
    VV = [92, 94, 96, 98]
    TMP = [112, 114, 116, 118, 120, 122]
    PT = [124, 125, 126, 127]
    pw = [(Z1, 1), (Z64, 64)]
    for i, (dst, m) in enumerate(pw):
        a.e(f"v_mul_f32 v{TMP[0]+i}, 0x{fbits(m):08x}, v{RHO}")
        a.e(f"v_mul_f32 v{TMP[3]+i}, 0x{fbits(m):08x}, v{PHI}")
    for i, (dst, m) in enumerate(pw):
        a.e(f"v_exp_f32 v{TMP[0]+i}, v{TMP[0]+i}")
        a.e(f"v_fract_f32 v{TMP[3]+i}, v{TMP[3]+i}")
    for i, (dst, m) in enumerate(pw):
        a.e(f"v_cos_f32 v{dst}, v{TMP[3]+i}")
        a.e(f"v_sin_f32 v{dst+1}, v{TMP[3]+i}")
    for i, (dst, m) in enumerate(pw):
        a.e(f"v_mul_f32 v{dst}, v{TMP[0]+i}, v{dst}")
        a.e(f"v_mul_f32 v{dst+1}, v{TMP[0]+i}, v{dst+1}")
    pti = [0]
    def put(entry, pair, neg):
        tmp = PT[pti[0] % 4]; pti[0] += 1
        a.e(f"v_cvt_pk_bf16_f32 v{tmp}, v{pair}, {'-' if neg else ''}v{pair+1}")
        a.e(f"ds_write_b32 v{TA}, v{tmp} offset:{entry*ENT}")
    a.e(f"v_mov_b32 v{VV[0]}, v{C}"); a.e(f"v_mov_b32 v{VV[0]+1}, v{C+1}")
    cmul(a, VV[1], VV[0], Z1, TMP[2])
    cmul(a, VV[2], VV[1], Z1, TMP[2])
    cmul(a, VV[3], VV[2], Z1, TMP[2])
    for i in range(16):
        ps = [0, 1, 2, 3] if i < 4 else ([0, 2] if i < 8 else [0])
        if i > 0:
            for p in ps: cmul(a, VV[p], VV[p], Z64, TMP[2 + p])
        for p in ps:
            if i < 4: ent = 24 + 4 * i + p
            elif i < 8: ent = 24 + 16 + 2 * (i - 4) + p // 2
            else: ent = 24 + 16 + i
            put(ent, VV[p], True)
    a.e("s_waitcnt vmcnt(0)") if TLATE else a.e("s_waitcnt vmcnt(4)")
    T = 66
    for m in range(4):
        a.e(f"v_and_b32 v{T+2*m}, v{MLO}, v{GW+m}")
        a.e(f"v_and_b32 v{T+2*m+1}, v{MHI}, v{GW+m}")
    GA = [90, 91]
    for ri, GQ in enumerate((GQ0, GQ1)):
        U = 74 + 8 * ri
        for m in range(4):
            a.e(f"v_dot2_f32_bf16 v{U+2*m}, v{GQ+m}, v{T+2*m}, 0")
            a.e(f"v_dot2_f32_bf16 v{U+2*m+1}, v{GQ+m}, v{T+2*m+1}, 0")
    for ri in range(2):
        U = 74 + 8 * ri
        for m in range(4): a.e(f"v_cvt_pk_bf16_f32 v{92+4*ri+m}, v{U+2*m}, v{U+2*m+1}")
    for ri in range(2):
        U = 74 + 8 * ri
        for m in range(4):
            a.e(f"v_lshlrev_b32 v{U+2*m}, 16, v{92+4*ri+m}")
            a.e(f"v_and_b32 v{U+2*m+1}, v{MHI}, v{92+4*ri+m}")
    for ri in range(2):
        U = 74 + 8 * ri
        for m in range(4): a.e(f"v_add_f32 v{U+2*m}, v{U+2*m}, v{U+2*m+1}")
    for ri in range(2):
        U = 74 + 8 * ri
        a.e(f"v_add_f32 v{U}, v{U}, v{U+2}")
        a.e(f"v_add_f32 v{U+4}, v{U+4}, v{U+6}")
    for ri in range(2):
        U = 74 + 8 * ri
        a.e(f"v_add_f32 v{GA[ri]}, v{U}, v{U+4}")
    for sh in (1, 2, 4, 8):
        for ri in range(2): a.e(f"v_add_f32_dpp v{GA[ri]}, v{GA[ri]}, v{GA[ri]} row_shr:{sh} row_mask:0xf bank_mask:0xf bound_ctrl:0")
    for ri in range(2): a.e(f"v_add_f32_dpp v{GA[ri]}, v{GA[ri]}, v{GA[ri]} row_bcast:15 row_mask:0xa bank_mask:0xf")
    for ri in range(2): a.e(f"v_add_f32_dpp v{GA[ri]}, v{GA[ri]}, v{GA[ri]} row_bcast:31 row_mask:0xc bank_mask:0xf")
    for ri in range(2): a.e(f"v_cvt_pk_bf16_f32 v{GA[ri]}, 0, v{GA[ri]}")
    for ri in range(2): a.e(f"v_mul_f32 v{GA[ri]}, 0x{LOG2E ^ 0x80000000:08x}, v{GA[ri]}")
    for ri in range(2): a.e(f"v_exp_f32 v{GA[ri]}, v{GA[ri]}")
    for ri in range(2): a.e(f"v_add_f32 v{GA[ri]}, 1.0, v{GA[ri]}")
    for ri in range(2): a.e(f"v_rcp_f32 v{GA[ri]}, v{GA[ri]}")
    for ri in range(2): a.e(f"v_cvt_pk_bf16_f32 v{GA[ri]}, 0, v{GA[ri]}")
    for ri in range(2): a.e(f"v_sub_f32 v{92+ri}, 1.0, v{GA[ri]}")
    for ri in range(2): a.e(f"v_cvt_pk_bf16_f32 v{94+ri}, v{GA[ri]}, v{92+ri}")
    a.e("s_lshl_b32 s77, s12, 2")
    a.e(f"s_add_u32 s77, s77, {WS_GP}")
    a.e("v_mov_b32 v96, s77")
    a.e("s_mov_b32 exec_lo, 0")
    a.e("s_mov_b32 exec_hi, 0x80000000")
    a.e("buffer_store_dwordx2 v[94:95], v96, s[60:63], 0 offen sc1")
    a.e("s_mov_b64 exec, -1")
    a.wait_ds_all()
    a.stamp(2)
    a.e("s_barrier")
    if TLATE:
        a.e(f"buffer_load_dwordx4 v[{T0a}:{T0a+3}], v{vSS}, s[68:71], 0 offen")
        a.e(f"buffer_load_dwordx4 v[{T1a}:{T1a+3}], v{vSS}, s[68:71], 0 offen offset:4")
        a.e("s_mov_b32 s77, 4096")
        a.e(f"buffer_load_dwordx4 v[{T0b}:{T0b+3}], v{vSS}, s[68:71], s77 offen")
        a.e(f"buffer_load_dwordx4 v[{T1b}:{T1b+3}], v{vSS}, s[68:71], s77 offen offset:4")
    a.e(f"s_and_b32 s77, s{MQ}, 1")
    a.e(f"s_mul_i32 s78, s77, {FSZ}")
    a.e(f"s_add_u32 s79, s78, {F0}")
    a.e(f"s_mul_i32 s77, s77, {TABSZ}")
    a.e(f"s_add_u32 s77, s77, {TAB0}")
    a.e(f"v_mul_u32_u24 v66, {ENT}, v{J}")
    a.e(f"v_lshl_add_u32 v66, v{Q4}, 4, v66")
    a.e("v_add_u32 v66, s77, v66")
    a.e(f"s_cmp_gt_u32 s{MQ}, 1")
    a.e("s_cbranch_scc1 L_JOB2")
    toks = []
    for ks in range(8):
        a.e(f"ds_read_b128 a[{4*ks}:{4*ks+3}], v66 offset:{64*ks}")
        a.e(f"ds_read_b128 a[{32+4*ks}:{32+4*ks+3}], v66 offset:{24*ENT + 64*ks}")
        toks.append(a.e(f"ds_read_b128 a[{64+4*ks}:{64+4*ks+3}], v66 offset:{40*ENT + 64*ks}"))
    a.e(f"v_lshlrev_b32 v68, 6, v{Q4}")
    a.e(f"v_lshl_add_u32 v68, v{J}, 2, v68")
    a.e("v_lshlrev_b32 v68, 1, v68")
    a.e("v_add_u32 v68, s79, v68")
    a.e(f"v_cmp_gt_u32 vcc, 2, v{Q4}")
    a.e(f"v_lshlrev_b32 v74, 7, v{Q4}")
    a.e("v_add_u32 v74, 256, v74")
    a.e(f"v_lshlrev_b32 v75, 8, v{Q4}")
    a.e(f"v_cndmask_b32 v70, v75, v74, vcc")
    a.e(f"v_lshl_add_u32 v70, v{J}, 2, v70")
    for e, (o1, o2) in enumerate(((2, 64), (64, 128), (66, 192)), start=1):
        a.e(f"v_mov_b32 v74, {o2}")
        a.e(f"v_mov_b32 v75, {o1}")
        a.e(f"v_cndmask_b32 v74, v74, v75, vcc")
        a.e(f"v_add_u32 v{70+e}, v70, v74")
    for e in range(4):
        a.e(f"v_lshlrev_b32 v{70+e}, 1, v{70+e}")
        a.e(f"v_add_u32 v{70+e}, s79, v{70+e}")
    for ks in range(8):
        a.wait_ds(toks[ks])
        s0 = "0" if ks == 0 else "v[76:79]"; s1 = "0" if ks == 0 else "v[80:83]"
        a.e(f"v_mfma_f32_16x16x32_bf16 v[76:79], a[{32+4*ks}:{32+4*ks+3}], a[{4*ks}:{4*ks+3}], {s0}")
        a.e(f"v_mfma_f32_16x16x32_bf16 v[80:83], a[{64+4*ks}:{64+4*ks+3}], a[{4*ks}:{4*ks+3}], {s1}")
    a.e("v_cvt_pk_bf16_f32 v84, v76, v77")
    a.e("v_cvt_pk_bf16_f32 v85, v78, v79")
    a.e("ds_write_b64 v68, v[84:85]")
    a.e("v_cvt_pk_bf16_f32 v86, v80, v81")
    a.e("v_cvt_pk_bf16_f32 v87, v82, v83")
    a.e("ds_write_b16 v70, v86")
    a.e("ds_write_b16_d16_hi v71, v86")
    a.e("ds_write_b16 v72, v87")
    a.e("ds_write_b16_d16_hi v73, v87")
    a.e("s_branch L_JOBD")
    a.label("L_JOB2")
    a.ds_done = a.ds_issued
    a.e(f"v_lshlrev_b32 v67, 1, v{J}")
    a.e(f"v_add_u32 v68, 8, v{J}")
    a.e(f"v_cmp_gt_u32 vcc, 8, v{J}")
    a.e("v_cndmask_b32 v67, v68, v67, vcc")
    a.e(f"v_mul_u32_u24 v67, {ENT}, v67")
    a.e(f"v_lshl_add_u32 v67, v{Q4}, 4, v67")
    a.e("v_add_u32 v67, s77, v67")
    toks = []
    for ks in range(8):
        a.e(f"ds_read_b128 a[{4*ks}:{4*ks+3}], v67 offset:{64*ks}")
        toks.append(a.e(f"ds_read_b128 a[{32+4*ks}:{32+4*ks+3}], v66 offset:{56*ENT + 64*ks}"))
    a.e(f"v_lshlrev_b32 v70, 9, v{Q4}")
    a.e(f"v_lshl_add_u32 v70, v{J}, 3, v70")
    a.e("v_add_u32 v70, 1024, v70")
    a.e("v_lshlrev_b32 v70, 1, v70")
    a.e("v_add_u32 v70, s79, v70")
    for ks in range(8):
        a.wait_ds(toks[ks])
        s0 = "0" if ks == 0 else "v[76:79]"
        a.e(f"v_mfma_f32_16x16x32_bf16 v[76:79], a[{32+4*ks}:{32+4*ks+3}], a[{4*ks}:{4*ks+3}], {s0}")
    a.e("v_cvt_pk_bf16_f32 v84, v76, v77")
    a.e("v_cvt_pk_bf16_f32 v85, v78, v79")
    a.e("ds_write_b16 v70, v84")
    a.e("ds_write_b16_d16_hi v70, v84 offset:256")
    a.e("ds_write_b16 v70, v85 offset:512")
    a.e("ds_write_b16_d16_hi v70, v85 offset:768")
    a.label("L_JOBD")
    a.e("s_waitcnt vmcnt(0)")
    for chn, (T0, T1) in enumerate(((T0a, T1a), (T0b, T1b))):
        O = 104 + 4 * chn
        for jx in range(4): a.e(f"v_alignbit_b32 v{O+jx}, v{T1+jx}, v{T0+jx}, 16")
        a.e(f"ds_write_b128 v{vKW}, v[{T0}:{T0+3}] offset:{KCS*2*chn}")
        a.e(f"ds_write_b128 v{vKW}, v[{O}:{O+3}] offset:{KCS*2*chn+4160}")
    def pads(items, lab):
        a.e("s_cmp_eq_u32 s3, 0")
        a.e(f"s_cbranch_scc0 {lab}")
        a.e("v_lshlrev_b32 v112, 2, v2")
        a.e(f"v_add_u32 v112, {KC0}, v112")
        a.e("v_mov_b32 v113, 0")
        a.e("v_cmp_eq_u32 vcc, 7, v2")
        for ccx, reg in items:
            a.e(f"v_readfirstlane_b32 s77, v{reg}")
            a.e("s_nop 3")
            a.e("s_lshl_b32 s77, s77, 16")
            a.e("v_mov_b32 v114, s77")
            a.e("v_cndmask_b32 v114, 0, v114, vcc")
            a.e("s_mov_b64 exec, 0xff")
            a.e(f"ds_write_b32 v112, v113 offset:{KCS*ccx}")
            a.e(f"ds_write_b32 v112, v114 offset:{KCS*ccx+4160}")
            a.e("s_mov_b64 exec, -1")
        a.label(lab)
    pads(((0, T0a), (2, T0b)), "L_NOPADA")
    a.e("s_cmp_eq_u32 s3, 3")
    a.e("s_cbranch_scc0 L_NOEPW")
    a.e(f"v_readfirstlane_b32 s72, v{EPV}")
    a.e("s_add_u32 s72, s72, 1")
    a.e("v_mov_b32 v84, s72")
    a.e(f"v_mov_b32 v85, {EPL}")
    a.e("ds_write_b32 v85, v84")
    a.label("L_NOEPW")
    a.wait_ds_all()
    a.stamp(3)
    a.e("s_barrier")
    a.e("s_cmp_eq_u32 s3, 2")
    a.e("s_cbranch_scc0 L_NOGST")
    a.e(f"v_mov_b32 v67, {EPL}")
    a.e("ds_read_b32 v66, v67")
    a.e("s_lshl_b32 s77, s2, 3")
    a.e(f"s_add_u32 s77, s77, {WS_GF1}")
    a.e("v_mov_b32 v68, s77")
    a.e("s_waitcnt lgkmcnt(0)")
    a.e(f"v_xor_b32 v67, 0x{FLAGC:08x}, v66")
    a.e("s_mov_b64 exec, 1")
    a.e("buffer_store_dwordx2 v[66:67], v68, s[60:63], 0 offen sc1")
    a.e("s_mov_b64 exec, -1")
    a.label("L_NOGST")
    a.ds_done = a.ds_issued
    for chn in range(2):
        EL = 66 + 10 * chn
        for e in range(9): te = a.e(f"ds_read_u16 v{EL+e}, v{XA+e} offset:{FSZ*chn}")
    a.wait_ds(te)
    for chn in range(2):
        EL = 66 + 10 * chn; EE = 88 + 8 * chn; OO = EE + 4
        for k in range(4):
            a.e(f"v_lshl_or_b32 v{EE+k}, v{EL+2*k+1}, 16, v{EL+2*k}")
            a.e(f"v_lshl_or_b32 v{OO+k}, v{EL+2*k+2}, 16, v{EL+2*k+1}")
        a.e(f"ds_write_b128 v{vKW}, v[{EE}:{EE+3}] offset:{KCS*(2*chn+1)}")
        a.e(f"ds_write_b128 v{vKW}, v[{OO}:{OO+3}] offset:{KCS*(2*chn+1)+4160}")
    pads(((1, 66), (3, 76)), "L_NOPADB")
    a.e("s_cmp_eq_u32 s8, 0")
    a.e("s_cbranch_scc0 L_KNOAL")
    aloads()
    a.e("s_waitcnt lgkmcnt(15)")
    a.e("s_branch L_KAL2")
    a.label("L_KNOAL")
    a.e("s_waitcnt lgkmcnt(0)")
    a.label("L_KAL2")
    a.e("s_cmp_eq_u32 s8, 0")
    a.e("s_cselect_b32 s77, s100, s101")
    a.e("s_lshl_b32 s78, s9, 4")
    a.e("s_lshr_b32 s77, s77, s78")
    a.e("s_lshl_b32 s77, s77, 16")
    a.e(f"v_mov_b32 v{DF}, s77")
    a.stamp(4)
    a.e("s_barrier")
    a.label("L_JOIN")
    if cfg.get("xprio", 0): a.e("s_setprio 0")
    a.ds_done = a.ds_issued; a.vm_done = a.vm_issued
    a.e(f"v_mov_b32 v101, {EPL}")
    a.e("ds_read_b32 v100, v101")
    a.e("v_mov_b32 v104, 0"); a.e("v_mov_b32 v105, 0")
    a.e(f"ds_write_b64 v{vPAD}, v[104:105]")
    a.e("s_waitcnt lgkmcnt(0)")
    a.e("v_readfirstlane_b32 s72, v100")
    a.e("s_nop 3")
    a.e(f"s_xor_b32 s73, s72, 0x{FLAGC:08x}")
    a.e("s_add_u32 s97, s97, s73") if not cfg.get("force_fb") else a.e("s_add_u32 s97, s2, s73")
    a.e("v_lshlrev_b32 v122, 5, v2")
    a.e(f"v_add_u32 v122, {WS_GF1}, v122")
    a.e("v_and_b32 v123, 31, v2")
    a.e("v_lshlrev_b32 v123, 3, v123")
    a.e("s_lshl_b32 s77, s4, 8")
    a.e(f"s_add_u32 s77, s77, {WS_LF}")
    a.e("v_add_u32 v123, s77, v123")
    a.e("s_cmp_eq_u32 s8, 0")
    a.e("s_cbranch_scc1 L_SKIPAL")
    aloads()
    a.label("L_SKIPAL")
    a.stamp(5)
    XF = cfg.get("xflag", " sc1")
    def pollG(a):
        a.e("buffer_load_dwordx4 v[112:115], v122, s[60:63], 0 offen sc1")
        a.e("buffer_load_dwordx4 v[116:119], v122, s[60:63], 0 offen offset:16 sc1")
    def checkG(a):
        for r in (112, 114, 116, 118): a.e(f"v_xor_b32 v{r}, s72, v{r}")
        for r in (113, 115, 117, 119): a.e(f"v_xor_b32 v{r}, s73, v{r}")
        a.e("v_or_b32 v112, v112, v113"); a.e("v_or_b32 v114, v114, v115"); a.e("v_or_b32 v116, v116, v117"); a.e("v_or_b32 v118, v118, v119")
        a.e("v_or_b32 v112, v112, v114"); a.e("v_or_b32 v116, v116, v118"); a.e("v_or_b32 v112, v112, v116")
    def checkL(a):
        a.e("v_xor_b32 v120, s72, v120")
        a.e("v_xor_b32 v121, s97, v121")
        a.e("v_or_b32 v120, v120, v121")
    a.e("s_cmp_eq_u32 s3, 5")
    a.e("s_cbranch_scc0 L_NOTG")
    a.e("s_mov_b32 s77, 0")
    a.label("L_GPOLL")
    pollG(a)
    a.e("s_waitcnt vmcnt(0)")
    checkG(a)
    a.e("v_cmp_ne_u32 vcc, 0, v112")
    a.e("s_add_u32 s77, s77, 1")
    a.e("s_nop 3")
    a.e("s_cmp_eq_u64 vcc, 0")
    a.e("s_cbranch_scc1 L_GOK")
    a.e("s_cmp_lt_u32 s77, 20000")
    a.e("s_cbranch_scc1 L_GPOLL")
    a.label("L_GOK")
    a.e("v_lshlrev_b32 v112, 4, v2")
    for i in range(8):
        a.e(f"s_mov_b32 m0, {GM + 1024*i}")
        a.e(f"s_mov_b32 s77, {WS_GP + 1024*i}")
        a.e("buffer_load_dwordx4 v112, s[60:63], s77 offen sc1 lds")
    a.e("s_branch L_POLLDONE")
    a.label("L_NOTG")
    a.e("s_cmp_eq_u32 s3, 7")
    a.e("s_cbranch_scc0 L_POLLDONE")
    a.e("s_mov_b32 s77, 0")
    a.label("L_POLL")
    a.e("buffer_load_dwordx2 v[120:121], v123, s[60:63], 0 offen sc1")
    a.e("s_waitcnt vmcnt(0)")
    checkL(a)
    a.e("v_cmp_ne_u32 vcc, 0, v120")
    a.e("s_add_u32 s77, s77, 1")
    a.e("s_mov_b32 s98, 1")
    a.e("s_nop 2")
    a.e("s_cmp_eq_u64 vcc, 0")
    a.e("s_cbranch_scc1 L_POLLOUT")
    a.e(f"s_cmp_lt_u32 s77, {cfg.get('NA', 24)}")
    a.e("s_cbranch_scc1 L_POLL")
    a.e("s_mov_b32 s98, 2")
    a.label("L_POLLOUT")
    a.e("v_mov_b32 v120, s98")
    a.e(f"v_mov_b32 v121, {RES}")
    a.e("ds_write_b32 v121, v120")
    a.label("L_POLLDONE")
    a.wait_ds_all()
    a.vm_done = a.vm_issued
    a.stamp(8)
    a.e("s_barrier")
    a.e(f"v_mov_b32 v121, {RES}")
    a.e("ds_read_b32 v120, v121")
    a.e("s_mov_b32 s99, 0")
    a.e("s_waitcnt lgkmcnt(0)")
    a.e("v_readfirstlane_b32 s98, v120")
    a.e("s_nop 3")
    a.e("s_cmp_eq_u32 s98, 1")
    a.e("s_cbranch_scc1 L_FAST")
    a.e("s_cmp_eq_u32 s7, 0")
    a.e("s_cbranch_scc1 L_FBK")
    tr_and_store(" sc1", WS_X2 + WS_XQ, WS_X2 + WS_XKV)
    a.label("L_FBK")
    a.e("s_waitcnt vmcnt(0)")
    a.e("s_barrier")
    a.e("s_cmp_eq_u32 s3, 7")
    a.e("s_cbranch_scc0 L_FB2")
    a.e("v_mov_b32 v120, s72")
    a.e("v_mov_b32 v121, s73")
    a.e("s_lshl_b32 s77, s4, 5")
    a.e("s_add_u32 s77, s77, s5")
    a.e("s_lshl_b32 s77, s77, 3")
    a.e(f"s_add_u32 s78, s77, {WS_GF2}")
    a.e("v_mov_b32 v124, s78")
    a.e("s_mov_b64 exec, 1")
    a.e("buffer_store_dwordx2 v[120:121], v124, s[60:63], 0 offen sc1")
    a.e("s_mov_b64 exec, -1")
    a.e(f"v_add_u32 v124, {WS_GF2 - WS_LF}, v123")
    a.e("s_mov_b32 s77, 0")
    a.label("L_FBPOLL")
    a.e("buffer_load_dwordx2 v[120:121], v123, s[60:63], 0 offen sc1")
    a.e("buffer_load_dwordx2 v[126:127], v124, s[60:63], 0 offen sc1")
    a.e("s_waitcnt vmcnt(0)")
    checkL(a)
    a.e("v_xor_b32 v126, s72, v126")
    a.e("v_xor_b32 v127, s73, v127")
    a.e("v_or_b32 v126, v126, v127")
    a.e("s_add_u32 s77, s77, 1")
    a.e("s_cmp_ge_u32 s77, 20000")
    a.e("s_cbranch_scc1 L_FBGIVE")
    a.e("v_cmp_ne_u32 vcc, 0, v120")
    a.e("s_mov_b32 s98, 1")
    a.e("s_nop 3")
    a.e("s_cmp_eq_u64 vcc, 0")
    a.e("s_cbranch_scc1 L_FBOUT")
    a.e("v_cmp_ne_u32 vcc, 0, v126")
    a.e("s_nop 4")
    a.e("s_cmp_eq_u64 vcc, 0")
    a.e("s_cbranch_scc0 L_FBPOLL")
    a.label("L_FBGIVE")
    a.e("s_mov_b32 s98, 2")
    a.label("L_FBOUT")
    a.e("v_mov_b32 v120, s98")
    a.e(f"v_mov_b32 v121, {RES}")
    a.e("ds_write_b32 v121, v120")
    a.e("s_waitcnt lgkmcnt(0)")
    a.label("L_FB2")
    a.e("s_barrier")
    a.e(f"v_mov_b32 v121, {RES}")
    a.e("ds_read_b32 v120, v121")
    a.e("s_waitcnt lgkmcnt(0)")
    a.e("v_readfirstlane_b32 s98, v120")
    a.e("s_nop 3")
    a.e("s_cmp_eq_u32 s98, 2")
    a.e(f"s_cselect_b32 s99, {WS_X2}, 0")
    a.label("L_FAST")
    a.ds_done = a.ds_issued; a.vm_done = a.vm_issued
    a.e("s_cmp_eq_u32 s3, 5")
    a.e("s_cbranch_scc1 L_XDONE")
    a.e("s_cmp_gt_u32 s3, 5")
    a.e("s_cselect_b32 s78, 1, 0")
    a.e("s_sub_u32 s78, s3, s78")
    a.e("v_lshlrev_b32 v112, 4, v2")
    a.e("s_add_u32 s79, s13, s99")
    for it in range(3):
        if it == 2:
            a.e("s_cmp_gt_u32 s78, 15")
            a.e("s_cbranch_scc1 L_XW")
        a.e("s_lshr_b32 s74, s78, 2")
        a.e("s_and_b32 s75, s78, 3")
        a.e("s_lshl_b32 s75, s75, 10")
        a.e(f"s_mul_i32 s76, s74, {XRS}")
        a.e("s_add_u32 s76, s76, s75")
        a.e(f"s_add_u32 m0, s76, {XR0}")
        a.e("s_lshr_b32 s76, s74, 1")
        a.e("s_lshl_b32 s76, s76, 12")
        a.e("s_add_u32 s75, s75, s76")
        a.e("s_and_b32 s74, s74, 1")
        a.e("s_xor_b32 s74, s74, 1")
        a.e("s_lshl_b32 s74, s74, 21")
        a.e("s_add_u32 s75, s75, s74")
        a.e("s_add_u32 s75, s75, s79")
        a.e("buffer_load_dwordx4 v112, s[60:63], s75 offen sc1 lds")
        a.e("s_add_u32 s78, s78, 7")
    a.label("L_XW")
    a.stamp(9)
    a.e("s_waitcnt vmcnt(0)")
    a.label("L_XDONE")
    a.e("s_waitcnt lgkmcnt(0)")
    a.ds_done = a.ds_issued; a.vm_done = a.vm_issued
    a.stamp(13)
    a.e("s_barrier")
    a.e("s_cmp_lg_u32 s2, 0")
    a.e("s_cbranch_scc1 L_NOEP")
    a.e("s_cmp_lg_u32 s3, 7")
    a.e("s_cbranch_scc1 L_NOEP")
    a.e("v_mov_b32 v72, s72")
    a.e(f"v_mov_b32 v73, {WS_EP}")
    a.e("s_mov_b64 exec, 1")
    a.e("buffer_store_dword v72, v73, s[60:63], 0 offen")
    a.e("s_mov_b64 exec, -1")
    a.label("L_NOEP")
    a.e("s_cmp_lg_u32 s7, 0")
    a.e("s_cbranch_scc1 L_H1")
    ctx = dict(vB=vB, vX=vX, vQ=vQ, vG=vG, vPX=vPX, vGW=vGW, vCMB=vCMB, vOUT=vOUT, SQL=SQL, SQH=SQH, ONEF=ONEF, SG=SG, DF=DF, MHI=27,
               nostore=cfg.get("nostore"), noepi=cfg.get("noepi"), vA=vA, CPRE=CPRE)
    for kk in ("G1", "G2", "G3", "nobar", "novalu", "bstamp", "NB0", "NB1"):
        if kk in cfg: ctx[kk] = cfg[kk]
    if cfg.get("h0prio", 0): a.e(f"s_setprio {cfg['h0prio']}")
    main_loop(a, 0, passes, NB, LOOK, RATE, ctx)
    a.e("s_endpgm")
    a.label("L_H1")
    if cfg.get("h1prio", 0): a.e(f"s_setprio {cfg['h1prio']}")
    main_loop(a, 1, passes, NB, LOOK, RATE, ctx)
    a.label("L_END")
    a.e("s_endpgm")
    a.label("L_CODE_END")

def main_loop(a, h, passes, NB, LOOK, RATE, c):
    ACC0 = 32
    BR = 48
    NB = c.get("NB1", 16) if h == 1 else c.get("NB0", 12)
    EP = BR + 4 * NB
    assert EP + (32 if h == 0 else 8) <= 128
    MHI = c["MHI"]
    a.e(f"v_mov_b32 v{MHI}, 0xffff0000")
    def areg(cidx, rho): return 4 * (cidx * 4 + rho)
    n = len(passes)
    accof = {}
    for pi, P in enumerate(passes):
        assert len(P) <= 2
        for k, t in enumerate(P): accof[t] = ACC0 + 8 * (pi % 2) + 4 * k
    G1, G2, G3 = c.get("G1", 2), c.get("G2", 2), c.get("G3", 5)
    mf = []; loads = []; bseq = 0; pstart = []; pend = []; seenA = set(); tokA = {}
    for P in passes:
        thi = max(P)
        pstart.append(len(mf))
        for rho in range(4):
            for dl in range(thi + 1):
                users = [t for t in P if t - dl >= 0]
                if not users: continue
                for t in users:
                    cidx = t - dl
                    if cidx >= c["CPRE"] and (cidx, rho) not in seenA:
                        seenA.add((cidx, rho))
                        loads.append(dict(kind="A", c=cidx, rho=rho, need=max(0, len(mf) - c.get("ALEAD", 10))))
                loads.append(dict(kind="B", dl=dl, rho=rho, need=len(mf), b=bseq))
                for t in users: mf.append(dict(t=t, c=t - dl, rho=rho, b=bseq))
                bseq += 1
        pend.append(len(mf))
    lastuse = {}
    for i, m in enumerate(mf): lastuse[m["b"]] = i
    tokB = {}; st = dict(li=0); started = set(); side = []
    V = (lambda f: None) if c.get("novalu") else (lambda f: side.append(("v", f)))
    X = lambda f: side.append(("x", f))
    def run_side(nv):
        k = 0
        while side:
            it = side[0]
            if it[0] == "gap":
                if it[1] <= 0: side.pop(0); continue
                side[0] = ("gap", it[1] - 1)
                return
            if it[0] == "v":
                if k >= nv: return
                k += 1
            side.pop(0); it[1]()
    def flush_side():
        while side:
            if side[0][0] == "gap": side.pop(0); continue
            run_side(1000)
    def prefetch(i, limit):
        while st["li"] < len(loads):
            L = loads[st["li"]]
            if L["need"] > i + LOOK or L["need"] >= limit: break
            if L["kind"] == "A":
                r = areg(L["c"], L["rho"]); o = 128 * (L["c"] & 1) + 16 * L["rho"]; va = c["vA"][L["c"] >> 1]
                a.e(f"ds_read2_b32 a[{r}:{r+1}], v{va} offset0:{o} offset1:{o+1}")
                tokA[(L["c"], L["rho"])] = a.e(f"ds_read2_b32 a[{r+2}:{r+3}], v{va} offset0:{o+2} offset1:{o+3}")
                st["li"] += 1
                continue
            prev = L["b"] - NB
            if prev >= 0 and lastuse[prev] >= i: break
            r = BR + 4 * (L["b"] % NB)
            tokB[L["b"]] = a.e(f"ds_read_b128 v[{r}:{r+3}], v{c['vB']} offset:{64*L['rho'] + 512*(7-L['dl'])}")
            st["li"] += 1
    def emit_pass(pi, init_tok=None):
        for i in range(pstart[pi], pend[pi]):
            m = mf[i]
            prefetch(i, 10**9)
            a.wait_ds(tokB[m["b"]])
            if (m["c"], m["rho"]) in tokA: a.wait_ds(tokA[(m["c"], m["rho"])])
            ar = areg(m["c"], m["rho"]); br = BR + 4 * (m["b"] % NB); ac = accof[m["t"]]
            if m["t"] in started: src = f"v[{ac}:{ac+3}]"
            else:
                started.add(m["t"])
                if init_tok is not None:
                    a.wait_ds(init_tok[m["t"]]); src = f"v[{ac}:{ac+3}]"
                else: src = "0"
            a.e(f"v_mfma_f32_16x16x32_bf16 v[{ac}:{ac+3}], a[{ar}:{ar+3}], v[{br}:{br+3}], {src}")
            run_side(RATE)
    bcount = [0]
    def barrier():
        if bcount[0] == 0:
            a.e("s_waitcnt vmcnt(0)")
        if c.get("bstamp"):
            a.raw(f"  s_memtime s[{56 + 0}:{57}]") if False else None
            a.e(f"s_memtime s[{16+2*bcount[0]}:{17+2*bcount[0]}]")
        if not c.get("nobar"): a.e("s_barrier")
        bcount[0] += 1
    def regs_fin(k):
        E = EP + 12 * k
        return E, E + 4, E + 8
    def q_fin_pre(P):
        assert len(P) <= 2
        XO, QM = EP + 24, EP + 26
        for k, t in enumerate(P):
            TT, UU, GG = regs_fin(k)
            tk = {}
            X(lambda t=t: a.e(f"ds_read_b64 v[{XO}:{XO+1}], v{c['vX']} offset:{512*(7-t)}"))
            X(lambda t=t: a.e(f"ds_read_b64 v[{QM}:{QM+1}], v{c['vQ']} offset:{512*(7-t)}"))
            def rg(t=t, GG=GG, tk=tk): tk[0] = a.e(f"ds_read_b128 v[{GG}:{GG+3}], v{c['vG']} offset:{1024*t}")
            X(rg)
            side.append(("gap", G3))
            X(lambda tk=tk: a.wait_ds(tk[0]))
            V(lambda TT=TT: a.e(f"v_lshlrev_b32 v{TT+3}, 16, v{XO}"))
            V(lambda TT=TT: a.e(f"v_and_b32 v{TT+2}, v{MHI}, v{XO}"))
            V(lambda TT=TT: a.e(f"v_lshlrev_b32 v{TT+1}, 16, v{XO+1}"))
            V(lambda TT=TT: a.e(f"v_and_b32 v{TT+0}, v{MHI}, v{XO+1}"))
            V(lambda UU=UU: a.e(f"v_perm_b32 v{UU+3}, v{QM}, v{c['ONEF']}, v{c['SQL']}"))
            V(lambda UU=UU: a.e(f"v_perm_b32 v{UU+2}, v{QM}, v{c['ONEF']}, v{c['SQH']}"))
            V(lambda UU=UU: a.e(f"v_perm_b32 v{UU+1}, v{QM+1}, v{c['ONEF']}, v{c['SQL']}"))
            V(lambda UU=UU: a.e(f"v_perm_b32 v{UU+0}, v{QM+1}, v{c['ONEF']}, v{c['SQH']}"))
            for e in range(4): V(lambda e=e, TT=TT: a.e(f"v_mul_f32 v{TT+e}, v{c['DF']}, v{TT+e}"))
            for e in range(4): V(lambda e=e, GG=GG: a.e(f"v_perm_b32 v{GG+e}, v{GG+e}, v{GG+e}, v{c['SG']}"))
            for e in range(4): V(lambda e=e, TT=TT: a.e(f"v_cvt_pk_bf16_f32 v{TT+e}, 0, v{TT+e}"))
    def q_fin_post(P):
        DD = EP + 28
        def stage(fn):
            for k, t in enumerate(P):
                TT, UU, GG = regs_fin(k); ac = accof[t]
                for e in range(4): V(lambda e=e, ac=ac, TT=TT, UU=UU, GG=GG: fn(e, ac, TT, UU, GG))
        stage(lambda e, ac, TT, UU, GG: a.e(f"v_cvt_pk_bf16_f32 v{ac+e}, 0, v{ac+e}"))
        stage(lambda e, ac, TT, UU, GG: a.e(f"v_add_f32 v{ac+e}, v{ac+e}, v{TT+e}"))
        stage(lambda e, ac, TT, UU, GG: a.e(f"v_cvt_pk_bf16_f32 v{ac+e}, 0, v{ac+e}"))
        stage(lambda e, ac, TT, UU, GG: a.e(f"v_mul_f32 v{ac+e}, v{ac+e}, v{UU+e}"))
        stage(lambda e, ac, TT, UU, GG: a.e(f"v_cvt_pk_bf16_f32 v{ac+e}, 0, v{ac+e}"))
        stage(lambda e, ac, TT, UU, GG: a.e(f"v_mul_f32 v{ac+e}, v{ac+e}, v{GG+e}"))
        for k, t in enumerate(P):
            ac = accof[t]
            V(lambda ac=ac, k=k: a.e(f"v_cvt_pk_bf16_f32 v{DD+2*k}, v{ac+0}, v{ac+1}"))
            V(lambda ac=ac, k=k: a.e(f"v_cvt_pk_bf16_f32 v{DD+2*k+1}, v{ac+2}, v{ac+3}"))
        for k, t in enumerate(P):
            X(lambda t=t, k=k: a.e(f"ds_write_b64 v{c['vGW']}, v[{DD+2*k}:{DD+2*k+1}] offset:{512*t}"))
    def q_combine(P):
        tkc = {}
        for k, t in enumerate(P):
            CM = [EP + 4 * k + i for i in range(4)]
            for cc2 in range(4):
                def rd(cc2=cc2, t=t, CM=CM): tkc[t] = a.e(f"ds_read_u16_d16_hi v{CM[cc2]}, v{c['vCMB']} offset:{4096*cc2+512*t}")
                X(rd)
        side.append(("gap", G3))
        for k, t in enumerate(P):
            CM = [EP + 4 * k + i for i in range(4)]
            X(lambda t=t: a.wait_ds(tkc[t]))
            V(lambda CM=CM: a.e(f"v_add_f32 v{CM[0]}, v{CM[0]}, v{CM[1]}"))
            V(lambda CM=CM: a.e(f"v_add_f32 v{CM[2]}, v{CM[2]}, v{CM[3]}"))
            X(lambda t=t: a.e(f"s_mov_b32 s77, {t*262144}"))
            V(lambda CM=CM: a.e(f"v_cvt_pk_bf16_f32 v{CM[1]}, v{CM[0]}, v{CM[2]}"))
            if not c.get("nostore"): X(lambda CM=CM: a.e(f"buffer_store_dword v{CM[1]}, v{c['vOUT']}, s[64:67], s77 offen"))
    if h == 1:
        for k in range(n):
            if k >= 2: q_combine(passes[k - 2])
            emit_pass(k)
            flush_side()
            tw = None
            for t in passes[k]:
                tw = a.e(f"ds_write_b128 v{c['vPX']}, v[{accof[t]}:{accof[t]+3}] offset:{1024*t}")
            if k + 1 < n: prefetch(pend[k], 10**9)
            a.wait_ds(tw)
            barrier()
        if n >= 2:
            q_combine(passes[n - 2]); flush_side()
        barrier()
        a.stamp(14)
        q_combine(passes[n - 1]); flush_side()
    else:
        barrier_only = True
        prefetch(0, 10**9)
        barrier()
        for k in range(n):
            itok = {}
            for t in passes[k]:
                itok[t] = a.e(f"ds_read_b128 v[{accof[t]}:{accof[t]+3}], v{c['vPX']} offset:{1024*t}")
            q_fin_pre(passes[k])
            emit_pass(k, init_tok=itok)
            flush_side()
            if k + 1 < n: prefetch(pend[k], 10**9)
            q_fin_post(passes[k])
            flush_side()
            a.wait_ds(a.ds_issued - 1)
            barrier()
        a.stamp(14)
    if getattr(a, "stamps", False): a.wait_vm_all()
    a.stamp(15)
    if c.get("bstamp"):
        a.e("s_waitcnt lgkmcnt(0)")
        for i in range(bcount[0]): a.e(f"s_mov_b32 s{81+i}, s{16+2*i}")
    a.dump_stamps(16, 52, 16 << 20, wave="s3")

def build(cfg):
    a = Asm()
    a.stamps = cfg.get("stamps", False)
    a.stamp_sel = cfg.get("stamp_sel", None)
    hdr = open("cdna_kernels/" + NAME + ".s.ref").read().split("\n")
    head = [l for l in hdr if l.startswith(";") and "@launch" not in l and "Override launch" not in l and "grid=ceil" not in l]
    a.raw("\n".join(head[:21]))
    a.raw(f"; @launch grid=(256,1,1) block=(512,1,1) lds={LDS_TOTAL}")
    a.raw('.amdgcn_target "amdgcn-amd-amdhsa--gfx950"\n.text')
    kernel(a, cfg)
    a.raw(f""".section .rodata,"a"
.p2align 6
.amdhsa_kernel {KN}
  .amdhsa_next_free_vgpr 256
  .amdhsa_next_free_sgpr 102
  .amdhsa_accum_offset 128
  .amdhsa_group_segment_fixed_size 0
  .amdhsa_kernarg_size 152
  .amdhsa_user_sgpr_count 2
  .amdhsa_user_sgpr_kernarg_segment_ptr 1
  .amdhsa_system_sgpr_workgroup_id_x 1
.end_amdhsa_kernel""")
    return a.finalize()

DEFAULT = dict(passes=[[0], [1, 2], [3, 4], [5, 6], [7]], NB=8, LOOK=14, RATE=2)
if __name__ == "__main__":
    out = sys.argv[1] if len(sys.argv) > 1 else "cdna_kernels/" + NAME + ".s"
    cfg = dict(DEFAULT)
    for arg in sys.argv[2:]:
        if arg == "stamps": cfg["stamps"] = True
        elif "=" in arg:
            k, v = arg.split("=", 1); cfg[k] = eval(v)
    open(out, "w").write(build(cfg))
    print("wrote", out)
```

```python
import sys, struct
from dsl import Asm

NAME = "gated_mix__ssm_conv_h3__ssm_conv_s4__prompt"
KN = NAME + "_kernel"
LOG2E = 0x3fb8aa3b
WS_XQ = 0
WS_XKV = 2 << 20
WS_X2 = 4 << 20
WS_GP = 8 << 20
WS_GF1 = (8 << 20) + 65536
WS_GF2 = (8 << 20) + 131072
WS_LF = (8 << 20) + 196608
WS_EP = (8 << 20) + 262144
WS_USED = (8 << 20) + 262144 + 4096
FLAGC = 0x5a5a5a5a

KT = 0
QT = KT + 72 * 128
KVT = QT + 8192
SKT = KVT + 8192
PAR = SKT + 512
KC0 = PAR + 3072
KCS = 8320
F0 = KC0 + 4 * KCS
FSZ = 6144
TAB0 = F0 + 2 * FSZ
ENT = 544
TABSZ = 72 * ENT
TABEND = TAB0 + 2 * TABSZ
XRS = 4608
XR0 = TAB0
GM = XR0 + 4 * XRS
PX = GM + 8192
GAB = PX + 32768
assert GAB + 16384 <= TABEND
LDS_TOTAL = TABEND

def fbits(x): return struct.unpack("<I", struct.pack("<f", float(x)))[0]

def cmul(a, dst, w, z, tmp):
    a.e(f"v_pk_mul_f32 v[{tmp}:{tmp+1}], v[{w}:{w+1}], v[{z}:{z+1}] op_sel:[0,0] op_sel_hi:[1,0]")
    a.e(f"v_pk_fma_f32 v[{dst}:{dst+1}], v[{w}:{w+1}], v[{z}:{z+1}], v[{tmp}:{tmp+1}] op_sel:[1,1,0] op_sel_hi:[0,1,1] neg_lo:[1,0,0]")

def cpow(a, dst, rho, phi, m, t0, t1):
    a.e(f"v_mul_f32 v{t0}, 0x{fbits(m):08x}, v{rho}")
    a.e(f"v_mul_f32 v{t1}, 0x{fbits(m):08x}, v{phi}")
    a.e(f"v_exp_f32 v{t0}, v{t0}")
    a.e(f"v_fract_f32 v{t1}, v{t1}")
    a.e(f"v_cos_f32 v{dst}, v{t1}")
    a.e(f"v_sin_f32 v{dst+1}, v{t1}")
    a.e(f"v_mul_f32 v{dst}, v{t0}, v{dst}")
    a.e(f"v_mul_f32 v{dst+1}, v{t0}, v{dst+1}")

def kernel(a, cfg):
    passes, NB, LOOK, RATE = cfg["passes"], cfg["NB"], cfg["LOOK"], cfg["RATE"]
    GLD, EPL, RES = PAR, PAR + 64, PAR + 128
    a.raw(f".globl {KN}\n.p2align 8\n.type {KN},@function\n{KN}:")
    a.e("s_cmp_ge_u32 s2, 256")
    a.e("s_cbranch_scc1 L_END")
    a.stamp(0)
    a.e("s_load_dwordx16 s[16:31], s[0:1], 0")
    a.e("s_load_dwordx16 s[32:47], s[0:1], 64")
    a.e("s_load_dwordx4 s[48:51], s[0:1], 128")
    a.e("s_load_dwordx2 s[52:53], s[0:1], 144")
    a.e("v_lshrrev_b32 v1, 6, v0")
    a.e("v_and_b32 v2, 63, v0")
    a.e("v_readfirstlane_b32 s3, v1")
    a.e("s_and_b32 s4, s2, 7")
    a.e("s_lshr_b32 s5, s2, 3")
    if cfg.get("epf", True):
        PFW = cfg.get("pfwave", 0)
        a.e(f"s_cmp_eq_u32 s3, {PFW}")
        a.e("s_cbranch_scc0 L_NOPF")
        a.e("s_getpc_b64 s[74:75]")
        a.label("L_PC")
        a.raw("  .set CODE_REM, L_CODE_END - L_PC")
        a.e("s_mul_i32 s76, s5, 5")
        a.e("v_add_u32 v74, s76, v2")
        a.e("v_lshlrev_b32 v74, 7, v74")
        a.e(f"v_cmp_gt_u32 vcc, CODE_REM, v74")
        a.e("v_cndmask_b32 v74, 0, v74, vcc")
        a.e("s_mov_b64 exec, 31")
        a.e(f"global_load_dword v30, v74, s[74:75]")
        a.e("s_mov_b64 exec, -1")
        a.label("L_NOPF")
    a.e("s_lshl_b32 s10, s4, 6")
    a.e("s_lshl_b32 s11, s5, 1")
    a.e("s_add_u32 s10, s10, s11")
    MQ = 96
    a.e(f"s_and_b32 s{MQ}, s3, 3")
    a.e("s_lshr_b32 s7, s3, 2")
    a.e(f"s_xor_b32 s6, s{MQ}, s7")
    a.e("s_and_b32 s8, s6, 1")
    a.e("s_lshr_b32 s9, s6, 1")
    a.e("v_lshlrev_b32 v69, 4, v2")
    a.e("s_lshl_b32 s11, s5, 16")
    a.e("s_lshl_b32 s12, s4, 7")
    a.e("s_add_u32 s11, s11, s12")
    a.e("s_getreg_b32 s97, hwreg(HW_REG_XCC_ID, 0, 4)")
    a.e("s_cmp_eq_u32 s7, 0")
    a.e("s_cbranch_scc1 L_KISSUE")
    a.e("v_lshrrev_b32 v67, 3, v2")
    a.e("v_and_b32 v68, 7, v2")
    a.e("v_lshlrev_b32 v5, 10, v67")
    a.e("v_lshl_add_u32 v5, v68, 4, v5")
    a.e(f"s_lshl_b32 s12, s{MQ}, 14")
    a.e("s_add_u32 s12, s12, s11")
    a.e("v_add_u32 v5, s12, v5")
    a.e("v_add_u32 v7, 8192, v5")
    a.e("v_subrev_u32 v6, 8192, v5")
    a.e("v_bfe_u32 v70, v0, 3, 5")
    a.e("v_and_b32 v71, 7, v0")
    a.e("v_lshlrev_b32 v72, 11, v70")
    a.e("v_lshl_add_u32 v72, v71, 4, v72")
    a.e("v_add_u32 v72, s11, v72")
    a.e("s_lshl_b32 s14, s4, 9")
    a.e("v_add_u32 v73, s14, v69")
    a.e(f"s_lshl_b32 s13, s{MQ}, 11")
    a.e("s_waitcnt lgkmcnt(0)")
    a.e("s_mov_b32 s56, s18"); a.e("s_and_b32 s57, s19, 0xffff"); a.e("s_mov_b32 s58, 0x200000"); a.e("s_mov_b32 s59, 0x20000")
    VR = 120
    a.e("s_cmp_eq_u32 s3, 4")
    a.e("s_cbranch_scc0 L_X1")
    a.e(f"s_mov_b32 m0, {KT}")
    a.e("s_nop 0")
    a.e("buffer_load_dwordx4 v6, s[56:59], 0 offen lds")
    a.e("s_branch L_X2")
    a.label("L_X1")
    a.e("s_cmp_eq_u32 s3, 5")
    a.e("s_cbranch_scc0 L_X2")
    a.e("s_mov_b32 exec_hi, 0")
    a.e(f"s_mov_b32 m0, {SKT}")
    a.e("s_nop 0")
    a.e("global_load_lds_dwordx4 v73, s[22:23]")
    a.e("s_mov_b32 exec_hi, -1")
    a.label("L_X2")
    a.e(f"s_add_u32 m0, s13, {KT + 1024}")
    a.e("s_nop 0")
    a.e("buffer_load_dwordx4 v5, s[56:59], 0 offen lds")
    a.e(f"s_add_u32 m0, s13, {KT + 2048}")
    a.e("s_nop 0")
    a.e("buffer_load_dwordx4 v7, s[56:59], 0 offen lds")
    a.e(f"global_load_dwordx4 v[{VR}:{VR+3}], v72, s[20:21]")
    a.e(f"global_load_dwordx4 v[{VR+4}:{VR+7}], v72, s[20:21] offset:1024")
    if not cfg.get("qlate"):
        a.e(f"s_add_u32 m0, s13, {QT}")
        a.e("s_nop 0")
        a.e("global_load_lds_dwordx4 v5, s[16:17]")
        a.e(f"s_add_u32 m0, s13, {QT + 1024}")
        a.e("s_nop 0")
        a.e("global_load_lds_dwordx4 v7, s[16:17]")
    a.e("s_branch L_COMMON")
    a.label("L_KISSUE")
    GQ0, GQ1, GW = 100, 104, 108
    EPV = 30
    a.e("s_lshl_b32 s15, s10, 8")
    a.e("v_add_u32 v72, s15, v69")
    a.e("s_lshl_b32 s12, s2, 3")
    a.e(f"s_lshl_b32 s13, s{MQ}, 1")
    a.e("s_add_u32 s12, s12, s13")
    a.e("s_lshl_b32 s13, s12, 10")
    a.e("v_add_u32 v73, s13, v69")
    a.e("s_lshl_b32 s79, s10, 1")
    a.e("s_waitcnt lgkmcnt(0)")
    a.e("s_load_dword s76, s[42:43], s79")
    a.e("s_mov_b32 exec_hi, 0")
    for wv, arrs in enumerate(((0, 1), (2, 3), (4,), (5,))):
        a.e(f"s_cmp_eq_u32 s{MQ}, {wv}")
        a.e(f"s_cbranch_scc0 L_KP{wv}")
        for ar in arrs:
            a.e(f"s_mov_b32 m0, {PAR + 512*ar}")
            a.e("s_nop 0")
            a.e(f"global_load_lds_dwordx4 v72, s[{30+2*ar}:{31+2*ar}]")
        a.e("s_branch L_KP4")
        a.label(f"L_KP{wv}")
    a.label("L_KP4")
    a.e("s_mov_b64 exec, -1")
    GL = cfg.get("glate")
    if not GL:
        a.e(f"global_load_dwordx4 v[{GQ0}:{GQ0+3}], v73, s[16:17]")
        a.e(f"global_load_dwordx4 v[{GQ1}:{GQ1+3}], v73, s[16:17] offset:1024")
        a.e(f"global_load_dwordx4 v[{GW}:{GW+3}], v69, s[46:47]")
    else:
        a.e("v_mov_b32 v1, v73"); a.e("v_mov_b32 v47, v69")
    a.e("s_cmp_eq_u32 s3, 3")
    a.e("s_cbranch_scc0 L_COMMON")
    a.e("v_subrev_u32 v74, 1, v2")
    a.e("v_lshlrev_b32 v74, 21, v74")
    a.e(f"v_mov_b32 v75, {WS_EP}")
    a.e("v_cmp_eq_u32 vcc, 0, v2")
    a.e("v_cndmask_b32 v74, v74, v75, vcc")
    if cfg.get("lftouch", False):
        a.e("s_lshl_b32 s77, s4, 8")
        a.e(f"s_add_u32 s77, s77, {WS_LF - 384}")
        a.e("v_lshlrev_b32 v75, 7, v2")
        a.e("v_add_u32 v75, s77, v75")
        a.e("v_cmp_lt_u32 vcc, 2, v2")
        a.e("v_cndmask_b32 v74, v74, v75, vcc")
        a.e("s_mov_b64 exec, 31")
    else:
        a.e("s_mov_b64 exec, 7")
    a.e(f"global_load_dword v{EPV}, v74, s[52:53] sc1")
    a.e("s_mov_b64 exec, -1")
    a.label("L_COMMON")
    a.e("s_mov_b32 s60, s52"); a.e("s_and_b32 s61, s53, 0xffff"); a.e(f"s_mov_b32 s62, {WS_USED}"); a.e("s_mov_b32 s63, 0x20000")
    a.e("s_mov_b32 s64, s48"); a.e("s_and_b32 s65, s49, 0xffff"); a.e("s_mov_b32 s66, 0x200000"); a.e("s_mov_b32 s67, 0x20000")
    a.e("s_mov_b32 s68, s24"); a.e("s_and_b32 s69, s25, 0xffff"); a.e("s_mov_b32 s70, 0x200000"); a.e("s_mov_b32 s71, 0x20000")
    a.e("s_lshl_b32 s79, s10, 1")
    a.e("s_load_dword s76, s[42:43], s79")
    a.e("s_load_dword s100, s[26:27], s79")
    a.e("s_load_dword s101, s[44:45], s79")
    ONES, MLO, MHI = 21, 28, 27
    a.e(f"v_mov_b32 v{ONES}, 0x3f803f80")
    a.e(f"v_mov_b32 v{MLO}, 0xffff")
    a.e(f"v_mov_b32 v{MHI}, 0xffff0000")
    J, Q4 = 64, 65
    a.e(f"v_and_b32 v{J}, 15, v2")
    a.e(f"v_lshrrev_b32 v{Q4}, 4, v2")
    a.e("s_lshl_b32 s13, s10, 12")
    a.e("v_lshlrev_b32 v4, 4, v0")
    a.e("v_add_u32 v13, s13, v4")
    vB, vX, vQ, vG, vPX, vGW, vCMB, vOUT = 8, 9, 10, 11, 12, 14, 15, 16
    vA = [17, 18, 19, 20]
    SQL, SQH, ONEF, SG, DF = 22, 23, 24, 25, 26
    vXL = 3
    CPRE = cfg.get("CPRE", 8)
    def areg(cidx, rho): return 4 * (cidx * 4 + rho)
    def aloads():
        for cidx in range(CPRE):
            for rho in range(4):
                r = areg(cidx, rho); o = 128 * (cidx & 1) + 16 * rho; va = vA[cidx >> 1]
                a.e(f"ds_read2_b32 a[{r}:{r+1}], v{va} offset0:{o} offset1:{o+1}")
                a.e(f"ds_read2_b32 a[{r+2}:{r+3}], v{va} offset0:{o+2} offset1:{o+3}")
    a.e(f"s_mul_i32 s77, s6, {XRS}")
    a.e(f"s_add_u32 s77, s77, {XR0}")
    a.e("s_lshl_b32 s78, s7, 8")
    a.e("s_add_u32 s78, s78, s77")
    a.e("s_add_u32 s78, s78, 480")
    a.e(f"v_lshlrev_b32 v62, 5, v{J}")
    a.e(f"v_lshlrev_b32 v{vB}, 4, v{Q4}")
    a.e(f"v_sub_u32 v{vB}, v{vB}, v62")
    a.e(f"v_add_u32 v{vB}, s78, v{vB}")
    a.e(f"v_lshl_add_u32 v63, v{Q4}, 3, v62")
    a.e("s_add_u32 s78, s77, 504")
    a.e(f"v_sub_u32 v{vX}, s78, v63")
    vPAD = 29
    a.e("s_add_u32 s78, s77, 4096")
    a.e(f"v_lshlrev_b32 v{vPAD}, 3, v2")
    a.e(f"v_add_u32 v{vPAD}, s78, v{vPAD}")
    a.e("s_or_b32 s78, s6, 1")
    a.e(f"s_mul_i32 s78, s78, {XRS}")
    a.e(f"s_add_u32 s78, s78, {XR0 + 504}")
    a.e(f"v_sub_u32 v{vQ}, s78, v63")
    a.e(f"v_lshlrev_b32 v62, 1, v63")
    a.e(f"v_add_u32 v{vG}, {GM}, v62")
    a.e("s_lshl_b32 s78, s6, 13")
    a.e(f"s_add_u32 s78, s78, {PX}")
    a.e(f"v_add_u32 v{vPX}, s78, v69")
    a.e("s_lshl_b32 s78, s6, 12")
    a.e(f"s_add_u32 s78, s78, {GAB}")
    a.e(f"v_add_u32 v{vGW}, s78, v63")
    a.e("s_lshl_b32 s78, s6, 6")
    a.e(f"v_add_u32 v62, s78, v2")
    a.e(f"v_lshlrev_b32 v{vCMB}, 1, v62")
    a.e(f"v_add_u32 v{vCMB}, {GAB}, v{vCMB}")
    a.e(f"v_lshlrev_b32 v{vOUT}, 10, v62")
    a.e("s_lshl_b32 s78, s10, 1")
    a.e(f"v_add_u32 v{vOUT}, s78, v{vOUT}")
    a.e("s_lshl_b32 s78, s7, 7")
    a.e("s_sub_u32 s78, s78, 15")
    a.e(f"v_lshl_add_u32 v62, v{Q4}, 3, v{J}")
    a.e("v_add_u32 v62, s78, v62")
    a.e("v_lshlrev_b32 v62, 1, v62")
    a.e(f"s_mul_i32 s78, s6, {KCS}")
    a.e(f"s_add_u32 s78, s78, {KC0 + 32}")
    a.e(f"v_and_b32 v63, 1, v{J}")
    a.e(f"v_cmp_eq_u32 vcc, 1, v63")
    a.e(f"v_mov_b32 v63, {4160 - 2}")
    a.e(f"v_cndmask_b32 v63, v63, 0, vcc")
    a.e(f"v_add3_u32 v{vA[0]}, v62, v63, s78")
    for i in range(1, 4): a.e(f"v_add_u32 v{vA[i]}, {1024*i}, v{vA[0]}")
    a.e("v_lshrrev_b32 v62, 8, v0")
    a.e(f"v_mul_u32_u24 v62, {2*XRS}, v62")
    a.e("v_and_b32 v63, 255, v0")
    a.e(f"v_lshl_add_u32 v{vXL}, v63, 4, v62")
    a.e(f"v_add_u32 v{vXL}, {XR0}, v{vXL}")
    a.e(f"v_mov_b32 v{ONEF}, 1.0")
    a.e("s_cmp_eq_u32 s8, 0")
    a.e("s_mov_b32 s78, 0x03020100")
    a.e("s_cselect_b32 s77, 0x05040c0c, s78");  a.e(f"v_mov_b32 v{SQL}, s77")
    a.e("s_cselect_b32 s77, 0x07060c0c, s78");  a.e(f"v_mov_b32 v{SQH}, s77")
    a.e("s_mov_b32 s78, 0x07060c0c")
    a.e("s_cselect_b32 s77, 0x05040c0c, s78");  a.e(f"v_mov_b32 v{SG}, s77")
    a.e("v_mov_b32 v5, 0") if False else None
    a.e("s_cmp_eq_u32 s7, 0")
    a.e("s_cbranch_scc1 L_KPATH")
    if cfg.get("xprio", 0): a.e(f"s_setprio {cfg['xprio']}")
    vRC, vSKA, vTR, vXS = 31, 1, 5, 6
    a.e("v_bfe_u32 v70, v0, 3, 5")
    a.e("v_and_b32 v71, 7, v0")
    a.e(f"v_lshlrev_b32 v{vRC}, 8, v70")
    a.e(f"v_lshl_add_u32 v{vRC}, v71, 4, v{vRC}")
    a.e(f"v_lshlrev_b32 v{vSKA}, 6, v71")
    a.e(f"v_lshrrev_b32 v72, 2, v{J}")
    a.e(f"v_and_b32 v73, 3, v{J}")
    a.e(f"v_lshlrev_b32 v75, 3, v{Q4}")
    a.e("v_add_u32 v76, 3, v75")
    a.e("v_sub_u32 v76, v76, v72")
    a.e("v_lshlrev_b32 v76, 7, v76")
    a.e("v_lshl_add_u32 v76, v73, 3, v76")
    a.e(f"s_lshl_b32 s77, s{MQ}, 5")
    a.e(f"v_add_u32 v{vTR}, s77, v76")
    a.e("s_lshl_b32 s77, s4, 18")
    a.e(f"s_lshl_b32 s78, s{MQ}, 16")
    a.e("s_add_u32 s77, s77, s78")
    a.e("s_add_u32 s77, s77, 4016")
    a.e("s_lshl_b32 s78, s5, 7")
    a.e("s_sub_u32 s77, s77, s78")
    a.e(f"v_lshlrev_b32 v{vXS}, 12, v{J}")
    a.e("v_lshlrev_b32 v76, 1, v75")
    a.e(f"v_sub_u32 v{vXS}, v{vXS}, v76")
    a.e(f"v_add_u32 v{vXS}, s77, v{vXS}")
    a.e("v_and_b32 v32, 127, v0")
    a.e("v_bfe_u32 v33, v0, 7, 1")
    a.e("v_lshlrev_b32 v34, 8, v33")
    a.e("v_lshl_add_u32 v34, v32, 1, v34")
    TA = 35
    a.e(f"v_mul_u32_u24 v{TA}, {TABSZ}, v33")
    a.e(f"v_lshl_add_u32 v{TA}, v32, 2, v{TA}")
    a.e(f"v_add_u32 v{TA}, {TAB0}, v{TA}")
    a.e("s_waitcnt lgkmcnt(0)")
    a.stamp(1)
    a.e("s_barrier")
    if cfg.get("qlate"):
        a.e(f"s_lshl_b32 s78, s{MQ}, 11")
        a.e("v_subrev_u32 v116, 8192, v7")
        a.e(f"s_add_u32 m0, s78, {QT}")
        a.e("s_nop 0")
        a.e("global_load_lds_dwordx4 v116, s[16:17]")
        a.e(f"s_add_u32 m0, s78, {QT + 1024}")
        a.e("s_nop 0")
        a.e("global_load_lds_dwordx4 v7, s[16:17]")
    PR = 66
    for i in range(6): tp = a.e(f"ds_read_u16_d16_hi v{PR+i}, v34 offset:{PAR + 512*i}")
    Are, Aim, Bre, Bim, Cre, Cim = [PR + i for i in range(6)]
    DT, RHO, PHI = 72, 73, 74
    C = 76
    a.e("v_bfe_u32 v75, v0, 7, 1")
    a.e("v_lshlrev_b32 v75, 4, v75")
    a.e(f"v_lshrrev_b32 v{DT}, v75, s76") if False else None
    a.e(f"v_mov_b32 v{DT}, s76")
    a.e(f"v_lshrrev_b32 v{DT}, v75, v{DT}")
    a.e(f"v_lshlrev_b32 v{DT}, 16, v{DT}")
    a.e(f"v_mul_f32 v{DT}, 0x{LOG2E:08x}, v{DT}")
    a.e(f"v_exp_f32 v{DT}, v{DT}")
    a.e(f"v_cvt_pk_bf16_f32 v{DT}, 0, v{DT}")
    a.wait_ds(tp)
    a.e(f"v_mul_f32 v{RHO}, v{DT}, v{Are}")
    a.e(f"v_mul_f32 v{PHI}, v{DT}, v{Aim}")
    a.e(f"v_mul_f32 v{RHO}, 0x{LOG2E:08x}, v{RHO}")
    a.e(f"v_mul_f32 v{PHI}, 0.15915494, v{PHI}")
    a.e(f"v_mul_f32 v{Bre}, v{DT}, v{Bre}")
    a.e(f"v_mul_f32 v{Bim}, v{DT}, v{Bim}")
    a.e(f"v_mul_f32 v{C}, v{Cre}, v{Bre}")
    a.e(f"v_mul_f32 v{C+1}, v{Cre}, v{Bim}")
    a.e(f"v_fma_f32 v{C}, -v{Cim}, v{Bim}, v{C}")
    a.e(f"v_fma_f32 v{C+1}, v{Cim}, v{Bre}, v{C+1}")
    Z4, Z128, S3, Z8, W = 80, 84, 86, 88, 90
    TMP = [100, 102, 104, 106, 108, 110]
    PT = [112, 113, 114, 115]
    pw = [(Z4, 4), (Z128, 128), (S3, 1024)]
    for i, (dst, m) in enumerate(pw):
        a.e(f"v_mul_f32 v{TMP[0]+i}, 0x{fbits(m):08x}, v{RHO}")
        a.e(f"v_mul_f32 v{TMP[3]+i}, 0x{fbits(m):08x}, v{PHI}")
    for i, (dst, m) in enumerate(pw):
        a.e(f"v_exp_f32 v{TMP[0]+i}, v{TMP[0]+i}")
        a.e(f"v_fract_f32 v{TMP[3]+i}, v{TMP[3]+i}")
    for i, (dst, m) in enumerate(pw):
        a.e(f"v_cos_f32 v{dst}, v{TMP[3]+i}")
        a.e(f"v_sin_f32 v{dst+1}, v{TMP[3]+i}")
    for i, (dst, m) in enumerate(pw):
        a.e(f"v_mul_f32 v{dst}, v{TMP[0]+i}, v{dst}")
        a.e(f"v_mul_f32 v{dst+1}, v{TMP[0]+i}, v{dst+1}")
    pti2 = [0]
    def putx(entry, pair, neg):
        tmp = PT[pti2[0] % 4]; pti2[0] += 1
        a.e(f"v_cvt_pk_bf16_f32 v{tmp}, v{pair}, {'-' if neg else ''}v{pair+1}")
        a.e(f"ds_write_b32 v{TA}, v{tmp} offset:{entry*ENT}")
    cmul(a, Z8, Z4, Z4, TMP[0])
    cmul(a, S3, S3, C, TMP[1])
    W1 = 92
    a.e(f"v_mov_b32 v{W}, 1.0"); a.e(f"v_mov_b32 v{W+1}, 0")
    a.e(f"v_mov_b32 v{W1}, v{Z4}"); a.e(f"v_mov_b32 v{W1+1}, v{Z4+1}")
    putx(0, W, False); putx(1, W1, False); putx(24 + 32, S3, True)
    for st in range(1, 16):
        cmul(a, W, W, Z8, TMP[0])
        if st <= 7: cmul(a, W1, W1, Z8, TMP[2])
        if st <= 8: cmul(a, S3, S3, Z128, TMP[1])
        putx(2 * st if st < 8 else 16 + (st - 8), W, False)
        if st <= 7: putx(2 * st + 1, W1, False)
        if st <= 8: putx(24 + 32 + st, S3, True)
    a.e("s_waitcnt vmcnt(2) lgkmcnt(0)")
    a.ds_done = a.ds_issued
    a.stamp(2)
    a.e("s_barrier")
    if cfg.get("pretouch", True):
        a.e("s_cmp_eq_u32 s3, 6")
        a.e("s_cbranch_scc0 L_NOPT")
        a.e("s_lshl_b32 s77, s4, 18")
        a.e("s_add_u32 s77, s77, 3968")
        a.e("s_lshl_b32 s78, s5, 7")
        a.e("s_sub_u32 s77, s77, s78")
        a.e("v_lshlrev_b32 v116, 12, v2")
        a.e("v_add_u32 v116, s77, v116")
        a.e(f"s_mov_b32 s78, {WS_XKV}")
        a.e("buffer_load_dword v30, v116, s[60:63], 0 offen sc1")
        a.e("buffer_load_dword v30, v116, s[60:63], s78 offen sc1")
        a.label("L_NOPT")
    KR, SK, MK, PA, PB, XX = 32, 52, 68, 100, 108, 52
    if cfg.get("kvprio", 0): a.e(f"s_setprio {cfg['kvprio']}")
    for i in range(5): a.e(f"ds_read_b128 v[{KR+4*i}:{KR+4*i+3}], v{vRC} offset:{KT + (5+i)*128}")
    for i in range(4): tsk = a.e(f"ds_read_b128 v[{SK+4*i}:{SK+4*i+3}], v{vSKA} offset:{SKT + 16*i}")
    a.e("s_cmp_eq_u32 s8, 0")
    a.e("s_cselect_b32 s77, s100, s101")
    a.e("s_lshl_b32 s78, s9, 4")
    a.e("s_lshr_b32 s77, s77, s78")
    a.e("s_lshl_b32 s77, s77, 16")
    a.e(f"v_mov_b32 v{DF}, s77")
    a.wait_ds(tsk)
    chains = [(m, ci) for m in range(4) for ci in range(2)]
    for tau in range(4):
        for idx, (m, ci) in enumerate(chains):
            cch = 2 * m + ci; src = SK + 2 * cch + (tau >> 1); dst = MK + 8 * tau + idx
            if ci == 0:
                if tau & 1: a.e(f"v_lshrrev_b32 v{dst}, 16, v{src}")
                else: a.e(f"v_and_b32 v{dst}, v{MLO}, v{src}")
            else:
                if tau & 1: a.e(f"v_and_b32 v{dst}, v{MHI}, v{src}")
                else: a.e(f"v_lshlrev_b32 v{dst}, 16, v{src}")
    for row in range(2):
        def prod(dst, tau):
            for idx, (m, ci) in enumerate(chains):
                a.e(f"v_dot2_f32_bf16 v{dst+idx}, v{KR+4*(3-tau+row)+m}, v{MK+8*tau+idx}, 0")
        prod(PA, 3)
        for tau in (2, 1, 0):
            prod(PB, tau)
            for idx in range(8): a.e(f"v_cvt_pk_bf16_f32 v{XX+idx}, v{PA+idx}, v{PB+idx}")
            for idx in range(8): a.e(f"v_dot2_f32_bf16 v{PA+idx}, v{XX+idx}, v{ONES}, 0")
        Vr = VR + 4 * row
        for m in range(4):
            a.e(f"v_and_b32 v{XX+2*m}, v{MLO}, v{Vr+m}")
            a.e(f"v_and_b32 v{XX+2*m+1}, v{MHI}, v{Vr+m}")
        for m in range(4): a.e(f"v_cvt_pk_bf16_f32 v{PB+m}, v{PA+2*m}, v{PA+2*m+1}")
        for m in range(4):
            a.e(f"v_dot2_f32_bf16 v{PA+2*m}, v{PB+m}, v{XX+2*m}, 0")
            a.e(f"v_dot2_f32_bf16 v{PA+2*m+1}, v{PB+m}, v{XX+2*m+1}, 0")
        KVR = 116
        for m in range(4): a.e(f"v_cvt_pk_bf16_f32 v{KVR+m}, v{PA+2*m}, v{PA+2*m+1}")
        a.e(f"ds_write_b128 v{vRC}, v[{KVR}:{KVR+3}] offset:{KVT + 128*row}")
    if cfg.get("pretouch", True):
        a.e("s_cmp_eq_u32 s3, 6")
        a.e("s_cbranch_scc0 L_XW1")
        a.e("s_waitcnt vmcnt(2) lgkmcnt(0)")
        a.e("s_branch L_XW2")
        a.label("L_XW1")
    a.e("s_waitcnt vmcnt(0) lgkmcnt(0)")
    a.label("L_XW2")
    a.ds_done = a.ds_issued
    a.stamp(3)
    if cfg.get("kvprio", 0): a.e("s_setprio 0")
    a.e("s_barrier")
    XO = 32
    def tr_and_store(sc, base_q, base_kv):
        toks = []
        for ai, T in enumerate((KVT, QT)):
            for blk in range(2):
                r = XO + 8 * ai + 4 * blk
                a.e(f"ds_read_b64_tr_b16 v[{r}:{r+1}], v{vTR} offset:{T + 4096*blk + 512}")
                toks.append(a.e(f"ds_read_b64_tr_b16 v[{r+2}:{r+3}], v{vTR} offset:{T + 4096*blk}"))
        a.e(f"s_mov_b32 s77, {base_kv}")
        a.e(f"s_mov_b32 s78, {base_q}")
        for ai in range(2):
            for blk in range(2):
                r = XO + 8 * ai + 4 * blk
                a.wait_ds(toks[2 * ai + blk])
                a.e(f"buffer_store_dwordx4 v[{r}:{r+3}], v{vXS}, s[60:63], s{77+ai} offen offset:{64*(1-blk)}{sc}")
    tr_and_store("", WS_XQ, WS_XKV)
    a.e(f"v_mov_b32 v101, {EPL}")
    tep = a.e("ds_read_b32 v120, v101")
    a.e("s_lshl_b32 s77, s4, 5")
    a.e("s_add_u32 s77, s77, s5")
    a.e("s_lshl_b32 s77, s77, 3")
    a.e(f"s_add_u32 s78, s77, {WS_LF}")
    a.e("v_mov_b32 v124, s78")
    a.wait_ds(tep)
    a.e(f"v_xor_b32 v121, 0x{FLAGC:08x}, v120")
    a.e("v_add_u32 v121, s97, v121") if not cfg.get("force_fb") else a.e("v_add_u32 v121, s2, v121")
    if not cfg.get("alate"):
        a.e("s_cmp_eq_u32 s8, 0")
        a.e("s_cbranch_scc0 L_XNOAL")
        aloads()
        a.label("L_XNOAL")
    a.e("s_waitcnt vmcnt(0)")
    a.stamp(4)
    a.e("s_barrier")
    a.e("s_cmp_eq_u32 s3, 7")
    a.e("s_cbranch_scc0 L_JOIN")
    a.e("s_mov_b64 exec, 1")
    a.e("buffer_store_dwordx2 v[120:121], v124, s[60:63], 0 offen")
    a.e("s_mov_b64 exec, -1")
    a.e("s_branch L_JOIN")
    a.label("L_KPATH")
    a.e("v_mov_b32 v5, 0"); a.e("v_mov_b32 v6, -1")
    a.e("v_and_b32 v32, 127, v0")
    a.e("v_bfe_u32 v33, v0, 7, 1")
    a.e("v_lshlrev_b32 v34, 8, v33")
    a.e("v_lshl_add_u32 v34, v32, 1, v34")
    TA = 35
    a.e(f"v_mul_u32_u24 v{TA}, {TABSZ}, v33")
    a.e(f"v_lshl_add_u32 v{TA}, v32, 2, v{TA}")
    a.e(f"v_add_u32 v{TA}, {TAB0}, v{TA}")
    XA = 36
    a.e("v_and_b32 v45, 255, v0")
    a.e("v_lshlrev_b32 v45, 3, v45")
    for k in range(5):
        a.e(f"v_add_u32 v46, {2*k}, v45")
        a.e(f"v_add_u32 v47, {2*k+1}, v45")
        a.e("v_cvt_f32_u32 v46, v46")
        a.e("v_cvt_f32_u32 v47, v47")
        a.e("v_cvt_pk_bf16_f32 v46, v46, v47")
        a.e(f"v_and_b32 v47, v{MHI}, v46")
        a.e("v_lshlrev_b32 v46, 16, v46")
        a.e("v_cvt_u32_f32 v46, v46")
        a.e(f"v_lshlrev_b32 v{XA+2*k}, 1, v46")
        a.e(f"v_add_u32 v{XA+2*k}, {F0}, v{XA+2*k}")
        if k < 4:
            a.e("v_cvt_u32_f32 v47, v47")
            a.e(f"v_lshlrev_b32 v{XA+2*k+1}, 1, v47")
            a.e(f"v_add_u32 v{XA+2*k+1}, {F0}, v{XA+2*k+1}")
    vKW = 31
    a.e(f"v_lshlrev_b32 v{vKW}, 1, v45")
    a.e(f"v_add_u32 v{vKW}, {KC0+32}, v{vKW}")
    vSS = 46
    a.e(f"v_lshlrev_b32 v{vSS}, 1, v45")
    a.e(f"v_add_u32 v{vSS}, s13, v{vSS}")
    a.e("s_cmp_eq_u32 s3, 3")
    a.e("s_cbranch_scc0 L_KW1")
    a.e(f"s_waitcnt vmcnt({1 if GL else 4}) lgkmcnt(0)")
    a.e("s_branch L_KW2")
    a.label("L_KW1")
    a.e(f"s_waitcnt vmcnt({0 if GL else 3}) lgkmcnt(0)")
    a.label("L_KW2")
    a.stamp(1)
    a.e("s_barrier")
    T0a, T1a, T0b, T1b = 48, 52, 56, 60
    if GL:
        a.e(f"global_load_dwordx4 v[{GQ0}:{GQ0+3}], v1, s[16:17]")
        a.e(f"global_load_dwordx4 v[{GQ1}:{GQ1+3}], v1, s[16:17] offset:1024")
        a.e(f"v_lshlrev_b32 v66, 4, v2")
        a.e(f"global_load_dwordx4 v[{GW}:{GW+3}], v66, s[46:47]")
    TLATE = cfg.get("tlate", False)
    if not TLATE:
        a.e(f"buffer_load_dwordx4 v[{T0a}:{T0a+3}], v{vSS}, s[68:71], 0 offen")
        a.e(f"buffer_load_dwordx4 v[{T1a}:{T1a+3}], v{vSS}, s[68:71], 0 offen offset:4")
        a.e("s_mov_b32 s77, 4096")
        a.e(f"buffer_load_dwordx4 v[{T0b}:{T0b+3}], v{vSS}, s[68:71], s77 offen")
        a.e(f"buffer_load_dwordx4 v[{T1b}:{T1b+3}], v{vSS}, s[68:71], s77 offen offset:4")
    PR = 66
    for i in range(6): tp = a.e(f"ds_read_u16_d16_hi v{PR+i}, v34 offset:{PAR + 512*i}")
    Are, Aim, Bre, Bim, Cre, Cim = [PR + i for i in range(6)]
    DT, RHO, PHI = 72, 73, 74
    C = 76
    a.e("v_bfe_u32 v75, v0, 7, 1")
    a.e("v_lshlrev_b32 v75, 4, v75")
    a.e(f"v_lshrrev_b32 v{DT}, v75, s76") if False else None
    a.e(f"v_mov_b32 v{DT}, s76")
    a.e(f"v_lshrrev_b32 v{DT}, v75, v{DT}")
    a.e(f"v_lshlrev_b32 v{DT}, 16, v{DT}")
    a.e(f"v_mul_f32 v{DT}, 0x{LOG2E:08x}, v{DT}")
    a.e(f"v_exp_f32 v{DT}, v{DT}")
    a.e(f"v_cvt_pk_bf16_f32 v{DT}, 0, v{DT}")
    a.wait_ds(tp)
    a.e(f"v_mul_f32 v{RHO}, v{DT}, v{Are}")
    a.e(f"v_mul_f32 v{PHI}, v{DT}, v{Aim}")
    a.e(f"v_mul_f32 v{RHO}, 0x{LOG2E:08x}, v{RHO}")
    a.e(f"v_mul_f32 v{PHI}, 0.15915494, v{PHI}")
    a.e(f"v_mul_f32 v{Bre}, v{DT}, v{Bre}")
    a.e(f"v_mul_f32 v{Bim}, v{DT}, v{Bim}")
    a.e(f"v_mul_f32 v{C}, v{Cre}, v{Bre}")
    a.e(f"v_mul_f32 v{C+1}, v{Cre}, v{Bim}")
    a.e(f"v_fma_f32 v{C}, -v{Cim}, v{Bim}, v{C}")
    a.e(f"v_fma_f32 v{C+1}, v{Cim}, v{Bre}, v{C+1}")
    Z1, Z64 = 78, 82
    VV = [92, 94, 96, 98]
    TMP = [112, 114, 116, 118, 120, 122]
    PT = [124, 125, 126, 127]
    pw = [(Z1, 1), (Z64, 64)]
    for i, (dst, m) in enumerate(pw):
        a.e(f"v_mul_f32 v{TMP[0]+i}, 0x{fbits(m):08x}, v{RHO}")
        a.e(f"v_mul_f32 v{TMP[3]+i}, 0x{fbits(m):08x}, v{PHI}")
    for i, (dst, m) in enumerate(pw):
        a.e(f"v_exp_f32 v{TMP[0]+i}, v{TMP[0]+i}")
        a.e(f"v_fract_f32 v{TMP[3]+i}, v{TMP[3]+i}")
    for i, (dst, m) in enumerate(pw):
        a.e(f"v_cos_f32 v{dst}, v{TMP[3]+i}")
        a.e(f"v_sin_f32 v{dst+1}, v{TMP[3]+i}")
    for i, (dst, m) in enumerate(pw):
        a.e(f"v_mul_f32 v{dst}, v{TMP[0]+i}, v{dst}")
        a.e(f"v_mul_f32 v{dst+1}, v{TMP[0]+i}, v{dst+1}")
    pti = [0]
    def put(entry, pair, neg):
        tmp = PT[pti[0] % 4]; pti[0] += 1
        a.e(f"v_cvt_pk_bf16_f32 v{tmp}, v{pair}, {'-' if neg else ''}v{pair+1}")
        a.e(f"ds_write_b32 v{TA}, v{tmp} offset:{entry*ENT}")
    a.e(f"v_mov_b32 v{VV[0]}, v{C}"); a.e(f"v_mov_b32 v{VV[0]+1}, v{C+1}")
    cmul(a, VV[1], VV[0], Z1, TMP[2])
    cmul(a, VV[2], VV[1], Z1, TMP[2])
    cmul(a, VV[3], VV[2], Z1, TMP[2])
    for i in range(16):
        ps = [0, 1, 2, 3] if i < 4 else ([0, 2] if i < 8 else [0])
        if i > 0:
            for p in ps: cmul(a, VV[p], VV[p], Z64, TMP[2 + p])
        for p in ps:
            if i < 4: ent = 24 + 4 * i + p
            elif i < 8: ent = 24 + 16 + 2 * (i - 4) + p // 2
            else: ent = 24 + 16 + i
            put(ent, VV[p], True)
    a.e("s_waitcnt vmcnt(0)") if TLATE else a.e("s_waitcnt vmcnt(4)")
    T = 66
    for m in range(4):
        a.e(f"v_and_b32 v{T+2*m}, v{MLO}, v{GW+m}")
        a.e(f"v_and_b32 v{T+2*m+1}, v{MHI}, v{GW+m}")
    GA = [90, 91]
    for ri, GQ in enumerate((GQ0, GQ1)):
        U = 74 + 8 * ri
        for m in range(4):
            a.e(f"v_dot2_f32_bf16 v{U+2*m}, v{GQ+m}, v{T+2*m}, 0")
            a.e(f"v_dot2_f32_bf16 v{U+2*m+1}, v{GQ+m}, v{T+2*m+1}, 0")
    for ri in range(2):
        U = 74 + 8 * ri
        for m in range(4): a.e(f"v_cvt_pk_bf16_f32 v{92+4*ri+m}, v{U+2*m}, v{U+2*m+1}")
    for ri in range(2):
        U = 74 + 8 * ri
        for m in range(4):
            a.e(f"v_lshlrev_b32 v{U+2*m}, 16, v{92+4*ri+m}")
            a.e(f"v_and_b32 v{U+2*m+1}, v{MHI}, v{92+4*ri+m}")
    for ri in range(2):
        U = 74 + 8 * ri
        for m in range(4): a.e(f"v_add_f32 v{U+2*m}, v{U+2*m}, v{U+2*m+1}")
    for ri in range(2):
        U = 74 + 8 * ri
        a.e(f"v_add_f32 v{U}, v{U}, v{U+2}")
        a.e(f"v_add_f32 v{U+4}, v{U+4}, v{U+6}")
    for ri in range(2):
        U = 74 + 8 * ri
        a.e(f"v_add_f32 v{GA[ri]}, v{U}, v{U+4}")
    for sh in (1, 2, 4, 8):
        for ri in range(2): a.e(f"v_add_f32_dpp v{GA[ri]}, v{GA[ri]}, v{GA[ri]} row_shr:{sh} row_mask:0xf bank_mask:0xf bound_ctrl:0")
    for ri in range(2): a.e(f"v_add_f32_dpp v{GA[ri]}, v{GA[ri]}, v{GA[ri]} row_bcast:15 row_mask:0xa bank_mask:0xf")
    for ri in range(2): a.e(f"v_add_f32_dpp v{GA[ri]}, v{GA[ri]}, v{GA[ri]} row_bcast:31 row_mask:0xc bank_mask:0xf")
    for ri in range(2): a.e(f"v_cvt_pk_bf16_f32 v{GA[ri]}, 0, v{GA[ri]}")
    for ri in range(2): a.e(f"v_mul_f32 v{GA[ri]}, 0x{LOG2E ^ 0x80000000:08x}, v{GA[ri]}")
    for ri in range(2): a.e(f"v_exp_f32 v{GA[ri]}, v{GA[ri]}")
    for ri in range(2): a.e(f"v_add_f32 v{GA[ri]}, 1.0, v{GA[ri]}")
    for ri in range(2): a.e(f"v_rcp_f32 v{GA[ri]}, v{GA[ri]}")
    for ri in range(2): a.e(f"v_cvt_pk_bf16_f32 v{GA[ri]}, 0, v{GA[ri]}")
    for ri in range(2): a.e(f"v_sub_f32 v{92+ri}, 1.0, v{GA[ri]}")
    for ri in range(2): a.e(f"v_cvt_pk_bf16_f32 v{94+ri}, v{GA[ri]}, v{92+ri}")
    a.e("s_lshl_b32 s77, s12, 2")
    a.e(f"s_add_u32 s77, s77, {WS_GP}")
    a.e("v_mov_b32 v96, s77")
    a.e("s_mov_b32 exec_lo, 0")
    a.e("s_mov_b32 exec_hi, 0x80000000")
    a.e("buffer_store_dwordx2 v[94:95], v96, s[60:63], 0 offen sc1")
    a.e("s_mov_b64 exec, -1")
    a.wait_ds_all()
    a.stamp(2)
    a.e("s_barrier")
    if TLATE:
        a.e(f"buffer_load_dwordx4 v[{T0a}:{T0a+3}], v{vSS}, s[68:71], 0 offen")
        a.e(f"buffer_load_dwordx4 v[{T1a}:{T1a+3}], v{vSS}, s[68:71], 0 offen offset:4")
        a.e("s_mov_b32 s77, 4096")
        a.e(f"buffer_load_dwordx4 v[{T0b}:{T0b+3}], v{vSS}, s[68:71], s77 offen")
        a.e(f"buffer_load_dwordx4 v[{T1b}:{T1b+3}], v{vSS}, s[68:71], s77 offen offset:4")
    a.e(f"s_and_b32 s77, s{MQ}, 1")
    a.e(f"s_mul_i32 s78, s77, {FSZ}")
    a.e(f"s_add_u32 s79, s78, {F0}")
    a.e(f"s_mul_i32 s77, s77, {TABSZ}")
    a.e(f"s_add_u32 s77, s77, {TAB0}")
    a.e(f"v_mul_u32_u24 v66, {ENT}, v{J}")
    a.e(f"v_lshl_add_u32 v66, v{Q4}, 4, v66")
    a.e("v_add_u32 v66, s77, v66")
    a.e(f"s_cmp_gt_u32 s{MQ}, 1")
    a.e("s_cbranch_scc1 L_JOB2")
    toks = []
    for ks in range(8):
        a.e(f"ds_read_b128 a[{4*ks}:{4*ks+3}], v66 offset:{64*ks}")
        a.e(f"ds_read_b128 a[{32+4*ks}:{32+4*ks+3}], v66 offset:{24*ENT + 64*ks}")
        toks.append(a.e(f"ds_read_b128 a[{64+4*ks}:{64+4*ks+3}], v66 offset:{40*ENT + 64*ks}"))
    a.e(f"v_lshlrev_b32 v68, 6, v{Q4}")
    a.e(f"v_lshl_add_u32 v68, v{J}, 2, v68")
    a.e("v_lshlrev_b32 v68, 1, v68")
    a.e("v_add_u32 v68, s79, v68")
    a.e(f"v_cmp_gt_u32 vcc, 2, v{Q4}")
    a.e(f"v_lshlrev_b32 v74, 7, v{Q4}")
    a.e("v_add_u32 v74, 256, v74")
    a.e(f"v_lshlrev_b32 v75, 8, v{Q4}")
    a.e(f"v_cndmask_b32 v70, v75, v74, vcc")
    a.e(f"v_lshl_add_u32 v70, v{J}, 2, v70")
    for e, (o1, o2) in enumerate(((2, 64), (64, 128), (66, 192)), start=1):
        a.e(f"v_mov_b32 v74, {o2}")
        a.e(f"v_mov_b32 v75, {o1}")
        a.e(f"v_cndmask_b32 v74, v74, v75, vcc")
        a.e(f"v_add_u32 v{70+e}, v70, v74")
    for e in range(4):
        a.e(f"v_lshlrev_b32 v{70+e}, 1, v{70+e}")
        a.e(f"v_add_u32 v{70+e}, s79, v{70+e}")
    for ks in range(8):
        a.wait_ds(toks[ks])
        s0 = "0" if ks == 0 else "v[76:79]"; s1 = "0" if ks == 0 else "v[80:83]"
        a.e(f"v_mfma_f32_16x16x32_bf16 v[76:79], a[{32+4*ks}:{32+4*ks+3}], a[{4*ks}:{4*ks+3}], {s0}")
        a.e(f"v_mfma_f32_16x16x32_bf16 v[80:83], a[{64+4*ks}:{64+4*ks+3}], a[{4*ks}:{4*ks+3}], {s1}")
    a.e("v_cvt_pk_bf16_f32 v84, v76, v77")
    a.e("v_cvt_pk_bf16_f32 v85, v78, v79")
    a.e("ds_write_b64 v68, v[84:85]")
    a.e("v_cvt_pk_bf16_f32 v86, v80, v81")
    a.e("v_cvt_pk_bf16_f32 v87, v82, v83")
    a.e("ds_write_b16 v70, v86")
    a.e("ds_write_b16_d16_hi v71, v86")
    a.e("ds_write_b16 v72, v87")
    a.e("ds_write_b16_d16_hi v73, v87")
    a.e("s_branch L_JOBD")
    a.label("L_JOB2")
    a.ds_done = a.ds_issued
    a.e(f"v_lshlrev_b32 v67, 1, v{J}")
    a.e(f"v_add_u32 v68, 8, v{J}")
    a.e(f"v_cmp_gt_u32 vcc, 8, v{J}")
    a.e("v_cndmask_b32 v67, v68, v67, vcc")
    a.e(f"v_mul_u32_u24 v67, {ENT}, v67")
    a.e(f"v_lshl_add_u32 v67, v{Q4}, 4, v67")
    a.e("v_add_u32 v67, s77, v67")
    toks = []
    for ks in range(8):
        a.e(f"ds_read_b128 a[{4*ks}:{4*ks+3}], v67 offset:{64*ks}")
        toks.append(a.e(f"ds_read_b128 a[{32+4*ks}:{32+4*ks+3}], v66 offset:{56*ENT + 64*ks}"))
    a.e(f"v_lshlrev_b32 v70, 9, v{Q4}")
    a.e(f"v_lshl_add_u32 v70, v{J}, 3, v70")
    a.e("v_add_u32 v70, 1024, v70")
    a.e("v_lshlrev_b32 v70, 1, v70")
    a.e("v_add_u32 v70, s79, v70")
    for ks in range(8):
        a.wait_ds(toks[ks])
        s0 = "0" if ks == 0 else "v[76:79]"
        a.e(f"v_mfma_f32_16x16x32_bf16 v[76:79], a[{32+4*ks}:{32+4*ks+3}], a[{4*ks}:{4*ks+3}], {s0}")
    a.e("v_cvt_pk_bf16_f32 v84, v76, v77")
    a.e("v_cvt_pk_bf16_f32 v85, v78, v79")
    a.e("ds_write_b16 v70, v84")
    a.e("ds_write_b16_d16_hi v70, v84 offset:256")
    a.e("ds_write_b16 v70, v85 offset:512")
    a.e("ds_write_b16_d16_hi v70, v85 offset:768")
    a.label("L_JOBD")
    a.e("s_waitcnt vmcnt(0)")
    for chn, (T0, T1) in enumerate(((T0a, T1a), (T0b, T1b))):
        O = 104 + 4 * chn
        for jx in range(4): a.e(f"v_alignbit_b32 v{O+jx}, v{T1+jx}, v{T0+jx}, 16")
        a.e(f"ds_write_b128 v{vKW}, v[{T0}:{T0+3}] offset:{KCS*2*chn}")
        a.e(f"ds_write_b128 v{vKW}, v[{O}:{O+3}] offset:{KCS*2*chn+4160}")
    def pads(items, lab):
        a.e("s_cmp_eq_u32 s3, 0")
        a.e(f"s_cbranch_scc0 {lab}")
        a.e("v_lshlrev_b32 v112, 2, v2")
        a.e(f"v_add_u32 v112, {KC0}, v112")
        a.e("v_mov_b32 v113, 0")
        a.e("v_cmp_eq_u32 vcc, 7, v2")
        for ccx, reg in items:
            a.e(f"v_readfirstlane_b32 s77, v{reg}")
            a.e("s_nop 3")
            a.e("s_lshl_b32 s77, s77, 16")
            a.e("v_mov_b32 v114, s77")
            a.e("v_cndmask_b32 v114, 0, v114, vcc")
            a.e("s_mov_b64 exec, 0xff")
            a.e(f"ds_write_b32 v112, v113 offset:{KCS*ccx}")
            a.e(f"ds_write_b32 v112, v114 offset:{KCS*ccx+4160}")
            a.e("s_mov_b64 exec, -1")
        a.label(lab)
    pads(((0, T0a), (2, T0b)), "L_NOPADA")
    a.e("s_cmp_eq_u32 s3, 3")
    a.e("s_cbranch_scc0 L_NOEPW")
    a.e(f"v_readfirstlane_b32 s72, v{EPV}")
    a.e("s_add_u32 s72, s72, 1")
    a.e("v_mov_b32 v84, s72")
    a.e(f"v_mov_b32 v85, {EPL}")
    a.e("ds_write_b32 v85, v84")
    a.label("L_NOEPW")
    a.wait_ds_all()
    a.stamp(3)
    a.e("s_barrier")
    a.e("s_cmp_eq_u32 s3, 2")
    a.e("s_cbranch_scc0 L_NOGST")
    a.e(f"v_mov_b32 v67, {EPL}")
    a.e("ds_read_b32 v66, v67")
    a.e("s_lshl_b32 s77, s2, 3")
    a.e(f"s_add_u32 s77, s77, {WS_GF1}")
    a.e("v_mov_b32 v68, s77")
    a.e("s_waitcnt lgkmcnt(0)")
    a.e(f"v_xor_b32 v67, 0x{FLAGC:08x}, v66")
    a.e("s_mov_b64 exec, 1")
    a.e("buffer_store_dwordx2 v[66:67], v68, s[60:63], 0 offen sc1")
    a.e("s_mov_b64 exec, -1")
    a.label("L_NOGST")
    a.ds_done = a.ds_issued
    for chn in range(2):
        EL = 66 + 10 * chn
        for e in range(9): te = a.e(f"ds_read_u16 v{EL+e}, v{XA+e} offset:{FSZ*chn}")
    a.wait_ds(te)
    for chn in range(2):
        EL = 66 + 10 * chn; EE = 88 + 8 * chn; OO = EE + 4
        for k in range(4):
            a.e(f"v_lshl_or_b32 v{EE+k}, v{EL+2*k+1}, 16, v{EL+2*k}")
            a.e(f"v_lshl_or_b32 v{OO+k}, v{EL+2*k+2}, 16, v{EL+2*k+1}")
        a.e(f"ds_write_b128 v{vKW}, v[{EE}:{EE+3}] offset:{KCS*(2*chn+1)}")
        a.e(f"ds_write_b128 v{vKW}, v[{OO}:{OO+3}] offset:{KCS*(2*chn+1)+4160}")
    pads(((1, 66), (3, 76)), "L_NOPADB")
    if not cfg.get("alate"):
        a.e("s_cmp_eq_u32 s8, 0")
        a.e("s_cbranch_scc0 L_KNOAL")
        aloads()
        a.e("s_waitcnt lgkmcnt(15)")
        a.e("s_branch L_KAL2")
        a.label("L_KNOAL")
    a.e("s_waitcnt lgkmcnt(0)")
    a.label("L_KAL2")
    a.e("s_cmp_eq_u32 s8, 0")
    a.e("s_cselect_b32 s77, s100, s101")
    a.e("s_lshl_b32 s78, s9, 4")
    a.e("s_lshr_b32 s77, s77, s78")
    a.e("s_lshl_b32 s77, s77, 16")
    a.e(f"v_mov_b32 v{DF}, s77")
    a.stamp(4)
    a.e("s_barrier")
    a.label("L_JOIN")
    if cfg.get("xprio", 0): a.e("s_setprio 0")
    a.ds_done = a.ds_issued; a.vm_done = a.vm_issued
    a.e(f"v_mov_b32 v101, {EPL}")
    a.e("ds_read_b32 v100, v101")
    a.e("v_mov_b32 v104, 0"); a.e("v_mov_b32 v105, 0")
    a.e(f"ds_write_b64 v{vPAD}, v[104:105]")
    a.e("s_waitcnt lgkmcnt(0)")
    a.e("v_readfirstlane_b32 s72, v100")
    a.e("s_nop 3")
    a.e(f"s_xor_b32 s73, s72, 0x{FLAGC:08x}")
    a.e("s_add_u32 s97, s97, s73") if not cfg.get("force_fb") else a.e("s_add_u32 s97, s2, s73")
    a.e("v_lshlrev_b32 v122, 5, v2")
    a.e(f"v_add_u32 v122, {WS_GF1}, v122")
    a.e("v_and_b32 v123, 31, v2")
    a.e("v_lshlrev_b32 v123, 3, v123")
    a.e("s_lshl_b32 s77, s4, 8")
    a.e(f"s_add_u32 s77, s77, {WS_LF}")
    a.e("v_add_u32 v123, s77, v123")
    if cfg.get("alate"):
        a.e("s_cmp_eq_u32 s3, 5"); a.e("s_cbranch_scc1 L_SKIPAL")
        a.e("s_cmp_eq_u32 s3, 7"); a.e("s_cbranch_scc1 L_SKIPAL")
    else:
        a.e("s_cmp_eq_u32 s8, 0")
        a.e("s_cbranch_scc1 L_SKIPAL")
    aloads()
    a.label("L_SKIPAL")
    a.stamp(5)
    XF = cfg.get("xflag", " sc1")
    def pollG(a):
        a.e("buffer_load_dwordx4 v[112:115], v122, s[60:63], 0 offen sc1")
        a.e("buffer_load_dwordx4 v[116:119], v122, s[60:63], 0 offen offset:16 sc1")
    def checkG(a):
        for r in (112, 114, 116, 118): a.e(f"v_xor_b32 v{r}, s72, v{r}")
        for r in (113, 115, 117, 119): a.e(f"v_xor_b32 v{r}, s73, v{r}")
        a.e("v_or_b32 v112, v112, v113"); a.e("v_or_b32 v114, v114, v115"); a.e("v_or_b32 v116, v116, v117"); a.e("v_or_b32 v118, v118, v119")
        a.e("v_or_b32 v112, v112, v114"); a.e("v_or_b32 v116, v116, v118"); a.e("v_or_b32 v112, v112, v116")
    def checkL(a):
        a.e("v_xor_b32 v120, s72, v120")
        a.e("v_xor_b32 v121, s97, v121")
        a.e("v_or_b32 v120, v120, v121")
    a.e("s_cmp_eq_u32 s3, 5")
    a.e("s_cbranch_scc0 L_NOTG")
    a.e("s_mov_b32 s77, 0")
    a.label("L_GPOLL")
    pollG(a)
    a.e("s_waitcnt vmcnt(0)")
    checkG(a)
    a.e("v_cmp_ne_u32 vcc, 0, v112")
    a.e("s_add_u32 s77, s77, 1")
    a.e("s_nop 3")
    a.e("s_cmp_eq_u64 vcc, 0")
    a.e("s_cbranch_scc1 L_GOK")
    a.e("s_cmp_lt_u32 s77, 20000")
    a.e("s_cbranch_scc1 L_GPOLL")
    a.label("L_GOK")
    a.e("v_lshlrev_b32 v112, 4, v2")
    for i in range(8):
        a.e(f"s_mov_b32 m0, {GM + 1024*i}")
        a.e(f"s_mov_b32 s77, {WS_GP + 1024*i}")
        a.e("buffer_load_dwordx4 v112, s[60:63], s77 offen sc1 lds")
    a.e("s_branch L_POLLDONE")
    a.label("L_NOTG")
    a.e("s_cmp_eq_u32 s3, 7")
    a.e("s_cbranch_scc0 L_POLLDONE")
    a.e("s_mov_b32 s77, 0")
    a.label("L_POLL")
    a.e("buffer_load_dwordx2 v[120:121], v123, s[60:63], 0 offen sc1")
    a.e("s_waitcnt vmcnt(0)")
    checkL(a)
    a.e("v_cmp_ne_u32 vcc, 0, v120")
    a.e("s_add_u32 s77, s77, 1")
    a.e("s_mov_b32 s98, 1")
    a.e("s_nop 2")
    a.e("s_cmp_eq_u64 vcc, 0")
    a.e("s_cbranch_scc1 L_POLLOUT")
    a.e(f"s_cmp_lt_u32 s77, {cfg.get('NA', 12)}")
    a.e("s_cbranch_scc1 L_POLL")
    a.e("s_mov_b32 s98, 2")
    a.label("L_POLLOUT")
    if cfg.get("dbgatt"): a.e("s_mov_b32 s90, s77")
    a.e("v_mov_b32 v120, s98")
    a.e(f"v_mov_b32 v121, {RES}")
    a.e("ds_write_b32 v121, v120")
    a.label("L_POLLDONE")
    a.wait_ds_all()
    a.vm_done = a.vm_issued
    a.stamp(8)
    a.e("s_barrier")
    a.e(f"v_mov_b32 v121, {RES}")
    a.e("ds_read_b32 v120, v121")
    a.e("s_mov_b32 s99, 0")
    a.e("s_waitcnt lgkmcnt(0)")
    a.e("v_readfirstlane_b32 s98, v120")
    a.e("s_nop 3")
    a.e("s_cmp_eq_u32 s98, 1")
    a.e("s_cbranch_scc1 L_FAST")
    a.e("s_cmp_eq_u32 s7, 0")
    a.e("s_cbranch_scc1 L_FBK")
    tr_and_store(" sc1", WS_X2 + WS_XQ, WS_X2 + WS_XKV)
    a.label("L_FBK")
    a.e("s_waitcnt vmcnt(0)")
    a.e("s_barrier")
    a.e("s_cmp_eq_u32 s3, 7")
    a.e("s_cbranch_scc0 L_FB2")
    a.e("v_mov_b32 v120, s72")
    a.e("v_mov_b32 v121, s73")
    a.e("s_lshl_b32 s77, s4, 5")
    a.e("s_add_u32 s77, s77, s5")
    a.e("s_lshl_b32 s77, s77, 3")
    a.e(f"s_add_u32 s78, s77, {WS_GF2}")
    a.e("v_mov_b32 v124, s78")
    a.e("s_mov_b64 exec, 1")
    a.e("buffer_store_dwordx2 v[120:121], v124, s[60:63], 0 offen sc1")
    a.e("s_mov_b64 exec, -1")
    a.e(f"v_add_u32 v124, {WS_GF2 - WS_LF}, v123")
    a.e("s_mov_b32 s77, 0")
    a.label("L_FBPOLL")
    a.e("buffer_load_dwordx2 v[120:121], v123, s[60:63], 0 offen sc1")
    a.e("buffer_load_dwordx2 v[126:127], v124, s[60:63], 0 offen sc1")
    a.e("s_waitcnt vmcnt(0)")
    checkL(a)
    a.e("v_xor_b32 v126, s72, v126")
    a.e("v_xor_b32 v127, s73, v127")
    a.e("v_or_b32 v126, v126, v127")
    a.e("s_add_u32 s77, s77, 1")
    a.e("s_cmp_ge_u32 s77, 20000")
    a.e("s_cbranch_scc1 L_FBGIVE")
    a.e("v_cmp_ne_u32 vcc, 0, v120")
    a.e("s_mov_b32 s98, 1")
    a.e("s_nop 3")
    a.e("s_cmp_eq_u64 vcc, 0")
    a.e("s_cbranch_scc1 L_FBOUT")
    a.e("v_cmp_ne_u32 vcc, 0, v126")
    a.e("s_nop 4")
    a.e("s_cmp_eq_u64 vcc, 0")
    a.e("s_cbranch_scc0 L_FBPOLL")
    a.label("L_FBGIVE")
    a.e("s_mov_b32 s98, 2")
    a.label("L_FBOUT")
    a.e("v_mov_b32 v120, s98")
    a.e(f"v_mov_b32 v121, {RES}")
    a.e("ds_write_b32 v121, v120")
    a.e("s_waitcnt lgkmcnt(0)")
    a.label("L_FB2")
    a.e("s_barrier")
    a.e(f"v_mov_b32 v121, {RES}")
    a.e("ds_read_b32 v120, v121")
    a.e("s_waitcnt lgkmcnt(0)")
    a.e("v_readfirstlane_b32 s98, v120")
    a.e("s_nop 3")
    a.e("s_cmp_eq_u32 s98, 2")
    a.e(f"s_cselect_b32 s99, {WS_X2}, 0")
    a.label("L_FAST")
    a.ds_done = a.ds_issued; a.vm_done = a.vm_issued
    if cfg.get("alate"):
        a.e("s_cmp_eq_u32 s3, 5"); a.e("s_cbranch_scc1 L_PAL")
        a.e("s_cmp_eq_u32 s3, 7"); a.e("s_cbranch_scc0 L_PAL2")
        a.label("L_PAL")
        aloads()
        a.label("L_PAL2")
    a.e("s_cmp_eq_u32 s3, 5")
    a.e("s_cbranch_scc1 L_XDONE")
    a.e("s_cmp_gt_u32 s3, 5")
    a.e("s_cselect_b32 s78, 1, 0")
    a.e("s_sub_u32 s78, s3, s78")
    a.e("v_lshlrev_b32 v112, 4, v2")
    a.e("s_add_u32 s79, s13, s99")
    for it in range(3):
        if it == 2:
            a.e("s_cmp_gt_u32 s78, 15")
            a.e("s_cbranch_scc1 L_XW")
        a.e("s_lshr_b32 s74, s78, 2")
        a.e("s_and_b32 s75, s78, 3")
        a.e("s_lshl_b32 s75, s75, 10")
        a.e(f"s_mul_i32 s76, s74, {XRS}")
        a.e("s_add_u32 s76, s76, s75")
        a.e(f"s_add_u32 m0, s76, {XR0}")
        a.e("s_lshr_b32 s76, s74, 1")
        a.e("s_lshl_b32 s76, s76, 12")
        a.e("s_add_u32 s75, s75, s76")
        a.e("s_and_b32 s74, s74, 1")
        a.e("s_xor_b32 s74, s74, 1")
        a.e("s_lshl_b32 s74, s74, 21")
        a.e("s_add_u32 s75, s75, s74")
        a.e("s_add_u32 s75, s75, s79")
        a.e("buffer_load_dwordx4 v112, s[60:63], s75 offen sc1 lds")
        a.e("s_add_u32 s78, s78, 7")
    a.label("L_XW")
    a.stamp(9)
    a.e("s_waitcnt vmcnt(0)")
    a.label("L_XDONE")
    a.e("s_waitcnt lgkmcnt(0)")
    a.ds_done = a.ds_issued; a.vm_done = a.vm_issued
    a.stamp(13)
    a.e("s_barrier")
    a.e("s_cmp_lg_u32 s2, 0")
    a.e("s_cbranch_scc1 L_NOEP")
    a.e("s_cmp_lg_u32 s3, 7")
    a.e("s_cbranch_scc1 L_NOEP")
    a.e("v_mov_b32 v72, s72")
    a.e(f"v_mov_b32 v73, {WS_EP}")
    a.e("s_mov_b64 exec, 1")
    a.e("buffer_store_dword v72, v73, s[60:63], 0 offen")
    a.e("s_mov_b64 exec, -1")
    a.label("L_NOEP")
    a.e("s_cmp_lg_u32 s7, 0")
    a.e("s_cbranch_scc1 L_H1")
    ctx = dict(vB=vB, vX=vX, vQ=vQ, vG=vG, vPX=vPX, vGW=vGW, vCMB=vCMB, vOUT=vOUT, SQL=SQL, SQH=SQH, ONEF=ONEF, SG=SG, DF=DF, MHI=27,
               nostore=cfg.get("nostore"), noepi=cfg.get("noepi"), vA=vA, CPRE=CPRE)
    for kk in ("G1", "G2", "G3", "nobar", "novalu", "bstamp", "NB0", "NB1", "WG"):
        if kk in cfg: ctx[kk] = cfg[kk]
    if cfg.get("h0prio", 0): a.e(f"s_setprio {cfg['h0prio']}")
    main_loop(a, 0, passes, NB, LOOK, RATE, ctx)
    a.e("s_endpgm")
    a.label("L_H1")
    if cfg.get("h1prio", 0): a.e(f"s_setprio {cfg['h1prio']}")
    main_loop(a, 1, passes, NB, LOOK, RATE, ctx)
    a.label("L_END")
    a.e("s_endpgm")
    a.label("L_CODE_END")

def main_loop(a, h, passes, NB, LOOK, RATE, c):
    ACC0 = 32
    BR = 48
    NB = c.get("NB1", 16) if h == 1 else c.get("NB0", 12)
    EP = BR + 4 * NB
    assert EP + (32 if h == 0 else 8) <= 128
    MHI = c["MHI"]
    a.e(f"v_mov_b32 v{MHI}, 0xffff0000")
    def areg(cidx, rho): return 4 * (cidx * 4 + rho)
    n = len(passes)
    accof = {}
    for pi, P in enumerate(passes):
        assert len(P) <= 2
        for k, t in enumerate(P): accof[t] = ACC0 + 8 * (pi % 2) + 4 * k
    G1, G2, G3 = c.get("G1", 2), c.get("G2", 2), c.get("G3", 5)
    mf = []; loads = []; bseq = 0; pstart = []; pend = []; seenA = set(); tokA = {}
    for P in passes:
        thi = max(P)
        pstart.append(len(mf))
        for rho in range(4):
            for dl in range(thi + 1):
                users = [t for t in P if t - dl >= 0]
                if not users: continue
                for t in users:
                    cidx = t - dl
                    if cidx >= c["CPRE"] and (cidx, rho) not in seenA:
                        seenA.add((cidx, rho))
                        loads.append(dict(kind="A", c=cidx, rho=rho, need=max(0, len(mf) - c.get("ALEAD", 10))))
                loads.append(dict(kind="B", dl=dl, rho=rho, need=len(mf), b=bseq))
                for t in users: mf.append(dict(t=t, c=t - dl, rho=rho, b=bseq))
                bseq += 1
        pend.append(len(mf))
    lastuse = {}
    for i, m in enumerate(mf): lastuse[m["b"]] = i
    tokB = {}; st = dict(li=0); started = set(); side = []
    V = (lambda f: None) if c.get("novalu") else (lambda f: side.append(("v", f)))
    X = lambda f: side.append(("x", f))
    def run_side(nv):
        k = 0
        while side:
            it = side[0]
            if it[0] == "gap":
                if it[1] <= 0: side.pop(0); continue
                side[0] = ("gap", it[1] - 1)
                return
            if it[0] == "v":
                if k >= nv: return
                k += 1
            side.pop(0); it[1]()
    def flush_side():
        while side:
            if side[0][0] == "gap": side.pop(0); continue
            run_side(1000)
    def prefetch(i, limit):
        while st["li"] < len(loads):
            L = loads[st["li"]]
            if L["need"] > i + LOOK or L["need"] >= limit: break
            if L["kind"] == "A":
                r = areg(L["c"], L["rho"]); o = 128 * (L["c"] & 1) + 16 * L["rho"]; va = c["vA"][L["c"] >> 1]
                a.e(f"ds_read2_b32 a[{r}:{r+1}], v{va} offset0:{o} offset1:{o+1}")
                tokA[(L["c"], L["rho"])] = a.e(f"ds_read2_b32 a[{r+2}:{r+3}], v{va} offset0:{o+2} offset1:{o+3}")
                st["li"] += 1
                continue
            prev = L["b"] - NB
            if prev >= 0 and lastuse[prev] >= i: break
            r = BR + 4 * (L["b"] % NB)
            tokB[L["b"]] = a.e(f"ds_read_b128 v[{r}:{r+3}], v{c['vB']} offset:{64*L['rho'] + 512*(7-L['dl'])}")
            st["li"] += 1
    def emit_pass(pi, init_tok=None):
        for i in range(pstart[pi], pend[pi]):
            m = mf[i]
            prefetch(i, 10**9)
            bb = m["b"]; bw = bb
            WG = c.get("WG", 1)
            for d in range(WG - 1, 0, -1):
                if (bb + d) in tokB and (bb // WG) == ((bb + d) // WG): bw = bb + d; break
            a.wait_ds(tokB[bw])
            if (m["c"], m["rho"]) in tokA: a.wait_ds(tokA[(m["c"], m["rho"])])
            ar = areg(m["c"], m["rho"]); br = BR + 4 * (m["b"] % NB); ac = accof[m["t"]]
            if m["t"] in started: src = f"v[{ac}:{ac+3}]"
            else:
                started.add(m["t"])
                if init_tok is not None:
                    a.wait_ds(init_tok[m["t"]]); src = f"v[{ac}:{ac+3}]"
                else: src = "0"
            a.e(f"v_mfma_f32_16x16x32_bf16 v[{ac}:{ac+3}], a[{ar}:{ar+3}], v[{br}:{br+3}], {src}")
            run_side(RATE)
    bcount = [0]
    def barrier():
        if bcount[0] == 0:
            a.e("s_waitcnt vmcnt(0)")
        if c.get("bstamp"):
            a.raw(f"  s_memtime s[{56 + 0}:{57}]") if False else None
            a.e(f"s_memtime s[{16+2*bcount[0]}:{17+2*bcount[0]}]")
        if not c.get("nobar"): a.e("s_barrier")
        bcount[0] += 1
    def regs_fin(k):
        E = EP + 12 * k
        return E, E + 4, E + 8
    def q_fin_pre(P):
        assert len(P) <= 2
        XO, QM = EP + 24, EP + 26
        for k, t in enumerate(P):
            TT, UU, GG = regs_fin(k)
            tk = {}
            X(lambda t=t: a.e(f"ds_read_b64 v[{XO}:{XO+1}], v{c['vX']} offset:{512*(7-t)}"))
            X(lambda t=t: a.e(f"ds_read_b64 v[{QM}:{QM+1}], v{c['vQ']} offset:{512*(7-t)}"))
            def rg(t=t, GG=GG, tk=tk): tk[0] = a.e(f"ds_read_b128 v[{GG}:{GG+3}], v{c['vG']} offset:{1024*t}")
            X(rg)
            side.append(("gap", G3))
            X(lambda tk=tk: a.wait_ds(tk[0]))
            V(lambda TT=TT: a.e(f"v_lshlrev_b32 v{TT+3}, 16, v{XO}"))
            V(lambda TT=TT: a.e(f"v_and_b32 v{TT+2}, v{MHI}, v{XO}"))
            V(lambda TT=TT: a.e(f"v_lshlrev_b32 v{TT+1}, 16, v{XO+1}"))
            V(lambda TT=TT: a.e(f"v_and_b32 v{TT+0}, v{MHI}, v{XO+1}"))
            V(lambda UU=UU: a.e(f"v_perm_b32 v{UU+3}, v{QM}, v{c['ONEF']}, v{c['SQL']}"))
            V(lambda UU=UU: a.e(f"v_perm_b32 v{UU+2}, v{QM}, v{c['ONEF']}, v{c['SQH']}"))
            V(lambda UU=UU: a.e(f"v_perm_b32 v{UU+1}, v{QM+1}, v{c['ONEF']}, v{c['SQL']}"))
            V(lambda UU=UU: a.e(f"v_perm_b32 v{UU+0}, v{QM+1}, v{c['ONEF']}, v{c['SQH']}"))
            for e in range(4): V(lambda e=e, TT=TT: a.e(f"v_mul_f32 v{TT+e}, v{c['DF']}, v{TT+e}"))
            for e in range(4): V(lambda e=e, GG=GG: a.e(f"v_perm_b32 v{GG+e}, v{GG+e}, v{GG+e}, v{c['SG']}"))
            for e in range(4): V(lambda e=e, TT=TT: a.e(f"v_cvt_pk_bf16_f32 v{TT+e}, 0, v{TT+e}"))
    def q_fin_post(P):
        DD = EP + 28
        def stage(fn):
            for k, t in enumerate(P):
                TT, UU, GG = regs_fin(k); ac = accof[t]
                for e in range(4): V(lambda e=e, ac=ac, TT=TT, UU=UU, GG=GG: fn(e, ac, TT, UU, GG))
        stage(lambda e, ac, TT, UU, GG: a.e(f"v_cvt_pk_bf16_f32 v{ac+e}, 0, v{ac+e}"))
        stage(lambda e, ac, TT, UU, GG: a.e(f"v_add_f32 v{ac+e}, v{ac+e}, v{TT+e}"))
        stage(lambda e, ac, TT, UU, GG: a.e(f"v_cvt_pk_bf16_f32 v{ac+e}, 0, v{ac+e}"))
        stage(lambda e, ac, TT, UU, GG: a.e(f"v_mul_f32 v{ac+e}, v{ac+e}, v{UU+e}"))
        stage(lambda e, ac, TT, UU, GG: a.e(f"v_cvt_pk_bf16_f32 v{ac+e}, 0, v{ac+e}"))
        stage(lambda e, ac, TT, UU, GG: a.e(f"v_mul_f32 v{ac+e}, v{ac+e}, v{GG+e}"))
        for k, t in enumerate(P):
            ac = accof[t]
            V(lambda ac=ac, k=k: a.e(f"v_cvt_pk_bf16_f32 v{DD+2*k}, v{ac+0}, v{ac+1}"))
            V(lambda ac=ac, k=k: a.e(f"v_cvt_pk_bf16_f32 v{DD+2*k+1}, v{ac+2}, v{ac+3}"))
        for k, t in enumerate(P):
            X(lambda t=t, k=k: a.e(f"ds_write_b64 v{c['vGW']}, v[{DD+2*k}:{DD+2*k+1}] offset:{512*t}"))
    def q_combine(P):
        tkc = {}
        for k, t in enumerate(P):
            CM = [EP + 4 * k + i for i in range(4)]
            for cc2 in range(4):
                def rd(cc2=cc2, t=t, CM=CM): tkc[t] = a.e(f"ds_read_u16_d16_hi v{CM[cc2]}, v{c['vCMB']} offset:{4096*cc2+512*t}")
                X(rd)
        side.append(("gap", G3))
        for k, t in enumerate(P):
            CM = [EP + 4 * k + i for i in range(4)]
            X(lambda t=t: a.wait_ds(tkc[t]))
            V(lambda CM=CM: a.e(f"v_add_f32 v{CM[0]}, v{CM[0]}, v{CM[1]}"))
            V(lambda CM=CM: a.e(f"v_add_f32 v{CM[2]}, v{CM[2]}, v{CM[3]}"))
            X(lambda t=t: a.e(f"s_mov_b32 s77, {t*262144}"))
            V(lambda CM=CM: a.e(f"v_cvt_pk_bf16_f32 v{CM[1]}, v{CM[0]}, v{CM[2]}"))
            if not c.get("nostore"): X(lambda CM=CM: a.e(f"buffer_store_dword v{CM[1]}, v{c['vOUT']}, s[64:67], s77 offen"))
    if h == 1:
        for k in range(n):
            if k >= 2: q_combine(passes[k - 2])
            emit_pass(k)
            flush_side()
            tw = None
            for t in passes[k]:
                tw = a.e(f"ds_write_b128 v{c['vPX']}, v[{accof[t]}:{accof[t]+3}] offset:{1024*t}")
            if k + 1 < n: prefetch(pend[k], 10**9)
            a.wait_ds(tw)
            barrier()
        if n >= 2:
            q_combine(passes[n - 2]); flush_side()
        barrier()
        a.stamp(14)
        q_combine(passes[n - 1]); flush_side()
    else:
        barrier_only = True
        prefetch(0, 10**9)
        barrier()
        for k in range(n):
            itok = {}
            for t in passes[k]:
                itok[t] = a.e(f"ds_read_b128 v[{accof[t]}:{accof[t]+3}], v{c['vPX']} offset:{1024*t}")
            q_fin_pre(passes[k])
            emit_pass(k, init_tok=itok)
            flush_side()
            if k + 1 < n: prefetch(pend[k], 10**9)
            q_fin_post(passes[k])
            flush_side()
            a.wait_ds(a.ds_issued - 1)
            barrier()
        a.stamp(14)
    if getattr(a, "stamps", False): a.wait_vm_all()
    a.stamp(15)
    if c.get("bstamp"):
        a.e("s_waitcnt lgkmcnt(0)")
        for i in range(bcount[0]): a.e(f"s_mov_b32 s{81+i}, s{16+2*i}")
    a.dump_stamps(16, 52, 16 << 20, wave="s3")

def build(cfg):
    a = Asm()
    a.stamps = cfg.get("stamps", False)
    a.stamp_sel = cfg.get("stamp_sel", None)
    hdr = open("cdna_kernels/" + NAME + ".s.ref").read().split("\n")
    head = [l for l in hdr if l.startswith(";") and "@launch" not in l and "Override launch" not in l and "grid=ceil" not in l]
    a.raw("\n".join(head[:21]))
    a.raw(f"; @launch grid=(256,1,1) block=(512,1,1) lds={LDS_TOTAL}")
    a.raw('.amdgcn_target "amdgcn-amd-amdhsa--gfx950"\n.text')
    kernel(a, cfg)
    a.raw(f""".section .rodata,"a"
.p2align 6
.amdhsa_kernel {KN}
  .amdhsa_next_free_vgpr 256
  .amdhsa_next_free_sgpr 102
  .amdhsa_accum_offset 128
  .amdhsa_group_segment_fixed_size 0
  .amdhsa_kernarg_size 152
  .amdhsa_user_sgpr_count 2
  .amdhsa_user_sgpr_kernarg_segment_ptr 1
  .amdhsa_system_sgpr_workgroup_id_x 1
.end_amdhsa_kernel""")
    return a.finalize()

DEFAULT = dict(passes=[[0], [1, 2], [3, 4], [5, 6], [7]], NB=8, LOOK=30, RATE=2, WG=3)
if __name__ == "__main__":
    out = sys.argv[1] if len(sys.argv) > 1 else "cdna_kernels/" + NAME + ".s"
    cfg = dict(DEFAULT)
    for arg in sys.argv[2:]:
        if arg == "stamps": cfg["stamps"] = True
        elif "=" in arg:
            k, v = arg.split("=", 1); cfg[k] = eval(v)
    open(out, "w").write(build(cfg))
    print("wrote", out)
```
